```python
import torch

def _softmax(x, axis=-1):
    return torch.softmax(x, dim=axis)

def _gelu(x):
    return torch.nn.functional.gelu(x, approximate='tanh')

def _silu(x):
    return torch.nn.functional.silu(x)

def _sigmoid(x):
    return torch.sigmoid(x)

def _layernorm(x, axis=-1, eps=1e-05):
    m = x.mean(dim=axis, keepdim=True)
    v = x.var(dim=axis, keepdim=True, unbiased=False)
    return (x - m) / torch.sqrt(v + eps)

def _scatter_add(tgt, idx, src, axis=0):
    return tgt.clone().index_add_(axis, idx, src)

def _segment_sum(src, seg, n):
    out = torch.zeros((n,) + src.shape[1:], dtype=src.dtype)
    return out.index_add_(0, seg, src)

def _pad(x, pw):
    flat = tuple((v for pair in reversed(pw) for v in pair))
    return torch.nn.functional.pad(x, flat)
kernel_name = 'adaLN_cond__ssm_conv_s4__glu_gated_bilinear__prompt'

def setup_inputs():

    _w = lambda a: (lambda t: t.to(torch.bfloat16) if t.is_floating_point() else t)(torch.as_tensor(a))

    def _A_setup():
        B, L, D, N = (1, 2048, 576, 128)
        A_re = -(lambda _x: torch.exp(torch.as_tensor(_x)))((lambda *s: torch.randn(*s, dtype=torch.bfloat16) * 3.2)(D, N))
        A_im = torch.pi * (lambda *s: torch.randn(*s, dtype=torch.bfloat16) * 0.05)(D, N)
        B_re = (lambda *s: torch.randn(*s, dtype=torch.bfloat16) * 0.1)(D, N)
        B_im = (lambda *s: torch.randn(*s, dtype=torch.bfloat16) * 0.1)(D, N)
        C_re = (lambda *s: torch.randn(*s, dtype=torch.bfloat16) * 0.1)(D, N)
        C_im = (lambda *s: torch.randn(*s, dtype=torch.bfloat16) * 0.1)(D, N)
        log_dt = (lambda *s: torch.randn(*s, dtype=torch.bfloat16) * 0.05)(D) * 0.5 - 4.0
        Dskip = (lambda *s: torch.randn(*s, dtype=torch.bfloat16) * 0.05)(D)
        return {'u': _w((lambda *s: torch.randn(*s, dtype=torch.bfloat16) * 0.05)(B, L, D)), 'A_re': _w(A_re), 'A_im': _w(A_im), 'B_re': _w(B_re), 'B_im': _w(B_im), 'C_re': _w(C_re), 'C_im': _w(C_im), 'log_dt': _w(log_dt), 'Dskip': _w(Dskip)}
    _A_in = _A_setup()

    def _B_setup():
        B, S, D, F = (1, 2048, 576, 4608)
        return {'x': _w((lambda *s: torch.randn(*s, dtype=torch.bfloat16) * 0.05)(B, S, D)), 'w_gate': _w((lambda *s: torch.randn(*s, dtype=torch.bfloat16) * 0.8)(D, F) * D ** (-0.5)), 'w_up': _w((lambda *s: torch.randn(*s, dtype=torch.bfloat16) * 0.8)(D, F) * D ** (-0.5)), 'w_down': _w((lambda *s: torch.randn(*s, dtype=torch.bfloat16) * 0.8)(F, D) * F ** (-0.5))}
    _B_in = _B_setup()
    return {'A_u': _A_in['u'], 'A_A_re': _A_in['A_re'], 'A_A_im': _A_in['A_im'], 'A_B_re': _A_in['B_re'], 'A_B_im': _A_in['B_im'], 'A_C_re': _A_in['C_re'], 'A_C_im': _A_in['C_im'], 'A_log_dt': _A_in['log_dt'], 'A_Dskip': _A_in['Dskip'], 'B_x': _B_in['x'], 'B_w_gate': _B_in['w_gate'], 'B_w_up': _B_in['w_up'], 'B_w_down': _B_in['w_down'], 'c': _w((lambda *s: torch.randn(*s, dtype=torch.bfloat16) * 0.2)(1, 576) * 8.0), 'w_mod': _w((lambda *s: torch.randn(*s, dtype=torch.bfloat16) * 0.2)(576, 6 * 576) * 576 ** (-0.5) * 8.0)}

def reference(A_u, A_A_re, A_A_im, A_B_re, A_B_im, A_C_re, A_C_im, A_log_dt, A_Dskip, B_x, B_w_gate, B_w_up, B_w_down, c, w_mod):

    def _A_ref(u, A_re, A_im, B_re, B_im, C_re, C_im, log_dt, Dskip):
        Bsz, L, D = u.shape
        dt = torch.exp(log_dt)[:, None]
        A = A_re + 1j * A_im
        Bc = B_re + 1j * B_im
        Cc = C_re + 1j * C_im
        logdA = dt * A
        dB = dt * Bc
        l = (lambda x, dt: x.to(dt))(torch.arange(L), A_re.dtype)
        P = torch.exp(logdA[:, :, None] * l[None, None, :])
        K = torch.einsum('dn,dnl,dn->dl', Cc, P, dB).real
        L2 = 2 * L
        Kp = _pad(K, ((0, 0), (0, L)))
        up = (lambda x, *d: x.permute(*d))(u, 0, 2, 1)
        up = _pad(up, ((0, 0), (0, 0), (0, L)))
        Kf = (lambda x, axes=(-2, -1): torch.fft.rfft2(x.float(), dim=axes))(Kp[:, None, :], axes=(-2, -1))
        Uf = (lambda x, axes=(-2, -1): torch.fft.rfft2(x.float(), dim=axes))(up[:, :, None, :], axes=(-2, -1))
        Yf = Uf * Kf[None, :, :, :]
        y = (lambda x, s, axes=(-2, -1): torch.fft.irfft2(x, s=s, dim=axes).to(torch.bfloat16))(Yf, (1, L2), axes=(-2, -1))[:, :, 0, :L]
        y = (lambda x, *d: x.permute(*d))(y, 0, 2, 1) + u * Dskip[None, None, :]
        return y

    def _B_ref(x, w_gate, w_up, w_down):
        g = torch.einsum('bsd,df->bsf', x, w_gate)
        u = torch.einsum('bsd,df->bsf', x, w_up)
        h = g * u
        return torch.einsum('bsf,fd->bsd', h, w_down)
    x = A_u
    mod = (_silu(c) @ w_mod).reshape(c.shape[0], 6, 1, -1)
    sa, ca, ga, sb, cb, gb = (mod[:, 0].clone(), mod[:, 1].clone(), mod[:, 2].clone(), mod[:, 3].clone(), mod[:, 4].clone(), mod[:, 5].clone())
    h = _layernorm(x, axis=-1) * (1 + ca) + sa
    x = x + ga * _A_ref(h, A_A_re, A_A_im, A_B_re, A_B_im, A_C_re, A_C_im, A_log_dt, A_Dskip)
    h = _layernorm(x, axis=-1) * (1 + cb) + sb
    x = x + gb * _B_ref(h, B_w_gate, B_w_up, B_w_down)
    return x
```

```python
import re

TRANS = ("v_exp_f32","v_log_f32","v_rcp_f32","v_rsq_f32","v_sqrt_f32","v_sin_f32","v_cos_f32","v_rcp_iflag_f32",
         "v_exp_f16","v_log_f16","v_rcp_f16","v_rsq_f16","v_sqrt_f16","v_sin_f16","v_cos_f16")
REG = re.compile(r"\b([vas])(\d+)\b|\b([vas])\[(\d+):(\d+)\]|\b(vcc|exec|m0|scc)(?:_lo|_hi)?\b")

def regs_of(tok):
    out = set()
    for m in REG.finditer(tok):
        if m.group(1): out.add((m.group(1), int(m.group(2))))
        elif m.group(3):
            for i in range(int(m.group(4)), int(m.group(5)) + 1): out.add((m.group(3), i))
        else: out.add((m.group(6), 0))
    return out

def mfma_info(op):
    if op.endswith("_f32") and ("x4_f32" in op or "x2_f32" in op):
        return ("S", 8 if "16x16x4" in op else 16)
    if "32x32x16" in op or "32x32x8" in op: return ("X", 8)
    if "16x16x32" in op or "16x16x16" in op: return ("X", 4)
    raise ValueError(op)

class Ins:
    __slots__ = ("text","op","defs","uses","kind","mf","srcc","dpp","states","storedata")
    def __init__(self, text):
        self.text = text
        t = text.split(";")[0].strip()
        parts = t.split(None, 1)
        self.op = parts[0]
        rest = parts[1] if len(parts) > 1 else ""
        ops = [o.strip() for o in rest.split(",")] if rest else []
        op = self.op
        self.mf = None; self.srcc = set(); self.dpp = False; self.states = 1; self.storedata = set()
        defs = set(); uses = set()
        if op == "s_nop":
            self.kind = "nop"; self.states = int(rest, 0) + 1
        elif op.startswith("v_mfma"):
            self.kind = "mfma"; self.mf = mfma_info(op)
            defs = regs_of(ops[0]); uses = regs_of(ops[1]) | regs_of(ops[2]) | regs_of(ops[3]); self.srcc = regs_of(ops[3])
        elif op.startswith("v_"):
            self.kind = "valu"
            self.dpp = ("row_" in rest or "quad_perm" in rest or "_dpp" in op or "wave_" in rest)
            if op.startswith("v_cmp"):
                defs = regs_of(ops[0]); uses = set().union(*[regs_of(o) for o in ops[1:]])
                if op.startswith("v_cmpx"): defs.add(("exec", 0))
            elif op.startswith("v_permlane") and "swap" in op:
                defs = regs_of(ops[0]) | regs_of(ops[1]); uses = set(defs)
            elif op in ("v_add_co_u32","v_sub_co_u32","v_addc_co_u32","v_subb_co_u32","v_add_co_u32_e32","v_addc_co_u32_e32","v_mad_u64_u32","v_div_scale_f32"):
                defs = regs_of(ops[0]) | regs_of(ops[1]); uses = set().union(*[regs_of(o) for o in ops[2:]])
            elif op == "v_nop":
                pass
            else:
                defs = regs_of(ops[0]); uses = set().union(*[regs_of(o) for o in ops[1:]]) if len(ops) > 1 else set()
                if op.startswith(("v_fmac","v_mac","v_dot2c","v_pk_fmac","v_writelane")): uses |= defs
        elif op.startswith(("buffer_","global_","flat_","scratch_")):
            self.kind = "vmem"
            allr = [regs_of(o) for o in ops] or [set()]
            if "load" in op and " lds" not in (" " + rest) and "load_lds" not in op:
                defs = allr[0]; uses = set().union(*allr[1:])
            elif "atomic" in op and ("sc0" in rest):
                defs = allr[0]; uses = set().union(*allr)
            else:
                uses = set().union(*allr)
                if " lds" in (" " + rest) or "load_lds" in op: uses.add(("m0", 0))
                if "store" in op and ("x4" in op or "x3" in op):
                    self.storedata = allr[0] if op.startswith("buffer_") else allr[1]
        elif op.startswith("ds_"):
            self.kind = "ds"
            allr = [regs_of(o) for o in ops]
            if op.startswith(("ds_read","ds_bpermute","ds_permute","ds_swizzle")) or "_rtn" in op:
                defs = allr[0]; uses = set().union(*allr[1:])
            else:
                uses = set().union(*allr)
        elif op.startswith("s_"):
            self.kind = "salu"
            if op.startswith(("s_cmp","s_waitcnt","s_barrier","s_branch","s_cbranch","s_endpgm","s_setprio","s_sleep","s_bitcmp")):
                uses = set().union(*[regs_of(o) for o in ops]) if ops else set()
            else:
                defs = regs_of(ops[0]); uses = set().union(*[regs_of(o) for o in ops[1:]]) if len(ops) > 1 else set()
        else:
            raise ValueError("unknown op " + text)
        self.defs = defs; self.uses = uses

def need(p, c):
    n = 0
    vec = lambda s: {r for r in s if r[0] in "va"}
    sc = lambda s: {r for r in s if r[0] in ("s", "vcc")}
    if p.kind == "valu":
        d = vec(p.defs)
        if d & c.uses:
            if c.kind == "mfma": n = max(n, 2)
            if c.kind == "valu":
                if c.dpp: n = max(n, 2)
                if c.op.startswith(("v_readlane","v_readfirstlane")): n = max(n, 1)
                if c.op.startswith("v_permlane"): n = max(n, 2)
                if ("op_sel" in p.text or "sdwa" in p.op): n = max(n, 1)
            if p.op.replace("_e32","").replace("_e64","") in TRANS: n = max(n, 1)
        ds_ = sc(p.defs)
        if ds_ & c.uses:
            if c.kind == "valu": n = max(n, 4 if c.op.startswith(("v_readlane","v_writelane","v_div_fmas")) else 2)
            if c.kind == "mfma": n = max(n, 2)
            if c.kind == "vmem": n = max(n, 5)
            if c.kind == "salu": n = max(n, 1)
        if ("exec", 0) in p.defs: n = max(n, 5)
    if p.kind == "mfma":
        cls, ps = p.mf
        d = p.defs
        if c.kind == "mfma":
            ccls, cps = c.mf
            ab = c.uses - c.srcc if not (c.srcc & (c.uses - c.srcc)) else c.uses
            ops = [o.strip() for o in c.text.split(";")[0].split(None,1)[1].split(",")]
            abr = regs_of(ops[1]) | regs_of(ops[2])
            if d & abr:
                n = max(n, {("X",2):5,("X",4):8,("X",8):12,("X",16):20,("S",2):4,("S",4):6,("S",8):10,("S",16):18}[(cls,ps)])
            if d & c.srcc:
                if d == c.srcc and cls == ccls and ps == cps: n = max(n, 2 if ps == 2 else 0)
                else: n = max(n, {2:4,4:6,8:10,16:18}[ps])
            elif d & c.defs:
                n = max(n, {2:4,4:6,8:10,16:18}[ps])
        else:
            if d & (c.uses | c.defs):
                n = max(n, {("X",2):5,("X",4):8,("X",8):12,("X",16):20,("S",2):4,("S",4):6,("S",8):10,("S",16):18}[(cls,ps)])
            if c.kind == "valu" and cls == "X" and (p.srcc & c.defs):
                n = max(n, {2:1,4:3,8:7,16:15}[ps])
    if p.kind == "vmem" and p.storedata and (p.storedata & c.defs):
        n = max(n, 2)
    if p.kind == "salu" and ("m0", 0) in p.defs and ("m0", 0) in c.uses and c.kind in ("vmem", "ds"):
        n = max(n, 1)
    return n

class Asm:
    def __init__(self):
        self.lines = []
        self.hist = []
        self.vm = []
        self.lg = []
        self.nnop = 0
    def raw(self, s):
        self.lines.append(s)
    def label(self, name):
        self.lines.append(name + ":")
    def fence(self, n=20):
        while n > 0:
            k = min(n, 16); self._emit(Ins(f"s_nop {k-1}")); n -= k
    def _emit(self, ins):
        self.lines.append("    " + ins.text)
        self.hist.append(ins)
        if len(self.hist) > 40: self.hist.pop(0)
    def __call__(self, text, tag=None):
        ins = Ins(text)
        dist = 0; pad = 0
        for p in reversed(self.hist):
            if dist >= 24: break
            r = need(p, ins)
            if r - dist > pad: pad = r - dist
            dist += p.states
        while pad > 0:
            k = min(pad, 16); self._emit(Ins(f"s_nop {k-1}")); pad -= k; self.nnop += 1
        self._emit(ins)
        if ins.kind == "vmem": self.vm.append(tag)
        if ins.kind == "ds": self.lg.append(tag)
        return ins
    def wait_vm(self, tag):
        idx = [i for i, t in enumerate(self.vm) if t == tag]
        if not idx: return
        n = len(self.vm) - 1 - idx[-1]
        assert n <= 63, n
        self(f"s_waitcnt vmcnt({n})")
        self.vm = self.vm[idx[-1] + 1:]
    def wait_lg(self, tag):
        idx = [i for i, t in enumerate(self.lg) if t == tag]
        if not idx: return
        n = len(self.lg) - 1 - idx[-1]
        if n > 15:
            n = 15
            self(f"s_waitcnt lgkmcnt({n})")
            self.lg = self.lg[len(self.lg) - 15:]
            return
        self(f"s_waitcnt lgkmcnt({n})")
        self.lg = self.lg[idx[-1] + 1:]
    def wait_all(self, vm=True, lg=True):
        s = "s_waitcnt"
        if vm: s += " vmcnt(0)"; self.vm = []
        if lg: s += " lgkmcnt(0)"; self.lg = []
        self(s)
    def text(self):
        return "\n".join(self.lines) + "\n"

def kernel_header(name):
    return f".globl {name}\n.p2align 8\n.type {name},@function\n{name}:\n"

def kernel_desc(name, vgpr, sgpr, accum):
    return f""".p2align 6
.amdhsa_kernel {name}
  .amdhsa_next_free_vgpr {vgpr}
  .amdhsa_next_free_sgpr {sgpr}
  .amdhsa_accum_offset {accum}
  .amdhsa_group_segment_fixed_size 0
  .amdhsa_kernarg_size 144
  .amdhsa_user_sgpr_count 2
  .amdhsa_user_sgpr_kernarg_segment_ptr 1
  .amdhsa_system_sgpr_workgroup_id_x 1
  .amdhsa_float_denorm_mode_32 3
.end_amdhsa_kernel
"""
```

```python
import sys
from asmlib import *

OFF_NT   = 0x000000
OFF_XT   = 0x240000
OFF_KC   = 0x480000
OFF_X1T  = 0x6C0000
OFF_H2P  = 0x900000
OFF_X1R  = 0xB40000
OFF_MODP = 0xD80000
OFF_MODF = 0xD90000
OFF_HM   = 0xE00000
OFF_PART = 0x2000000
WS_REC   = 0x4000000
LOG2E = 0x3fb8aa3b
INV2PI = 0x3e22f983
def f32(x):
    import struct
    return struct.unpack("<I", struct.pack("<f", x))[0]

def srd(a, d, lo, nrec):
    a(f"s_mov_b32 s{d}, s{lo}")
    a(f"s_and_b32 s{d+1}, s{lo+1}, 0xffff")
    a(f"s_mov_b32 s{d+2}, {nrec:#x}")
    a(f"s_mov_b32 s{d+3}, 0x00020000")

def unpack(a, dlo, dhi, src):
    a(f"v_lshlrev_b32 v{dlo}, 16, v{src}")
    a(f"v_and_b32 v{dhi}, 0xffff0000, v{src}")

def rnd1(a, r):
    a(f"v_cvt_pk_bf16_f32 v{r}, v{r}, v{r}")
    a(f"v_and_b32 v{r}, 0xffff0000, v{r}")

def rnd2(a, r0, r1, tmp):
    a(f"v_cvt_pk_bf16_f32 v{tmp}, v{r0}, v{r1}")
    unpack(a, r0, r1, tmp)

def row16_sum(a, r):
    for s in (8, 4, 2, 1):
        a(f"v_add_f32_dpp v{r}, v{r}, v{r} row_ror:{s} row_mask:0xf bank_mask:0xf")

N_LN1, N_MOD, N_KG = 128, 162, 576
def k1():
    a = Asm()
    a("s_load_dwordx2 s[6:7], s[0:1], 136")
    a(f"s_cmp_ge_u32 s2, {N_LN1+N_MOD}")
    a("s_cbranch_scc1 K1_KGEN")
    a(f"s_cmp_ge_u32 s2, {N_LN1}")
    a("s_cbranch_scc1 K1_MOD")
    PITCH = 1216; LN_N = 0; LN_X = 16 * PITCH
    a("s_load_dwordx2 s[4:5], s[0:1], 0")
    a("v_lshrrev_b32 v1, 4, v0")
    a("v_and_b32 v2, 15, v0")
    a("v_mul_u32_u24 v3, 1152, v1")
    a("v_lshl_add_u32 v3, v2, 3, v3")
    a("s_mul_i32 s3, s2, 18432")
    a.wait_all()
    srd(a, 12, 4, 2048*1152)
    srd(a, 8, 6, WS_REC)
    X = 10
    for k in range(9):
        a(f"buffer_load_dwordx2 v[{X+2*k}:{X+2*k+1}], v3, s[12:15], s3 offen offset:{128*k}", tag=("x", k))
    a(f"v_mul_u32_u24 v4, {PITCH}, v1")
    a("v_lshl_add_u32 v4, v2, 3, v4")
    F = 28
    for k in range(9):
        a.wait_vm(("x", k))
        for h in range(2):
            unpack(a, F+4*k+2*h, F+4*k+2*h+1, X+2*k+h)
        a(f"ds_write_b64 v4, v[{X+2*k}:{X+2*k+1}] offset:{LN_X+128*k}")
    a(f"v_add_f32 v5, v{F}, v{F+1}")
    a(f"v_add_f32 v6, v{F+2}, v{F+3}")
    for i in range(4, 36, 2):
        a(f"v_add_f32 v5, v5, v{F+i}")
        a(f"v_add_f32 v6, v6, v{F+i+1}")
    a("v_add_f32 v5, v5, v6")
    row16_sum(a, 5)
    a(f"v_mul_f32 v5, {f32(1.0/576):#x}, v5")
    a("v_mov_b32 v6, 0"); a("v_mov_b32 v7, 0")
    for i in range(0, 36, 2):
        a(f"v_sub_f32 v8, v{F+i}, v5"); a(f"v_sub_f32 v9, v{F+i+1}, v5")
        a("v_fmac_f32 v6, v8, v8"); a("v_fmac_f32 v7, v9, v9")
    a("v_add_f32 v6, v6, v7")
    row16_sum(a, 6)
    a(f"v_mul_f32 v6, {f32(1.0/576):#x}, v6")
    rnd1(a, 6)
    a(f"v_add_f32 v6, {f32(1e-5):#x}, v6")
    rnd1(a, 6)
    a("v_sqrt_f32 v6, v6")
    rnd1(a, 6)
    a("v_rcp_f32 v7, v6")
    rnd1(a, 5)
    for k in range(9):
        for h in range(2):
            r0 = F+4*k+2*h; r1 = r0+1
            a(f"v_sub_f32 v{r0}, v{r0}, v5"); a(f"v_sub_f32 v{r1}, v{r1}, v5")
            rnd2(a, r0, r1, 8)
            a(f"v_mul_f32 v8, v{r0}, v7"); a(f"v_mul_f32 v9, v{r1}, v7")
            a(f"v_fma_f32 v{r0}, -v8, v6, v{r0}"); a(f"v_fma_f32 v{r1}, -v9, v6, v{r1}")
            a(f"v_fmac_f32 v8, v{r0}, v7"); a(f"v_fmac_f32 v9, v{r1}, v7")
            a(f"v_cvt_pk_bf16_f32 v{X+2*k+h}, v8, v9")
        a(f"ds_write_b64 v4, v[{X+2*k}:{X+2*k+1}] offset:{LN_N+128*k}")
    a("v_and_b32 v1, 63, v0")
    a("v_lshrrev_b32 v2, 6, v0")
    a("v_readfirstlane_b32 s16, v2")
    a("v_lshrrev_b32 v3, 4, v1")
    a("v_and_b32 v5, 1, v3")
    a("v_lshrrev_b32 v6, 1, v3")
    a("v_bfe_u32 v7, v1, 2, 2")
    a("v_and_b32 v8, 3, v1")
    a("v_lshl_add_u32 v7, v6, 3, v7")
    a(f"v_mul_u32_u24 v7, {PITCH}, v7")
    a("v_lshl_add_u32 v7, v5, 5, v7")
    a("v_lshl_add_u32 v7, v8, 3, v7")
    a("s_lshr_b32 s17, s16, 1")
    a("s_and_b32 s18, s16, 1")
    a(f"s_mul_i32 s19, s17, {LN_X}")
    a("s_mul_i32 s20, s18, 576")
    a("s_add_u32 s19, s19, s20")
    a("v_add_u32 v7, s19, v7")
    a("v_and_b32 v9, 15, v1")
    a("v_lshl_add_u32 v9, v5, 4, v9")
    a("v_lshlrev_b32 v9, 5, v9")
    a("v_lshl_add_u32 v9, v6, 4, v9")
    a(f"s_mul_i32 s21, s17, {OFF_XT - OFF_NT}")
    a("s_add_u32 s21, s21, s3")
    a("s_mul_i32 s22, s18, 9216")
    a("s_add_u32 s21, s21, s22")
    if OFF_NT: a(f"s_add_u32 s21, s21, {OFF_NT}")
    a("s_add_u32 s22, s21, 4096")
    a("s_add_u32 s23, s21, 8192")
    a.wait_all(vm=False)
    a("s_barrier")
    for i in range(9):
        a(f"ds_read_b64_tr_b16 v[{F+4*i}:{F+4*i+1}], v7 offset:{64*i}", tag=("t", i))
        a(f"ds_read_b64_tr_b16 v[{F+4*i+2}:{F+4*i+3}], v7 offset:{64*i+4*PITCH}", tag=("t", i))
    for i in range(9):
        a.wait_lg(("t", i))
        a(f"buffer_store_dwordx4 v[{F+4*i}:{F+4*i+3}], v9, s[8:11], s{21+i//4} offen offset:{1024*(i%4)}")
    a("s_endpgm")
    a.label("K1_MOD"); a.hist = []; a.vm = []; a.lg = []
    a("s_load_dwordx2 s[4:5], s[0:1], 112")
    a("s_load_dwordx2 s[16:17], s[0:1], 104")
    a(f"s_sub_u32 s3, s2, {N_LN1}")
    a("s_mov_b32 s20, 0")
    a("s_cmp_ge_u32 s3, 54"); a("s_cselect_b32 s20, 1, s20")
    a("s_cmp_ge_u32 s3, 108"); a("s_cselect_b32 s20, 2, s20")
    a("s_mul_i32 s21, s20, 54"); a("s_sub_u32 s21, s3, s21")
    a("v_lshrrev_b32 v1, 3, v0")
    a("v_and_b32 v2, 7, v0")
    a("v_mul_u32_u24 v3, 6912, v1")
    a("v_lshl_add_u32 v3, v2, 4, v3")
    a("v_lshlrev_b32 v4, 1, v1")
    a(f"s_mul_i32 s22, s20, {192*6912}")
    a("s_lshl_b32 s23, s21, 7")
    a("s_add_u32 s22, s22, s23")
    a("s_mul_i32 s23, s20, 384")
    a.wait_all()
    srd(a, 12, 4, 576*6912)
    srd(a, 24, 16, 1152)
    srd(a, 8, 6, WS_REC)
    for i in range(6):
        a(f"buffer_load_ushort v{10+i}, v4, s[24:27], s23 offen offset:{64*i}", tag="c")
    for i in range(6):
        a(f"buffer_load_dwordx4 v[{16+4*i}:{19+4*i}], v3, s[12:15], s22 offen", tag=("w", i))
        if i < 5: a(f"s_add_u32 s22, s22, {32*6912}")
    for j in range(8): a(f"v_mov_b32 v{40+j}, 0")
    a.wait_vm("c")
    for i in range(6):
        r = 10+i
        a(f"v_lshlrev_b32 v{r}, 16, v{r}")
        a(f"v_mul_f32 v5, {(LOG2E|0x80000000):#x}, v{r}")
        a("v_exp_f32 v5, v5")
        a("v_add_f32 v5, 1.0, v5")
        a("v_rcp_f32 v5, v5")
        a(f"v_mul_f32 v{r}, v{r}, v5")
        rnd1(a, r)
    for i in range(6):
        a.wait_vm(("w", i))
        for q in range(4):
            unpack(a, 5, 6, 16+4*i+q)
            a(f"v_fmac_f32 v{40+2*q}, v{10+i}, v5")
            a(f"v_fmac_f32 v{41+2*q}, v{10+i}, v6")
    a("v_lshlrev_b32 v5, 8, v1")
    a("v_lshl_add_u32 v5, v2, 5, v5")
    a("ds_write_b128 v5, v[40:43]")
    a("ds_write_b128 v5, v[44:47] offset:16")
    a("v_lshlrev_b32 v6, 2, v0")
    a("v_lshrrev_b32 v7, 6, v0")
    a("v_readfirstlane_b32 s16, v7")
    a.wait_all(vm=False)
    a("s_barrier")
    a("s_cmp_lg_u32 s16, 0")
    a("s_cbranch_scc1 K1_END")
    for i in range(32):
        a(f"ds_read_b32 v{10+i}, v6 offset:{256*i}", tag=("r", i))
    a.wait_all(vm=False)
    for st in (16, 8, 4, 2, 1):
        for i in range(st):
            a(f"v_add_f32 v{10+i}, v{10+i}, v{10+i+st}")
    a(f"s_mul_i32 s22, s20, {3456*4}")
    a("s_lshl_b32 s23, s21, 8")
    a("s_add_u32 s22, s22, s23")
    a(f"s_add_u32 s22, s22, {OFF_MODP}")
    a("buffer_store_dword v10, v6, s[8:11], s22 offen")
    a("s_endpgm")
    a.label("K1_KGEN"); a.hist = []; a.vm = []; a.lg = []
    a(f"s_cmp_ge_u32 s2, {N_LN1+N_MOD+N_KG}")
    a("s_cbranch_scc1 K1_END")
    a("s_load_dwordx8 s[16:23], s[0:1], 8")
    a("s_load_dwordx4 s[24:27], s[0:1], 40")
    a("s_load_dwordx2 s[28:29], s[0:1], 56")
    a(f"s_sub_u32 s3, s2, {N_LN1+N_MOD}")
    a("v_and_b32 v1, 63, v0")
    a("v_lshrrev_b32 v2, 6, v0")
    a("v_lshrrev_b32 v3, 4, v1")
    a("v_and_b32 v4, 15, v0")
    a("v_lshrrev_b32 v5, 4, v0")
    a("v_lshlrev_b32 v5, 4, v5")
    a("s_lshl_b32 s4, s3, 8")
    a("v_add_u32 v5, s4, v5")
    a("s_lshl_b32 s5, s3, 1")
    a("v_mov_b32 v6, s5")
    a.wait_all()
    P = 64
    a("global_load_ushort v7, v6, s[28:29]", tag="dt")
    for q in range(6):
        a(f"global_load_dwordx4 v[{P+4*q}:{P+4*q+3}], v5, s[{16+2*q}:{17+2*q}]", tag="p")
    srd(a, 8, 6, WS_REC)
    a("v_and_b32 v12, 7, v4")
    a("v_lshrrev_b32 v13, 3, v4")
    a("v_lshl_add_u32 v8, v13, 7, v12")
    a("v_lshrrev_b32 v12, 2, v4"); a("v_lshlrev_b32 v12, 7, v12")
    a("v_and_b32 v13, 3, v4"); a("v_lshl_add_u32 v12, v13, 1, v12")
    a("v_add_u32 v12, 256, v12")
    a("v_subrev_u32 v13, 8, v4"); a("v_lshrrev_b32 v13, 1, v13"); a("v_lshlrev_b32 v13, 7, v13")
    a("v_and_b32 v14, 1, v4"); a("v_lshl_add_u32 v13, v14, 2, v13")
    a("v_add_u32 v13, 512, v13")
    a("v_cmp_gt_u32 vcc, 8, v4")
    a("v_cndmask_b32 v9, v13, v12, vcc")
    a("v_lshlrev_b32 v12, 7, v4"); a("v_add_u32 v12, 1024, v12")
    a("v_mov_b32 v13, 2048")
    a("v_cndmask_b32 v10, v13, v12, vcc")
    a("v_lshlrev_b32 v11, 3, v4")
    HT = 12288; T16 = 12544
    a("v_lshlrev_b32 v12, 2, v4")
    for T in range(3):
        a(f"ds_write_b32 v12, v{8+T} offset:{HT+64*T}")
    for T in range(4):
        a(f"v_cvt_f32_u32 v{8+T}, v{8+T}")
    for r in range(12): a(f"v_mov_b32 v{16+r}, 0")
    a.wait_vm("dt")
    a("v_lshlrev_b32 v7, 16, v7")
    a(f"v_mul_f32 v7, {LOG2E:#x}, v7")
    a("v_exp_f32 v7, v7")
    rnd1(a, 7)
    a(f"s_mov_b32 s30, {LOG2E:#x}")
    a(f"s_mov_b32 s31, {INV2PI:#x}")
    a.wait_vm("p")
    for s in range(8):
        pr = 28
        for q in range(6):
            src = P+4*q+(s >> 1)
            if s & 1: a(f"v_and_b32 v{pr+q}, 0xffff0000, v{src}")
            else:     a(f"v_lshlrev_b32 v{pr+q}, 16, v{src}")
        for q in range(4): a(f"v_mul_f32 v{pr+q}, v7, v{pr+q}")
        a(f"v_mul_f32 v{pr}, s30, v{pr}")
        a(f"v_mul_f32 v{pr+1}, s31, v{pr+1}")
        a(f"v_mul_f32 v34, v{pr+4}, v{pr+2}")
        a(f"v_mul_f32 v35, v{pr+4}, v{pr+3}")
        a(f"v_fma_f32 v34, -v{pr+5}, v{pr+3}, v34")
        a(f"v_fmac_f32 v35, v{pr+5}, v{pr+2}")
        E = 36 + 12 * (s & 1)
        for T in range(4):
            a(f"v_mul_f32 v{E+3*T}, v{pr}, v{8+T}")
            a(f"v_mul_f32 v{E+3*T+1}, v{pr+1}, v{8+T}")
        for T in range(4):
            a(f"v_exp_f32 v{E+3*T}, v{E+3*T}")
            a(f"v_fract_f32 v{E+3*T+1}, v{E+3*T+1}")
        for T in range(4):
            a(f"v_cos_f32 v{E+3*T+2}, v{E+3*T+1}")
            a(f"v_sin_f32 v{E+3*T+1}, v{E+3*T+1}")
        for T in range(4):
            a(f"v_mul_f32 v{E+3*T+1}, v{E+3*T}, v{E+3*T+1}")
            a(f"v_mul_f32 v{E+3*T}, v{E+3*T}, v{E+3*T+2}")
        Er = 60 + 2 * (s & 1)
        a(f"v_mul_f32 v{Er}, v34, v{E+9}")
        a(f"v_mul_f32 v{Er+1}, v34, v{E+10}")
        a(f"v_fma_f32 v{Er}, -v35, v{E+10}, v{Er}")
        a(f"v_fma_f32 v{Er+1}, -v35, v{E+9}, -v{Er+1}")
        for T in range(3):
            a(f"v_mfma_f32_16x16x4_f32 v[{16+4*T}:{19+4*T}], v{E+3*T}, v{Er}, v[{16+4*T}:{19+4*T}]")
        for T in range(3):
            a(f"v_mfma_f32_16x16x4_f32 v[{16+4*T}:{19+4*T}], v{E+3*T+1}, v{Er+1}, v[{16+4*T}:{19+4*T}]")
    a("v_mul_u32_u24 v12, 3072, v2")
    a("v_lshl_add_u32 v12, v1, 4, v12")
    for T in range(3):
        a(f"ds_write_b128 v12, v[{16+4*T}:{19+4*T}] offset:{1024*T}")
    a("v_readfirstlane_b32 s16, v2")
    a("v_lshlrev_b32 v13, 4, v0")
    a("v_lshlrev_b32 v14, 6, v2")
    a("v_lshl_add_u32 v14, v3, 4, v14")
    a.wait_all(vm=False)
    a("s_barrier")
    a("s_cmp_eq_u32 s16, 3")
    a("s_cbranch_scc1 K1_KG_C")
    for w in range(4):
        a(f"ds_read_b128 v[{16+4*w}:{19+4*w}], v13 offset:{3072*w}")
    a(f"ds_read_b128 v[32:35], v14 offset:{HT}")
    a.wait_all(vm=False)
    for r in range(4):
        a(f"v_add_f32 v{16+r}, v{16+r}, v{20+r}")
        a(f"v_add_f32 v{24+r}, v{24+r}, v{28+r}")
        a(f"v_lshl_add_u32 v{32+r}, v4, 3, v{32+r}")
    for r in range(4):
        a(f"v_add_f32 v{16+r}, v{16+r}, v{24+r}")
        a(f"v_lshlrev_b32 v{32+r}, 1, v{32+r}")
    for r in range(4):
        a(f"v_cvt_pk_bf16_f32 v{16+r}, v{16+r}, v{16+r}")
    for r in range(4):
        a(f"ds_write_b16 v{32+r}, v{16+r} offset:{T16}")
    a.label("K1_KG_C"); a.fence(4)
    a("v_lshlrev_b32 v12, 3, v0")
    for e in range(8):
        a(f"v_add_u32 v{16+e}, {e}, v12")
        a(f"v_cvt_f32_u32 v{16+e}, v{16+e}")
    for e in range(0, 8, 2):
        rnd2(a, 16+e, 17+e, 13)
    for e in range(8):
        a(f"v_cvt_u32_f32 v{16+e}, v{16+e}")
        a(f"v_lshlrev_b32 v{16+e}, 1, v{16+e}")
    a("v_lshlrev_b32 v12, 4, v0")
    a("s_lshl_b32 s4, s3, 12")
    a(f"s_add_u32 s4, s4, {OFF_KC}")
    a.wait_all(vm=False)
    a("s_barrier")
    for e in range(8):
        a(f"ds_read_u16 v{24+e}, v{16+e} offset:{T16}")
    a.wait_all(vm=False)
    for e in range(4):
        a(f"v_lshl_or_b32 v{32+e}, v{25+2*e}, 16, v{24+2*e}")
    a("buffer_store_dwordx4 v[32:35], v12, s[8:11], s4 offen")
    a.label("K1_END")
    a("s_endpgm")
    return a.text(), dict(vgpr=88, sgpr=40, accum=88), f"grid=({N_LN1+N_MOD+N_KG},1,1) block=(256,1,1) lds=38912"

def k2():
    a = Asm()
    CS = 4160; KB = 4 * CS; HB0 = 4 * KB; HS = 4640
    a("s_load_dwordx2 s[6:7], s[0:1], 136")
    a("s_load_dwordx2 s[4:5], s[0:1], 64")
    a("s_cmp_gt_u32 s2, 144")
    a("s_cbranch_scc1 K2_END")
    a("s_cmp_eq_u32 s2, 144")
    a("s_cbranch_scc1 K2_MODF")
    a("v_and_b32 v1, 63, v0")
    a("v_lshrrev_b32 v2, 6, v0")
    a("v_readfirstlane_b32 s16, v2")
    a("v_and_b32 v3, 7, v1")
    a("v_lshrrev_b32 v4, 3, v1")
    a("v_lshrrev_b32 v5, 1, v3")
    a("s_lshl_b32 s17, s2, 2")
    a("s_add_u32 s18, s17, s16")
    a.wait_all()
    srd(a, 8, 6, WS_REC)
    a("v_mul_u32_u24 v6, 18432, v4")
    a("v_lshl_add_u32 v6, v3, 4, v6")
    a(f"s_mul_i32 s19, s16, {32*18432}")
    a("s_lshl_b32 s20, s17, 5")
    a("s_add_u32 s19, s19, s20")
    if OFF_NT: a(f"s_add_u32 s19, s19, {OFF_NT}")
    NR = 64
    for i in range(4):
        a(f"buffer_load_dwordx4 v[{NR+4*i}:{NR+4*i+3}], v6, s[8:11], s19 offen", tag=("n", i))
        if i < 3: a(f"s_add_u32 s19, s19, {8*18432}")
    a("v_add_u32 v7, s17, v5"); a("v_lshlrev_b32 v7, 2, v7")
    a("s_lshl_b32 s20, s18, 2"); a("v_mov_b32 v8, s20")
    a(f"s_mov_b32 s21, {OFF_MODP}")
    for ks in range(3):
        a(f"buffer_load_dword v{80+ks}, v7, s[8:11], s21 offen", tag="m")
        a(f"buffer_load_dword v{83+ks}, v7, s[8:11], s21 offen offset:2304", tag="m")
        a(f"s_add_u32 s22, s21, 4608")
        a(f"buffer_load_dword v{86+ks}, v8, s[8:11], s22 offen", tag="m")
        if ks < 2: a(f"s_add_u32 s21, s21, {3456*4}")
    a("s_lshl_b32 s20, s18, 1"); a("v_mov_b32 v9, s20")
    a("global_load_ushort v89, v9, s[4:5]", tag="m")
    a("v_lshlrev_b32 v10, 4, v1")
    a("v_subrev_u32 v11, 4, v10")
    a("s_lshl_b32 s21, s18, 12")
    a(f"s_add_u32 s21, s21, {OFF_KC}")
    a("s_sub_u32 s22, s21, 4")
    KR = 96
    for i in range(4):
        a(f"buffer_load_dwordx4 v[{KR+4*i}:{KR+4*i+3}], v10, s[8:11], s21 offen offset:{1024*i}", tag=("k", i))
        a(f"buffer_load_dword v{KR+16+i}, v10, s[8:11], s22 offen offset:{1024*i}", tag=("k", i))
    a("v_and_b32 v12, 15, v1")
    a("v_lshrrev_b32 v13, 4, v1")
    a("v_mul_u32_u24 v14, 18432, v12")
    a("v_lshl_add_u32 v14, v13, 3, v14")
    a("s_lshl_b32 s23, s18, 5")
    a(f"s_add_u32 s24, s23, {OFF_XT}")
    XR = 200
    for jt in range(8):
        a(f"buffer_load_dwordx2 v[{XR+2*jt}:{XR+2*jt+1}], v14, s[8:11], s24 offen", tag="x")
        if jt < 7: a(f"s_add_u32 s24, s24, {16*18432}")
    a("v_mov_b32 v16, 0"); a("v_mov_b32 v17, 0")
    a(f"s_mul_i32 s25, s16, {HS}"); a(f"s_add_u32 s25, s25, {HB0}")
    a(f"s_mul_i32 s26, s16, {KB}")
    a("v_lshlrev_b32 v15, 3, v1"); a("v_add_u32 v15, s25, v15")
    a("ds_write_b64 v15, v[16:17]")
    a(f"v_mul_u32_u24 v15, {CS}, v13"); a("v_lshl_add_u32 v15, v12, 2, v15"); a("v_add_u32 v15, s26, v15")
    a("ds_write_b32 v15, v16")
    a.wait_vm("m")
    for b in (80, 83, 86):
        a(f"v_add_f32 v{b}, v{b}, v{b+1}"); a(f"v_add_f32 v{b}, v{b}, v{b+2}")
        rnd1(a, b)
    a("v_add_f32 v83, 1.0, v83"); rnd1(a, 83)
    a("v_lshlrev_b32 v57, 16, v89")
    a("v_mov_b32 v56, v86")
    a(f"v_mul_u32_u24 v15, {HS}, v5")
    a("v_and_b32 v18, 1, v3")
    a("v_lshl_add_u32 v15, v18, 4, v15")
    a("v_lshl_add_u32 v15, v4, 5, v15")
    a("s_lshl_b32 s27, s16, 10"); a(f"s_add_u32 s27, s27, {HB0+512}")
    a("v_add_u32 v15, s27, v15")
    for i in range(4):
        for q in range(4):
            r = NR+4*i+q
            unpack(a, 18, 19, r)
            a("v_mul_f32 v18, v18, v83"); a("v_mul_f32 v19, v19, v83")
            rnd2(a, 18, 19, 20)
            a("v_add_f32 v18, v18, v80"); a("v_add_f32 v19, v19, v80")
            a(f"v_cvt_pk_bf16_f32 v{r}, v18, v19")
        a(f"ds_write_b128 v15, v[{NR+4*i}:{NR+4*i+3}] offset:{256*i}")
    a("v_add_u32 v15, s26, v10")
    a("v_add_u32 v21, 4, v15")
    a("v_cmp_eq_u32 vcc, 0, v1")
    for i in range(4):
        a.wait_vm(("k", i))
        d = KR+4*i; pv = KR+16+i
        if i == 0: a(f"v_cndmask_b32 v{pv}, v{pv}, v16, vcc")
        a(f"v_alignbit_b32 v24, v{d}, v{pv}, 16")
        for q in range(1, 4): a(f"v_alignbit_b32 v{24+q}, v{d+q}, v{d+q-1}, 16")
        o = 32 + 1024*i
        a(f"ds_write_b128 v15, v[{d}:{d+3}] offset:{o}")
        a(f"ds_write_b128 v15, v[24:27] offset:{o+CS}")
        a(f"v_add_u32 v22, {o+2*CS}, v21")
        a(f"v_add_u32 v23, {o+3*CS}, v21")
        a(f"ds_write2_b32 v22, v{d}, v{d+1} offset0:0 offset1:1")
        a(f"ds_write2_b32 v22, v{d+2}, v{d+3} offset0:2 offset1:3")
        a(f"ds_write2_b32 v23, v24, v25 offset0:0 offset1:1")
        a(f"ds_write2_b32 v23, v26, v27 offset0:2 offset1:3")
    a("v_lshlrev_b32 v18, 5, v12"); a("v_lshl_add_u32 v18, v13, 4, v18")
    a("s_add_u32 s27, s25, 32"); a("v_add_u32 v18, s27, v18")
    a("v_bfe_u32 v19, v1, 2, 2"); a(f"v_mul_u32_u24 v19, {CS}, v19")
    a("v_and_b32 v20, 3, v1"); a("v_lshl_add_u32 v19, v20, 3, v19")
    a("v_lshlrev_b32 v20, 4, v13"); a("v_sub_u32 v19, v19, v20")
    a("s_add_u32 s27, s26, 56"); a("v_add_u32 v19, s27, v19")
    a("v_lshlrev_b32 v20, 5, v12"); a("v_lshl_add_u32 v20, v13, 3, v20")
    a("s_add_u32 s27, s25, 512"); a("v_add_u32 v20, s27, v20")
    ACC = 24
    a.wait_all(vm=False)
    a("s_barrier")
    for r in range(32): a(f"v_mov_b32 v{ACC+r}, 0")
    BUF = [(64, 96), (128, 160)]
    def loads(r):
        Bb, Ab = BUF[r & 1]
        L = []
        for u in range(8):
            q = 8*u - r
            L.append(f"ds_read_b128 v[{Bb+4*u}:{Bb+4*u+3}], v18 offset:{64*(q+7)}")
        for aa in range(8):
            m = r + 8*aa
            L.append(f"ds_read_b64_tr_b16 v[{Ab+4*aa}:{Ab+4*aa+1}], v19 offset:{64*m+8}")
            L.append(f"ds_read_b64_tr_b16 v[{Ab+4*aa+2}:{Ab+4*aa+3}], v19 offset:{64*m}")
        return L
    for s in loads(0): a(s)
    for r in range(8):
        a.wait_all(vm=False)
        Bb, Ab = BUF[r & 1]
        nxt = loads(r+1) if r < 7 else [f"ds_read_b64 v[{216+2*jt}:{217+2*jt}], v20 offset:{512*jt}" for jt in range(8)]
        for aa in range(8):
            for jt in range(aa, 8):
                u = jt - aa
                a(f"v_mfma_f32_16x16x32_bf16 v[{ACC+4*jt}:{ACC+4*jt+3}], v[{Ab+4*aa}:{Ab+4*aa+3}], v[{Bb+4*u}:{Bb+4*u+3}], v[{ACC+4*jt}:{ACC+4*jt+3}]")
                if nxt: a(nxt.pop(0))
    a.wait_all()
    a(f"s_add_u32 s24, s23, {OFF_X1T}")
    for jt in range(8):
        for h in range(2):
            y0 = ACC+4*jt+2*h; y1 = y0+1
            rnd2(a, y0, y1, 64)
            unpack(a, 65, 66, 216+2*jt+h)
            a("v_mul_f32 v65, v65, v57"); a("v_mul_f32 v66, v66, v57")
            rnd2(a, 65, 66, 64)
            a(f"v_add_f32 v{y0}, v{y0}, v65"); a(f"v_add_f32 v{y1}, v{y1}, v66")
            rnd2(a, y0, y1, 64)
            a(f"v_mul_f32 v{y0}, v{y0}, v56"); a(f"v_mul_f32 v{y1}, v{y1}, v56")
            rnd2(a, y0, y1, 64)
            unpack(a, 65, 66, XR+2*jt+h)
            a(f"v_add_f32 v{y0}, v{y0}, v65"); a(f"v_add_f32 v{y1}, v{y1}, v66")
            a(f"v_cvt_pk_bf16_f32 v{XR+2*jt+h}, v{y0}, v{y1}")
        a(f"buffer_store_dwordx2 v[{XR+2*jt}:{XR+2*jt+1}], v14, s[8:11], s24 offen")
        if jt < 7: a(f"s_add_u32 s24, s24, {16*18432}")
    a("s_endpgm")
    a.label("K2_MODF"); a.hist = []; a.vm = []; a.lg = []
    a.wait_all()
    srd(a, 8, 6, WS_REC)
    a("v_lshlrev_b32 v1, 2, v0")
    for i in range(7):
        for ks in range(3):
            a(f"s_mov_b32 s20, {OFF_MODP + ks*3456*4 + 1728*4 + 1024*i}")
            a(f"buffer_load_dword v{10+3*i+ks}, v1, s[8:11], s20 offen")
    a.wait_all()
    for i in range(7):
        b = 10+3*i
        a(f"v_add_f32 v{b}, v{b}, v{b+1}"); a(f"v_add_f32 v{b}, v{b}, v{b+2}")
        rnd1(a, b)
        a(f"v_add_f32 v{b+1}, 1.0, v{b}")
        rnd1(a, b+1)
        a(f"v_add_u32 v2, {256*i}, v0")
        a("v_subrev_u32 v3, 576, v2")
        a("v_cmp_gt_u32 vcc, 576, v3")
        a(f"v_cndmask_b32 v{b}, v{b}, v{b+1}, vcc")
        a(f"s_mov_b32 s20, {OFF_MODF + 1024*i}")
        if i == 6:
            a("v_cmp_gt_u32 vcc, 1728, v2")
            a("s_and_saveexec_b64 s[22:23], vcc")
            a("s_cbranch_execz K2_END")
        a(f"buffer_store_dword v{b}, v1, s[8:11], s20 offen")
    a.label("K2_END")
    a("s_endpgm")
    return a.text(), dict(vgpr=232, sgpr=40, accum=232), f"grid=(145,1,1) block=(256,1,1) lds={HB0+4*HS}"

def k3():
    a = Asm()
    RED = 18432
    a("s_load_dwordx2 s[6:7], s[0:1], 136")
    a("s_cmp_ge_u32 s2, 128")
    a("s_cbranch_scc1 K3_END")
    a("v_and_b32 v1, 63, v0")
    a("v_lshrrev_b32 v2, 6, v0")
    a("v_readfirstlane_b32 s16, v2")
    a("v_lshlrev_b32 v3, 4, v1")
    a("v_and_b32 v4, 15, v1")
    a("v_lshrrev_b32 v5, 4, v1")
    a("s_mul_i32 s17, s16, 3072")
    a("s_mul_i32 s18, s2, 18432")
    a("s_add_u32 s18, s18, s17")
    a(f"s_add_u32 s18, s18, {OFF_X1T}")
    a.wait_all()
    srd(a, 8, 6, WS_REC)
    a("s_mov_b32 m0, s17")
    for i in range(3):
        a(f"buffer_load_dwordx4 v3, s[8:11], s18 offen offset:{1024*i} lds", tag="x")
    a("s_mul_i32 s19, s16, 384")
    a(f"s_add_u32 s19, s19, {OFF_MODF}")
    a("v_lshlrev_b32 v6, 5, v5")
    SB = 40; CB = 64
    for i in range(3):
        for h in range(2):
            a(f"buffer_load_dwordx4 v[{SB+8*i+4*h}:{SB+8*i+4*h+3}], v6, s[8:11], s19 offen offset:{128*i+16*h}", tag="m")
            a(f"buffer_load_dwordx4 v[{CB+8*i+4*h}:{CB+8*i+4*h+3}], v6, s[8:11], s19 offen offset:{2304+128*i+16*h}", tag="m")
    a("v_bfe_u32 v7, v1, 2, 2"); a("v_lshlrev_b32 v7, 5, v7")
    a("v_and_b32 v8, 3, v1"); a("v_lshl_add_u32 v7, v8, 3, v7")
    a("v_lshl_add_u32 v7, v5, 8, v7")
    a("v_add_u32 v7, s17, v7")
    a.wait_vm("x")
    X = 10
    for i in range(3):
        a(f"ds_read_b64_tr_b16 v[{X+4*i}:{X+4*i+1}], v7 offset:{1024*i}", tag=("t", i))
        a(f"ds_read_b64_tr_b16 v[{X+4*i+2}:{X+4*i+3}], v7 offset:{1024*i+128}", tag=("t", i))
    a("v_mul_u32_u24 v8, 1152, v4"); a("v_lshl_add_u32 v8, v5, 4, v8")
    a("s_mul_i32 s20, s2, 18432"); a("s_mul_i32 s21, s16, 192"); a("s_add_u32 s20, s20, s21")
    a(f"s_add_u32 s20, s20, {OFF_X1R}")
    F = 88
    for i in range(3):
        a.wait_lg(("t", i))
        a(f"buffer_store_dwordx4 v[{X+4*i}:{X+4*i+3}], v8, s[8:11], s20 offen offset:{64*i}")
        for q in range(4): unpack(a, F+8*i+2*q, F+8*i+2*q+1, X+4*i+q)
    def xreduce(r, off):
        a(f"v_mov_b32 v24, v{r}")
        a(f"v_permlane32_swap_b32 v24, v{r}")
        a(f"v_add_f32 v{r}, v{r}, v24")
        a(f"v_mov_b32 v24, v{r}")
        a(f"v_permlane16_swap_b32 v24, v{r}")
        a(f"v_add_f32 v{r}, v{r}, v24")
        a(f"ds_write_b32 v22, v{r} offset:{off}")
        a.wait_all(vm=False)
        a("s_barrier")
        a(f"ds_read_b128 v[24:27], v23 offset:{off}")
        a(f"ds_read_b64 v[28:29], v23 offset:{off+16}")
        a.wait_all(vm=False)
        a("v_add_f32 v24, v24, v25"); a("v_add_f32 v26, v26, v27"); a("v_add_f32 v28, v28, v29")
        a("v_add_f32 v24, v24, v26"); a(f"v_add_f32 v{r}, v24, v28")
    a("v_lshlrev_b32 v23, 5, v4")
    a("v_lshl_add_u32 v22, v2, 2, v23")
    a(f"v_add_f32 v30, v{F}, v{F+1}"); a(f"v_add_f32 v31, v{F+2}, v{F+3}")
    for i in range(4, 24, 2):
        a(f"v_add_f32 v30, v30, v{F+i}"); a(f"v_add_f32 v31, v31, v{F+i+1}")
    a("v_add_f32 v30, v30, v31")
    xreduce(30, RED)
    a(f"v_mul_f32 v30, {f32(1.0/576):#x}, v30")
    a("v_mov_b32 v31, 0"); a("v_mov_b32 v32, 0")
    for i in range(0, 24, 2):
        a(f"v_sub_f32 v33, v{F+i}, v30"); a(f"v_sub_f32 v34, v{F+i+1}, v30")
        a("v_fmac_f32 v31, v33, v33"); a("v_fmac_f32 v32, v34, v34")
    a("v_add_f32 v31, v31, v32")
    xreduce(31, RED + 512)
    a(f"v_mul_f32 v31, {f32(1.0/576):#x}, v31")
    rnd1(a, 31)
    a(f"v_add_f32 v31, {f32(1e-5):#x}, v31")
    rnd1(a, 31)
    a("v_sqrt_f32 v31, v31")
    rnd1(a, 31)
    a("v_rcp_f32 v32, v31")
    rnd1(a, 30)
    a("v_lshlrev_b32 v9, 9, v5"); a("v_lshl_add_u32 v9, v4, 4, v9")
    a("s_lshr_b32 s20, s2, 1"); a("s_mul_i32 s20, s20, 36864")
    a("s_and_b32 s21, s2, 1"); a("s_lshl_b32 s21, s21, 8"); a("s_add_u32 s20, s20, s21")
    a("s_mul_i32 s21, s16, 6144"); a("s_add_u32 s20, s20, s21")
    a(f"s_add_u32 s20, s20, {OFF_H2P}")
    a("s_add_u32 s21, s20, 4096")
    a.wait_vm("m")
    for i in range(3):
        for q in range(4):
            r0 = F+8*i+2*q; r1 = r0+1
            a(f"v_sub_f32 v{r0}, v{r0}, v30"); a(f"v_sub_f32 v{r1}, v{r1}, v30")
            rnd2(a, r0, r1, 33)
            a(f"v_mul_f32 v33, v{r0}, v32"); a(f"v_mul_f32 v34, v{r1}, v32")
            a(f"v_fma_f32 v{r0}, -v33, v31, v{r0}"); a(f"v_fma_f32 v{r1}, -v34, v31, v{r1}")
            a(f"v_fmac_f32 v33, v{r0}, v32"); a(f"v_fmac_f32 v34, v{r1}, v32")
            rnd2(a, 33, 34, 35)
            a(f"v_mul_f32 v33, v33, v{CB+8*i+2*q}"); a(f"v_mul_f32 v34, v34, v{CB+8*i+2*q+1}")
            rnd2(a, 33, 34, 35)
            a(f"v_add_f32 v33, v33, v{SB+8*i+2*q}"); a(f"v_add_f32 v34, v34, v{SB+8*i+2*q+1}")
            a(f"v_cvt_pk_bf16_f32 v{112+4*i+q}, v33, v34")
        o = 2048*i
        a(f"buffer_store_dwordx4 v[{112+4*i}:{112+4*i+3}], v9, s[8:11], s{20 + o//4096} offen offset:{o%4096}")
    a.label("K3_END")
    a("s_endpgm")
    return a.text(), dict(vgpr=124, sgpr=40, accum=124), f"grid=(128,1,1) block=(384,1,1) lds={RED+1024}"

def dma_voffsets(a, base, pitch):
    t0, t1 = base+9, base+10
    for i in range(9):
        a(f"v_add_u32 v{t0}, {64*i}, v1")
        a(f"v_mul_u32_u24 v{t1}, 3641, v{t0}")
        a(f"v_lshrrev_b32 v{t1}, 16, v{t1}")
        a(f"v_mul_u32_u24 v{base+i}, 18, v{t1}")
        a(f"v_sub_u32 v{t0}, v{t0}, v{base+i}")
        a(f"v_mul_u32_u24 v{base+i}, {pitch}, v{t1}")
        a(f"v_lshl_add_u32 v{base+i}, v{t0}, 4, v{base+i}")

def k4():
    a = Asm()
    SLOT = 37120; UPO = 18560; NSLOT = 4; PF = 8
    a("s_load_dwordx2 s[6:7], s[0:1], 136")
    a("s_load_dwordx4 s[12:15], s[0:1], 80")
    a("s_cmp_ge_u32 s2, 256")
    a("s_cbranch_scc1 K4_END")
    M = 224
    a(f"v_and_b32 v{M}, 63, v0")
    a(f"v_lshrrev_b32 v{M+1}, 6, v0")
    a(f"v_readfirstlane_b32 s16, v{M+1}")
    a(f"v_mov_b32 v1, v{M}")
    a("s_and_b32 s17, s2, 7"); a("s_lshr_b32 s18, s2, 3")
    a("s_and_b32 s19, s18, 3"); a("s_lshl_b32 s17, s17, 2"); a("s_add_u32 s17, s17, s19")
    a("s_lshr_b32 s18, s18, 2")
    DV = M+2
    dma_voffsets(a, DV, 9216)
    a.wait_all()
    srd(a, 8, 6, WS_REC)
    a("s_cmp_ge_u32 s16, 2")
    a("s_cselect_b32 s20, s14, s12"); a("s_cselect_b32 s21, s15, s13")
    srd(a, 24, 20, 576*9216)
    a("s_and_b32 s22, s16, 1"); a("s_lshr_b32 s23, s16, 1")
    a(f"s_mul_i32 s28, s22, {32*9216}"); a("s_mul_i32 s30, s17, 288"); a("s_add_u32 s28, s28, s30")
    a(f"s_mul_i32 s29, s23, {UPO}"); a("s_mul_i32 s30, s22, 9216"); a("s_add_u32 s29, s29, s30")
    VT = M+13
    a(f"v_lshlrev_b32 v{VT}, 4, v{M}")
    a("s_lshl_b32 s31, s18, 3"); a("s_lshl_b32 s30, s16, 1"); a("s_add_u32 s31, s31, s30")
    a("s_mul_i32 s31, s31, 36864"); a(f"s_add_u32 s31, s31, {OFF_H2P}")
    a("s_add_u32 s32, s31, 36864")
    AF = 64; BR = 100
    def dma(st, i):
        slot = st % NSLOT
        a(f"s_add_u32 m0, s29, {slot*SLOT + i*1024}")
        a(f"buffer_load_dwordx4 v{DV+i}, s[24:27], s{33 + (st % 2)} offen lds", tag=("d", st))
    def dma_soff(st):
        a(f"s_add_u32 s{33 + (st % 2)}, s28, {st*64*9216}")
    def tok(ks):
        rb = BR + 8 * (ks % PF)
        for b in range(2):
            a(f"s_add_u32 s35, s{31+b}, {ks*1024 & ~4095}")
            a(f"buffer_load_dwordx4 a[{rb+4*b}:{rb+4*b+3}], v{VT}, s[8:11], s35 offen offset:{ks*1024 & 4095}", tag=("t", ks))
    dma_soff(0)
    for i in range(9): dma(0, i)
    for ks in range(PF): tok(ks)
    for st in (1, 2):
        dma_soff(st)
        for i in range(9): dma(st, i)
    VA = M+14
    a(f"v_bfe_u32 v2, v{M}, 4, 1"); a(f"v_mul_u32_u24 v{VA}, {UPO}, v2")
    a(f"v_lshrrev_b32 v2, 5, v{M}"); a(f"v_bfe_u32 v3, v{M}, 2, 2"); a("v_lshl_add_u32 v2, v2, 3, v3")
    a("v_mul_u32_u24 v2, 288, v2"); a(f"v_add_u32 v{VA}, v{VA}, v2")
    a(f"v_and_b32 v2, 3, v{M}"); a(f"v_lshl_add_u32 v{VA}, v2, 3, v{VA}")
    a(f"v_add_u32 v{VA+1}, {2*SLOT}, v{VA}")
    VS = M+16
    a(f"v_bfe_u32 v2, v{M}, 4, 1"); a(f"v_mul_u32_u24 v{VS}, 147456, v2")
    a(f"v_lshrrev_b32 v2, 5, v{M}"); a(f"v_lshl_add_u32 v{VS}, v2, 8, v{VS}")
    a(f"v_and_b32 v2, 15, v{M}"); a(f"v_lshl_add_u32 v{VS}, v2, 4, v{VS}")
    def acc(t):
        return f"v[{16*t}:{16*t+15}]" if t < 14 else f"a[{16*(t-14)}:{16*(t-14)+15}]"
    for r in range(224): a(f"v_mov_b32 v{r}, 0")
    for r in range(64): a(f"v_accvgpr_write_b32 a{r}, 0")
    def trd(ks, aa):
        st, kk = divmod(ks, 4); slot = st % NSLOT
        off = (slot & 1)*SLOT + kk*4608 + aa*32
        va = VA + (slot >> 1)
        a(f"ds_read_b64_tr_b16 a[{AF+4*aa}:{AF+4*aa+1}], v{va} offset:{off}", tag=("a", ks, aa))
        a(f"ds_read_b64_tr_b16 a[{AF+4*aa+2}:{AF+4*aa+3}], v{va} offset:{off+1152}", tag=("a", ks, aa))
    a.wait_vm(("d", 0))
    a("s_barrier")
    for aa in range(9): trd(0, aa)
    pend = []
    for ks in range(36):
        st, kk = divmod(ks, 4)
        if kk == 3 and st < 8:
            a.wait_vm(("d", st+1))
            a("s_barrier")
            if st + 3 <= 8:
                pend = [("s", st+3)] + [(st+3, i) for i in range(9)]
        a.wait_vm(("t", ks))
        rb = BR + 8 * (ks % PF)
        for aa in range(9):
            a.wait_lg(("a", ks, aa))
            for b in range(2):
                t = 2*aa + b
                a(f"v_mfma_f32_32x32x16_bf16 {acc(t)}, a[{AF+4*aa}:{AF+4*aa+3}], a[{rb+4*b}:{rb+4*b+3}], {acc(t)}")
            if ks < 35: trd(ks+1, aa)
            if aa in (1, 4, 7) and pend:
                p = pend.pop(0)
                if p[0] == "s":
                    dma_soff(p[1]); p = pend.pop(0)
                dma(*p)
        if ks + PF < 36: tok(ks + PF)
    a("s_lshl_b32 s20, s18, 4"); a("s_lshl_b32 s21, s16, 2"); a("s_add_u32 s20, s20, s21")
    a("s_mul_i32 s20, s20, 147456"); a("s_mul_i32 s21, s17, 4608"); a("s_add_u32 s20, s20, s21")
    a(f"s_add_u32 s20, s20, {OFF_HM}")
    a("s_add_u32 s21, s20, 4096")
    a(f"s_add_u32 s22, s20, {2*147456}")
    a("s_add_u32 s23, s22, 4096")
    T = M+18
    for t in range(18):
        aa, b = divmod(t, 2)
        if t < 14:
            g = 16*t
        else:
            g = 0
            for r in range(16): a(f"v_accvgpr_read_b32 v{g+r}, a{16*(t-14)+r}")
        o = T + 4*(t % 3)
        for q in range(4):
            a(f"v_pk_mul_f32 v[{g+2*q}:{g+2*q+1}], v[{g+2*q}:{g+2*q+1}], v[{g+8+2*q}:{g+8+2*q+1}]")
        for q in range(4):
            a(f"v_cvt_pk_bf16_f32 v{o+q}, v{g+2*q}, v{g+2*q+1}")
        so = 20 + 2*b + (1 if aa == 8 else 0)
        a(f"buffer_store_dwordx4 v[{o}:{o+3}], v{VS}, s[8:11], s{so} offen offset:{(aa*512) % 4096}")
    a.label("K4_END")
    a("s_endpgm")
    return a.text(), dict(vgpr=256+BR+8*PF, sgpr=40, accum=256), f"grid=(256,1,1) block=(256,1,1) lds={NSLOT*SLOT}"

def k5():
    a = Asm()
    SLOT = 36864; NSLOT = 4; PF = 12
    a("s_load_dwordx2 s[6:7], s[0:1], 136")
    a("s_load_dwordx2 s[12:13], s[0:1], 96")
    a("s_cmp_ge_u32 s2, 256")
    a("s_cbranch_scc1 K5_END")
    M = 208
    a(f"v_and_b32 v{M}, 63, v0")
    a(f"v_lshrrev_b32 v{M+1}, 6, v0")
    a(f"v_readfirstlane_b32 s16, v{M+1}")
    a(f"v_mov_b32 v1, v{M}")
    a("s_and_b32 s17, s2, 7"); a("s_lshr_b32 s18, s2, 3")
    a("s_and_b32 s19, s18, 3")
    a("s_lshr_b32 s18, s18, 2"); a("s_and_b32 s20, s17, 1"); a("s_lshl_b32 s20, s20, 3"); a("s_add_u32 s18, s18, s20")
    a("s_lshr_b32 s17, s17, 1")
    DV = M+2
    dma_voffsets(a, DV, 1152)
    a.wait_all()
    srd(a, 8, 6, WS_REC)
    srd(a, 24, 12, 4608*1152)
    a(f"s_mul_i32 s28, s17, {1152*1152}"); a(f"s_mul_i32 s30, s16, {32*1152}"); a("s_add_u32 s28, s28, s30")
    a("s_mul_i32 s30, s19, 288"); a("s_add_u32 s28, s28, s30")
    a("s_mul_i32 s29, s16, 9216")
    VT = M+13
    a(f"v_lshlrev_b32 v{VT}, 4, v{M}")
    a("s_lshl_b32 s31, s18, 3"); a("s_lshl_b32 s30, s16, 1"); a("s_add_u32 s31, s31, s30")
    a("s_mul_i32 s31, s31, 147456"); a("s_mul_i32 s30, s17, 36864"); a("s_add_u32 s31, s31, s30")
    a(f"s_add_u32 s31, s31, {OFF_HM}")
    a("s_add_u32 s32, s31, 147456")
    AF = 72; BR = 108
    def dma(st, i):
        slot = st % NSLOT
        a(f"s_add_u32 m0, s29, {slot*SLOT + i*1024}")
        a(f"buffer_load_dwordx4 v{DV+i}, s[24:27], s{33 + (st % 2)} offen lds", tag=("d", st))
    def dma_soff(st):
        a(f"s_add_u32 s{33 + (st % 2)}, s28, {st*128*1152}")
    def tok(ks):
        rb = BR + 8 * (ks % PF)
        for b in range(2):
            a(f"s_add_u32 s35, s{31+b}, {ks*1024 & ~4095}")
            a(f"buffer_load_dwordx4 v[{rb+4*b}:{rb+4*b+3}], v{VT}, s[8:11], s35 offen offset:{ks*1024 & 4095}", tag=("t", ks))
    dma_soff(0)
    for i in range(9): dma(0, i)
    for ks in range(4): tok(ks)
    dma_soff(1)
    for i in range(9): dma(1, i)
    for ks in range(4, 8): tok(ks)
    dma_soff(2)
    for i in range(9): dma(2, i)
    for ks in range(8, PF): tok(ks)
    VA = M+14
    a(f"v_lshrrev_b32 v2, 5, v{M}"); a("v_lshlrev_b32 v2, 4, v2")
    a(f"v_bfe_u32 v3, v{M}, 4, 1"); a("v_lshl_add_u32 v2, v3, 2, v2")
    a(f"v_bfe_u32 v3, v{M}, 2, 2"); a("v_add_u32 v2, v2, v3")
    a(f"v_mul_u32_u24 v{VA}, 288, v2")
    a(f"v_and_b32 v2, 3, v{M}"); a(f"v_lshl_add_u32 v{VA}, v2, 3, v{VA}")
    a(f"v_add_u32 v{VA+1}, {SLOT}, v{VA}")
    a(f"v_add_u32 v{VA+2}, {2*SLOT}, v{VA}")
    a(f"v_add_u32 v{VA+3}, {3*SLOT}, v{VA}")
    VS = M+18
    a(f"v_and_b32 v2, 15, v{M}"); a(f"v_mul_u32_u24 v{VS}, 2304, v2")
    a(f"v_lshrrev_b32 v2, 4, v{M}"); a(f"v_lshl_add_u32 v{VS}, v2, 4, v{VS}")
    for r in range(72): a(f"v_mov_b32 v{r}, 0")
    def trd(ks, aa):
        st, kk = divmod(ks, 4); slot = st % NSLOT
        off = kk*9216 + aa*32
        a(f"ds_read_b64_tr_b16 v[{AF+4*aa}:{AF+4*aa+1}], v{VA+slot} offset:{off}", tag=("a", ks, aa))
        a(f"ds_read_b64_tr_b16 v[{AF+4*aa+2}:{AF+4*aa+3}], v{VA+slot} offset:{off+8*288}", tag=("a", ks, aa))
    a.wait_vm(("d", 0))
    a("s_barrier")
    for aa in range(9): trd(0, aa)
    pend = []
    for ks in range(36):
        st, kk = divmod(ks, 4)
        if kk == 3 and st < 8:
            a.wait_vm(("d", st+1))
            a("s_barrier")
            if st + 3 <= 8:
                pend = [("s", st+3)] + [(st+3, i) for i in range(9)]
        a.wait_vm(("t", ks))
        rb = BR + 8 * (ks % PF)
        for aa in range(9):
            a.wait_lg(("a", ks, aa))
            for b in range(2):
                t = 2*aa + b
                a(f"v_mfma_f32_16x16x32_bf16 v[{4*t}:{4*t+3}], v[{AF+4*aa}:{AF+4*aa+3}], v[{rb+4*b}:{rb+4*b+3}], v[{4*t}:{4*t+3}]")
            if ks < 35: trd(ks+1, aa)
            if aa in (1, 4, 7) and pend:
                p = pend.pop(0)
                if p[0] == "s":
                    dma_soff(p[1]); p = pend.pop(0)
                dma(*p)
        if ks + PF < 36: tok(ks + PF)
    a("s_lshl_b32 s20, s17, 11"); a("s_lshl_b32 s21, s18, 7"); a("s_add_u32 s20, s20, s21")
    a("s_lshl_b32 s21, s16, 5"); a("s_add_u32 s20, s20, s21")
    a("s_mul_i32 s20, s20, 2304"); a("s_mul_i32 s21, s19, 576"); a("s_add_u32 s20, s20, s21")
    a(f"s_add_u32 s20, s20, {OFF_PART}")
    a(f"s_add_u32 s21, s20, {16*2304}")
    for t in range(18):
        aa, b = divmod(t, 2)
        a(f"buffer_store_dwordx4 v[{4*t}:{4*t+3}], v{VS}, s[8:11], s{20+b} offen offset:{64*aa}")
    a.label("K5_END")
    a("s_endpgm")
    return a.text(), dict(vgpr=228, sgpr=40, accum=228), f"grid=(256,1,1) block=(256,1,1) lds={NSLOT*SLOT}"

def k6():
    a = Asm()
    a("s_load_dwordx2 s[6:7], s[0:1], 136")
    a("s_load_dwordx2 s[4:5], s[0:1], 120")
    a("s_cmp_ge_u32 s2, 576")
    a("s_cbranch_scc1 K6_END")
    a("s_lshl_b32 s3, s2, 8"); a("v_add_u32 v1, s3, v0")
    a("v_lshlrev_b32 v2, 5, v1")
    a("v_lshlrev_b32 v3, 4, v1")
    a("s_mov_b32 s12, 0x38e38e4")
    a("v_mul_hi_u32 v4, s12, v1"); a("v_mul_u32_u24 v4, 72, v4"); a("v_sub_u32 v4, v1, v4")
    a("v_lshlrev_b32 v4, 5, v4")
    a.wait_all()
    srd(a, 8, 6, WS_REC)
    srd(a, 12, 4, 2048*1152)
    for s in range(4):
        a(f"s_mov_b32 s16, {OFF_PART + s*2048*2304}")
        a(f"buffer_load_dwordx4 v[{8+8*s}:{11+8*s}], v2, s[8:11], s16 offen")
        a(f"buffer_load_dwordx4 v[{12+8*s}:{15+8*s}], v2, s[8:11], s16 offen offset:16")
    a(f"s_mov_b32 s16, {OFF_X1R}")
    a("buffer_load_dwordx4 v[40:43], v3, s[8:11], s16 offen")
    a(f"s_mov_b32 s16, {OFF_MODF + 4608}")
    a("buffer_load_dwordx4 v[44:47], v4, s[8:11], s16 offen")
    a("buffer_load_dwordx4 v[48:51], v4, s[8:11], s16 offen offset:16")
    a.wait_all()
    for e in range(8):
        a(f"v_add_f32 v{8+e}, v{8+e}, v{16+e}")
        a(f"v_add_f32 v{24+e}, v{24+e}, v{32+e}")
    for e in range(8):
        a(f"v_add_f32 v{8+e}, v{8+e}, v{24+e}")
    for e in range(0, 8, 2):
        rnd2(a, 8+e, 9+e, 5)
        a(f"v_mul_f32 v{8+e}, v{8+e}, v{44+e}"); a(f"v_mul_f32 v{9+e}, v{9+e}, v{45+e}")
        rnd2(a, 8+e, 9+e, 5)
        unpack(a, 5, 6, 40+e//2)
        a(f"v_add_f32 v{8+e}, v{8+e}, v5"); a(f"v_add_f32 v{9+e}, v{9+e}, v6")
        a(f"v_cvt_pk_bf16_f32 v{52+e//2}, v{8+e}, v{9+e}")
    a("buffer_store_dwordx4 v[52:55], v3, s[12:15], 0 offen")
    a.label("K6_END")
    a("s_endpgm")
    return a.text(), dict(vgpr=56, sgpr=40, accum=56), "grid=(576,1,1) block=(256,1,1) lds=0"

HEADER = open("adaLN_cond__ssm_conv_s4__glu_gated_bilinear__prompt.s.ref").read().split("; Override launch")[0]

def build(kernels, path):
    out = HEADER
    bodies = []
    for name, fn in kernels:
        text, res, launch = fn()
        out += f"; @launch kernel={name} {launch}\n"
        bodies.append((name, text, res))
    out += '.amdgcn_target "amdgcn-amd-amdhsa--gfx950"\n.text\n'
    seen = set()
    for name, text, res in bodies:
        if name in seen: continue
        seen.add(name)
        out += kernel_header(name) + text
    out += '.section .rodata,"a"\n'
    seen = set()
    for name, text, res in bodies:
        if name in seen: continue
        seen.add(name)
        out += kernel_desc(name, res["vgpr"], res["sgpr"], res["accum"])
    open(path, "w").write(out)

if __name__ == "__main__":
    path = sys.argv[1] if len(sys.argv) > 1 else "adaLN_cond__ssm_conv_s4__glu_gated_bilinear__prompt.s"
    build([("prep_kernel", k1), ("conv_kernel", k2), ("ln2_kernel", k3), ("gemm1_kernel", k4), ("gemm2_kernel", k5), ("fin_kernel", k6)], path)
```

```python
import sys
from asmlib import *

OFF_NT   = 0x000000
OFF_XT   = 0x240000
OFF_KC   = 0x480000
OFF_X1T  = 0x6C0000
OFF_H2P  = 0x900000
OFF_X1R  = 0xB40000
OFF_MODP = 0xD80000
OFF_MODF = 0xD90000
OFF_FLG  = 0xDA0000
OFF_HM   = 0xE00000
OFF_PART = 0x2000000
WS_REC   = 0x8000000
LOG2E = 0x3fb8aa3b
INV2PI = 0x3e22f983
def f32(x):
    import struct
    return struct.unpack("<I", struct.pack("<f", x))[0]

OFF_STAMP = 0x3800000
STAMP = False
G16 = True
EXP = None
def stamp(a, i):
    if not STAMP: return
    if i == 0:
        a("v_lshrrev_b32 v1, 6, v0"); a("v_readfirstlane_b32 s99, v1")
    a(f"s_memtime s[{64+4*i}:{65+4*i}]")
    a(f"s_memrealtime s[{66+4*i}:{67+4*i}]")
    a("s_waitcnt lgkmcnt(0)"); a.lg = []
def stamp_n(a, i):
    if EXP != "stages": stamp(a, i)
def stamp_store(a, n, kid, tidreg="v0"):
    if not STAMP: return
    a(f"s_lshl_b32 s100, s2, 11")
    a(f"s_lshl_b32 s101, s99, 7")
    a(f"s_add_u32 s100, s100, s101")
    a(f"s_add_u32 s100, s100, {OFF_STAMP + kid*0x200000}")
    a("s_mov_b64 exec, 1")
    a("v_mov_b32 v1, 0")
    for i in range(n):
        for q in range(4):
            a(f"v_mov_b32 v{4+q}, s{64+4*i+q}")
        a(f"buffer_store_dwordx4 v[4:7], v1, s[8:11], s100 offen offset:{16*i}")
        a("s_waitcnt vmcnt(0)")

def srd(a, d, lo, nrec):
    a(f"s_mov_b32 s{d}, s{lo}")
    a(f"s_and_b32 s{d+1}, s{lo+1}, 0xffff")
    a(f"s_mov_b32 s{d+2}, {nrec:#x}")
    a(f"s_mov_b32 s{d+3}, 0x00020000")

def unpack(a, dlo, dhi, src):
    a(f"v_lshlrev_b32 v{dlo}, 16, v{src}")
    a(f"v_and_b32 v{dhi}, 0xffff0000, v{src}")

def rnd1(a, r):
    a(f"v_cvt_pk_bf16_f32 v{r}, v{r}, v{r}")
    a(f"v_and_b32 v{r}, 0xffff0000, v{r}")

def rnd2(a, r0, r1, tmp):
    a(f"v_cvt_pk_bf16_f32 v{tmp}, v{r0}, v{r1}")
    unpack(a, r0, r1, tmp)

def row16_sum(a, r):
    for s in (8, 4, 2, 1):
        a(f"v_add_f32_dpp v{r}, v{r}, v{r} row_ror:{s} row_mask:0xf bank_mask:0xf")

N_LN1, N_MOD, N_KG = 128, 162, 576
def k1():
    a = Asm()
    stamp(a, 0)
    a("s_load_dwordx2 s[6:7], s[0:1], 136")
    a(f"s_cmp_ge_u32 s2, {N_LN1+N_MOD}")
    a("s_cbranch_scc1 K1_KGEN")
    a(f"s_cmp_ge_u32 s2, {N_LN1}")
    a("s_cbranch_scc1 K1_MOD")
    PITCH = 1216; LN_N = 0; LN_X = 16 * PITCH
    a("s_load_dwordx2 s[4:5], s[0:1], 0")
    a("v_lshrrev_b32 v1, 4, v0")
    a("v_and_b32 v2, 15, v0")
    a("v_mul_u32_u24 v3, 1152, v1")
    a("v_lshl_add_u32 v3, v2, 3, v3")
    a("s_mul_i32 s3, s2, 18432")
    a.wait_all()
    srd(a, 12, 4, 2048*1152)
    srd(a, 8, 6, WS_REC)
    X = 10
    for k in range(9):
        a(f"buffer_load_dwordx2 v[{X+2*k}:{X+2*k+1}], v3, s[12:15], s3 offen offset:{128*k}", tag=("x", k))
    a(f"v_mul_u32_u24 v4, {PITCH}, v1")
    a("v_lshl_add_u32 v4, v2, 3, v4")
    F = 28
    for k in range(9):
        a.wait_vm(("x", k))
        for h in range(2):
            unpack(a, F+4*k+2*h, F+4*k+2*h+1, X+2*k+h)
        a(f"ds_write_b64 v4, v[{X+2*k}:{X+2*k+1}] offset:{LN_X+128*k}")
    stamp(a, 1)
    a(f"v_add_f32 v5, v{F}, v{F+1}")
    a(f"v_add_f32 v6, v{F+2}, v{F+3}")
    for i in range(4, 36, 2):
        a(f"v_add_f32 v5, v5, v{F+i}")
        a(f"v_add_f32 v6, v6, v{F+i+1}")
    a("v_add_f32 v5, v5, v6")
    row16_sum(a, 5)
    a(f"v_mul_f32 v5, {f32(1.0/576):#x}, v5")
    a("v_mov_b32 v6, 0"); a("v_mov_b32 v7, 0")
    for i in range(0, 36, 2):
        a(f"v_sub_f32 v8, v{F+i}, v5"); a(f"v_sub_f32 v9, v{F+i+1}, v5")
        a("v_fmac_f32 v6, v8, v8"); a("v_fmac_f32 v7, v9, v9")
    a("v_add_f32 v6, v6, v7")
    row16_sum(a, 6)
    a(f"v_mul_f32 v6, {f32(1.0/576):#x}, v6")
    rnd1(a, 6)
    a(f"v_add_f32 v6, {f32(1e-5):#x}, v6")
    rnd1(a, 6)
    a("v_sqrt_f32 v6, v6")
    rnd1(a, 6)
    a("v_rcp_f32 v7, v6")
    rnd1(a, 5)
    for k in range(9):
        for h in range(2):
            r0 = F+4*k+2*h; r1 = r0+1
            a(f"v_sub_f32 v{r0}, v{r0}, v5"); a(f"v_sub_f32 v{r1}, v{r1}, v5")
            rnd2(a, r0, r1, 8)
            a(f"v_mul_f32 v8, v{r0}, v7"); a(f"v_mul_f32 v9, v{r1}, v7")
            a(f"v_fma_f32 v{r0}, -v8, v6, v{r0}"); a(f"v_fma_f32 v{r1}, -v9, v6, v{r1}")
            a(f"v_fmac_f32 v8, v{r0}, v7"); a(f"v_fmac_f32 v9, v{r1}, v7")
            a(f"v_cvt_pk_bf16_f32 v{X+2*k+h}, v8, v9")
        a(f"ds_write_b64 v4, v[{X+2*k}:{X+2*k+1}] offset:{LN_N+128*k}")
    a("v_and_b32 v1, 63, v0")
    a("v_lshrrev_b32 v2, 6, v0")
    a("v_readfirstlane_b32 s16, v2")
    a("v_lshrrev_b32 v3, 4, v1")
    a("v_and_b32 v5, 1, v3")
    a("v_lshrrev_b32 v6, 1, v3")
    a("v_bfe_u32 v7, v1, 2, 2")
    a("v_and_b32 v8, 3, v1")
    a("v_lshl_add_u32 v7, v6, 3, v7")
    a(f"v_mul_u32_u24 v7, {PITCH}, v7")
    a("v_lshl_add_u32 v7, v5, 5, v7")
    a("v_lshl_add_u32 v7, v8, 3, v7")
    a("s_lshr_b32 s17, s16, 1")
    a("s_and_b32 s18, s16, 1")
    a(f"s_mul_i32 s19, s17, {LN_X}")
    a("s_mul_i32 s20, s18, 576")
    a("s_add_u32 s19, s19, s20")
    a("v_add_u32 v7, s19, v7")
    a("v_and_b32 v9, 15, v1")
    a("v_lshl_add_u32 v9, v5, 4, v9")
    a("v_lshlrev_b32 v9, 5, v9")
    a("v_lshl_add_u32 v9, v6, 4, v9")
    a(f"s_mul_i32 s21, s17, {OFF_XT - OFF_NT}")
    a("s_add_u32 s21, s21, s3")
    a("s_mul_i32 s22, s18, 9216")
    a("s_add_u32 s21, s21, s22")
    if OFF_NT: a(f"s_add_u32 s21, s21, {OFF_NT}")
    a("s_add_u32 s22, s21, 4096")
    a("s_add_u32 s23, s21, 8192")
    a.wait_all(vm=False)
    a("s_barrier")
    stamp(a, 2)
    for i in range(9):
        a(f"ds_read_b64_tr_b16 v[{F+4*i}:{F+4*i+1}], v7 offset:{64*i}", tag=("t", i))
        a(f"ds_read_b64_tr_b16 v[{F+4*i+2}:{F+4*i+3}], v7 offset:{64*i+4*PITCH}", tag=("t", i))
    for i in range(9):
        a.wait_lg(("t", i))
        a(f"buffer_store_dwordx4 v[{F+4*i}:{F+4*i+3}], v9, s[8:11], s{21+i//4} offen offset:{1024*(i%4)}")
    if STAMP:
        a.wait_all(); stamp(a, 3); stamp_store(a, 4, 1)
    a("s_endpgm")
    a.label("K1_MOD"); a.hist = []; a.vm = []; a.lg = []
    a("s_load_dwordx2 s[4:5], s[0:1], 112")
    a("s_load_dwordx2 s[16:17], s[0:1], 104")
    a(f"s_sub_u32 s3, s2, {N_LN1}")
    a("s_mov_b32 s20, 0")
    a("s_cmp_ge_u32 s3, 54"); a("s_cselect_b32 s20, 1, s20")
    a("s_cmp_ge_u32 s3, 108"); a("s_cselect_b32 s20, 2, s20")
    a("s_mul_i32 s21, s20, 54"); a("s_sub_u32 s21, s3, s21")
    a("v_lshrrev_b32 v1, 3, v0")
    a("v_and_b32 v2, 7, v0")
    a("v_mul_u32_u24 v3, 6912, v1")
    a("v_lshl_add_u32 v3, v2, 4, v3")
    a("v_lshlrev_b32 v4, 1, v1")
    a(f"s_mul_i32 s22, s20, {192*6912}")
    a("s_lshl_b32 s23, s21, 7")
    a("s_add_u32 s22, s22, s23")
    a("s_mul_i32 s23, s20, 384")
    a.wait_all()
    srd(a, 12, 4, 576*6912)
    srd(a, 24, 16, 1152)
    srd(a, 8, 6, WS_REC)
    for i in range(6):
        a(f"buffer_load_ushort v{10+i}, v4, s[24:27], s23 offen offset:{64*i}", tag="c")
    for i in range(6):
        a(f"buffer_load_dwordx4 v[{16+4*i}:{19+4*i}], v3, s[12:15], s22 offen", tag=("w", i))
        if i < 5: a(f"s_add_u32 s22, s22, {32*6912}")
    for j in range(8): a(f"v_mov_b32 v{40+j}, 0")
    a.wait_vm("c")
    for i in range(6):
        r = 10+i
        a(f"v_lshlrev_b32 v{r}, 16, v{r}")
        a(f"v_mul_f32 v5, {(LOG2E|0x80000000):#x}, v{r}")
        a("v_exp_f32 v5, v5")
        a("v_add_f32 v5, 1.0, v5")
        a("v_rcp_f32 v5, v5")
        a(f"v_mul_f32 v{r}, v{r}, v5")
        rnd1(a, r)
    for i in range(6):
        a.wait_vm(("w", i))
        for q in range(4):
            unpack(a, 5, 6, 16+4*i+q)
            a(f"v_fmac_f32 v{40+2*q}, v{10+i}, v5")
            a(f"v_fmac_f32 v{41+2*q}, v{10+i}, v6")
    stamp(a, 1)
    a("v_lshlrev_b32 v5, 8, v1")
    a("v_lshl_add_u32 v5, v2, 5, v5")
    a("ds_write_b128 v5, v[40:43]")
    a("ds_write_b128 v5, v[44:47] offset:16")
    a("v_lshlrev_b32 v6, 2, v0")
    a("v_lshrrev_b32 v7, 6, v0")
    a("v_readfirstlane_b32 s16, v7")
    a.wait_all(vm=False)
    a("s_barrier")
    stamp(a, 2)
    a("s_cmp_lg_u32 s16, 0")
    a("s_cbranch_scc1 K1_END")
    for i in range(32):
        a(f"ds_read_b32 v{10+i}, v6 offset:{256*i}", tag=("r", i))
    a.wait_all(vm=False)
    for st in (16, 8, 4, 2, 1):
        for i in range(st):
            a(f"v_add_f32 v{10+i}, v{10+i}, v{10+i+st}")
    a(f"s_mul_i32 s22, s20, {3456*4}")
    a("s_lshl_b32 s23, s21, 8")
    a("s_add_u32 s22, s22, s23")
    a(f"s_add_u32 s22, s22, {OFF_MODP}")
    a("buffer_store_dword v10, v6, s[8:11], s22 offen")
    if STAMP:
        a.wait_all(); stamp(a, 3); stamp_store(a, 4, 1)
    a("s_endpgm")
    a.label("K1_KGEN"); a.hist = []; a.vm = []; a.lg = []
    a(f"s_cmp_ge_u32 s2, {N_LN1+N_MOD+N_KG}")
    a("s_cbranch_scc1 K1_END")
    a("s_load_dwordx8 s[16:23], s[0:1], 8")
    a("s_load_dwordx4 s[24:27], s[0:1], 40")
    a("s_load_dwordx2 s[28:29], s[0:1], 56")
    a(f"s_sub_u32 s3, s2, {N_LN1+N_MOD}")
    a("v_and_b32 v1, 63, v0")
    a("v_lshrrev_b32 v2, 6, v0")
    a("v_lshrrev_b32 v3, 4, v1")
    a("v_and_b32 v4, 15, v0")
    a("v_lshrrev_b32 v5, 4, v0")
    a("v_lshlrev_b32 v5, 4, v5")
    a("s_lshl_b32 s4, s3, 8")
    a("v_add_u32 v5, s4, v5")
    a("s_lshl_b32 s5, s3, 1")
    a("v_mov_b32 v6, s5")
    a.wait_all()
    P = 64
    a("global_load_ushort v7, v6, s[28:29]", tag="dt")
    for q in range(6):
        a(f"global_load_dwordx4 v[{P+4*q}:{P+4*q+3}], v5, s[{16+2*q}:{17+2*q}]", tag="p")
    srd(a, 8, 6, WS_REC)
    a("v_and_b32 v12, 7, v4")
    a("v_lshrrev_b32 v13, 3, v4")
    a("v_lshl_add_u32 v8, v13, 7, v12")
    a("v_lshrrev_b32 v12, 2, v4"); a("v_lshlrev_b32 v12, 7, v12")
    a("v_and_b32 v13, 3, v4"); a("v_lshl_add_u32 v12, v13, 1, v12")
    a("v_add_u32 v12, 256, v12")
    a("v_subrev_u32 v13, 8, v4"); a("v_lshrrev_b32 v13, 1, v13"); a("v_lshlrev_b32 v13, 7, v13")
    a("v_and_b32 v14, 1, v4"); a("v_lshl_add_u32 v13, v14, 2, v13")
    a("v_add_u32 v13, 512, v13")
    a("v_cmp_gt_u32 vcc, 8, v4")
    a("v_cndmask_b32 v9, v13, v12, vcc")
    a("v_lshlrev_b32 v12, 7, v4"); a("v_add_u32 v12, 1024, v12")
    a("v_mov_b32 v13, 2048")
    a("v_cndmask_b32 v10, v13, v12, vcc")
    a("v_lshlrev_b32 v11, 3, v4")
    HT = 12288; T16 = 12544
    a("v_lshlrev_b32 v12, 2, v4")
    for T in range(3):
        a(f"ds_write_b32 v12, v{8+T} offset:{HT+64*T}")
    for T in range(4):
        a(f"v_cvt_f32_u32 v{8+T}, v{8+T}")
    for r in range(12): a(f"v_mov_b32 v{16+r}, 0")
    a.wait_vm("dt")
    a("v_lshlrev_b32 v7, 16, v7")
    a(f"v_mul_f32 v7, {LOG2E:#x}, v7")
    a("v_exp_f32 v7, v7")
    rnd1(a, 7)
    a(f"s_mov_b32 s30, {LOG2E:#x}")
    a(f"s_mov_b32 s31, {INV2PI:#x}")
    a.wait_vm("p")
    stamp(a, 1)
    for s in range(8):
        pr = 28
        for q in range(6):
            src = P+4*q+(s >> 1)
            if s & 1: a(f"v_and_b32 v{pr+q}, 0xffff0000, v{src}")
            else:     a(f"v_lshlrev_b32 v{pr+q}, 16, v{src}")
        for q in range(4): a(f"v_mul_f32 v{pr+q}, v7, v{pr+q}")
        a(f"v_mul_f32 v{pr}, s30, v{pr}")
        a(f"v_mul_f32 v{pr+1}, s31, v{pr+1}")
        a(f"v_mul_f32 v34, v{pr+4}, v{pr+2}")
        a(f"v_mul_f32 v35, v{pr+4}, v{pr+3}")
        a(f"v_fma_f32 v34, -v{pr+5}, v{pr+3}, v34")
        a(f"v_fmac_f32 v35, v{pr+5}, v{pr+2}")
        E = 36 + 12 * (s & 1)
        for T in range(4):
            a(f"v_mul_f32 v{E+3*T}, v{pr}, v{8+T}")
            a(f"v_mul_f32 v{E+3*T+1}, v{pr+1}, v{8+T}")
        for T in range(4):
            a(f"v_exp_f32 v{E+3*T}, v{E+3*T}")
            a(f"v_fract_f32 v{E+3*T+1}, v{E+3*T+1}")
        for T in range(4):
            a(f"v_cos_f32 v{E+3*T+2}, v{E+3*T+1}")
            a(f"v_sin_f32 v{E+3*T+1}, v{E+3*T+1}")
        for T in range(4):
            a(f"v_mul_f32 v{E+3*T+1}, v{E+3*T}, v{E+3*T+1}")
            a(f"v_mul_f32 v{E+3*T}, v{E+3*T}, v{E+3*T+2}")
        Er = 60 + 2 * (s & 1)
        a(f"v_mul_f32 v{Er}, v34, v{E+9}")
        a(f"v_mul_f32 v{Er+1}, v34, v{E+10}")
        a(f"v_fma_f32 v{Er}, -v35, v{E+10}, v{Er}")
        a(f"v_fma_f32 v{Er+1}, -v35, v{E+9}, -v{Er+1}")
        for T in range(3):
            a(f"v_mfma_f32_16x16x4_f32 v[{16+4*T}:{19+4*T}], v{E+3*T}, v{Er}, v[{16+4*T}:{19+4*T}]")
        for T in range(3):
            a(f"v_mfma_f32_16x16x4_f32 v[{16+4*T}:{19+4*T}], v{E+3*T+1}, v{Er+1}, v[{16+4*T}:{19+4*T}]")
    stamp(a, 2)
    a("v_mul_u32_u24 v12, 3072, v2")
    a("v_lshl_add_u32 v12, v1, 4, v12")
    for T in range(3):
        a(f"ds_write_b128 v12, v[{16+4*T}:{19+4*T}] offset:{1024*T}")
    a("v_readfirstlane_b32 s16, v2")
    a("v_lshlrev_b32 v13, 4, v0")
    a("v_lshlrev_b32 v14, 6, v2")
    a("v_lshl_add_u32 v14, v3, 4, v14")
    a.wait_all(vm=False)
    a("s_barrier")
    a("s_cmp_eq_u32 s16, 3")
    a("s_cbranch_scc1 K1_KG_C")
    for w in range(4):
        a(f"ds_read_b128 v[{16+4*w}:{19+4*w}], v13 offset:{3072*w}")
    a(f"ds_read_b128 v[32:35], v14 offset:{HT}")
    a.wait_all(vm=False)
    for r in range(4):
        a(f"v_add_f32 v{16+r}, v{16+r}, v{20+r}")
        a(f"v_add_f32 v{24+r}, v{24+r}, v{28+r}")
        a(f"v_lshl_add_u32 v{32+r}, v4, 3, v{32+r}")
    for r in range(4):
        a(f"v_add_f32 v{16+r}, v{16+r}, v{24+r}")
        a(f"v_lshlrev_b32 v{32+r}, 1, v{32+r}")
    for r in range(4):
        a(f"v_cvt_pk_bf16_f32 v{16+r}, v{16+r}, v{16+r}")
    for r in range(4):
        a(f"ds_write_b16 v{32+r}, v{16+r} offset:{T16}")
    a.label("K1_KG_C"); a.fence(4)
    a("v_lshlrev_b32 v12, 3, v0")
    for e in range(8):
        a(f"v_add_u32 v{16+e}, {e}, v12")
        a(f"v_cvt_f32_u32 v{16+e}, v{16+e}")
    for e in range(0, 8, 2):
        rnd2(a, 16+e, 17+e, 13)
    for e in range(8):
        a(f"v_cvt_u32_f32 v{16+e}, v{16+e}")
        a(f"v_lshlrev_b32 v{16+e}, 1, v{16+e}")
    a("v_lshlrev_b32 v12, 4, v0")
    a("s_lshl_b32 s4, s3, 12")
    a(f"s_add_u32 s4, s4, {OFF_KC}")
    a.wait_all(vm=False)
    a("s_barrier")
    for e in range(8):
        a(f"ds_read_u16 v{24+e}, v{16+e} offset:{T16}")
    a.wait_all(vm=False)
    for e in range(4):
        a(f"v_lshl_or_b32 v{32+e}, v{25+2*e}, 16, v{24+2*e}")
    a("buffer_store_dwordx4 v[32:35], v12, s[8:11], s4 offen")
    if STAMP:
        a.wait_all(); stamp(a, 3); stamp_store(a, 4, 1)
    a.label("K1_END")
    a("s_endpgm")
    return a.text(), dict(vgpr=88, sgpr=40, accum=88), f"grid=({N_LN1+N_MOD+N_KG},1,1) block=(256,1,1) lds=38912"

def k2():
    a = Asm()
    CS = 4160; KB = 4 * CS; HB0 = 4 * KB; HS = 4640
    a("s_load_dwordx2 s[6:7], s[0:1], 136")
    a("s_load_dwordx2 s[4:5], s[0:1], 64")
    a("s_cmp_gt_u32 s2, 144")
    a("s_cbranch_scc1 K2_WARM")
    a("s_cmp_eq_u32 s2, 144")
    a("s_cbranch_scc1 K2_MODF")
    stamp(a, 0)
    a("v_and_b32 v1, 63, v0")
    a("v_lshrrev_b32 v2, 6, v0")
    a("v_readfirstlane_b32 s16, v2")
    a("v_and_b32 v3, 7, v1")
    a("v_lshrrev_b32 v4, 3, v1")
    a("v_lshrrev_b32 v5, 1, v3")
    a("s_lshl_b32 s17, s2, 2")
    a("s_add_u32 s18, s17, s16")
    a.wait_all()
    srd(a, 8, 6, WS_REC)
    a("v_mul_u32_u24 v6, 18432, v4")
    a("v_lshl_add_u32 v6, v3, 4, v6")
    a(f"s_mul_i32 s19, s16, {32*18432}")
    a("s_lshl_b32 s20, s17, 5")
    a("s_add_u32 s19, s19, s20")
    if OFF_NT: a(f"s_add_u32 s19, s19, {OFF_NT}")
    NR = 64
    for i in range(4):
        a(f"buffer_load_dwordx4 v[{NR+4*i}:{NR+4*i+3}], v6, s[8:11], s19 offen", tag=("n", i))
        if i < 3: a(f"s_add_u32 s19, s19, {8*18432}")
    a("v_add_u32 v7, s17, v5"); a("v_lshlrev_b32 v7, 2, v7")
    a("s_lshl_b32 s20, s18, 2"); a("v_mov_b32 v8, s20")
    a(f"s_mov_b32 s21, {OFF_MODP}")
    for ks in range(3):
        a(f"buffer_load_dword v{80+ks}, v7, s[8:11], s21 offen", tag="m")
        a(f"buffer_load_dword v{83+ks}, v7, s[8:11], s21 offen offset:2304", tag="m")
        a(f"s_add_u32 s22, s21, 4608")
        a(f"buffer_load_dword v{86+ks}, v8, s[8:11], s22 offen", tag="m")
        if ks < 2: a(f"s_add_u32 s21, s21, {3456*4}")
    a("s_lshl_b32 s20, s18, 1"); a("v_mov_b32 v9, s20")
    a("global_load_ushort v89, v9, s[4:5]", tag="m")
    a("v_lshlrev_b32 v10, 4, v1")
    a("v_subrev_u32 v11, 4, v10")
    a("s_lshl_b32 s21, s18, 12")
    a(f"s_add_u32 s21, s21, {OFF_KC}")
    a("s_sub_u32 s22, s21, 4")
    KR = 96
    for i in range(4):
        a(f"buffer_load_dwordx4 v[{KR+4*i}:{KR+4*i+3}], v10, s[8:11], s21 offen offset:{1024*i}", tag=("k", i))
        a(f"buffer_load_dword v{KR+16+i}, v10, s[8:11], s22 offen offset:{1024*i}", tag=("k", i))
    a("v_and_b32 v12, 15, v1")
    a("v_lshrrev_b32 v13, 4, v1")
    a("v_mul_u32_u24 v14, 18432, v12")
    a("v_lshl_add_u32 v14, v13, 3, v14")
    a("s_lshl_b32 s23, s18, 5")
    a(f"s_add_u32 s24, s23, {OFF_XT}")
    XR = 200
    for jt in range(8):
        a(f"buffer_load_dwordx2 v[{XR+2*jt}:{XR+2*jt+1}], v14, s[8:11], s24 offen", tag="x")
        if jt < 7: a(f"s_add_u32 s24, s24, {16*18432}")
    a("v_mov_b32 v16, 0"); a("v_mov_b32 v17, 0")
    a(f"s_mul_i32 s25, s16, {HS}"); a(f"s_add_u32 s25, s25, {HB0}")
    a(f"s_mul_i32 s26, s16, {KB}")
    a("v_lshlrev_b32 v15, 3, v1"); a("v_add_u32 v15, s25, v15")
    a("ds_write_b64 v15, v[16:17]")
    a(f"v_mul_u32_u24 v15, {CS}, v13"); a("v_lshl_add_u32 v15, v12, 2, v15"); a("v_add_u32 v15, s26, v15")
    a("ds_write_b32 v15, v16")
    a.wait_vm("m")
    stamp(a, 1)
    for b in (80, 83, 86):
        a(f"v_add_f32 v{b}, v{b}, v{b+1}"); a(f"v_add_f32 v{b}, v{b}, v{b+2}")
        rnd1(a, b)
    a("v_add_f32 v83, 1.0, v83"); rnd1(a, 83)
    a("v_lshlrev_b32 v57, 16, v89")
    a("v_mov_b32 v56, v86")
    a(f"v_mul_u32_u24 v15, {HS}, v5")
    a("v_and_b32 v18, 1, v3")
    a("v_lshl_add_u32 v15, v18, 4, v15")
    a("v_lshl_add_u32 v15, v4, 5, v15")
    a("s_lshl_b32 s27, s16, 10"); a(f"s_add_u32 s27, s27, {HB0+512}")
    a("v_add_u32 v15, s27, v15")
    for i in range(4):
        for q in range(4):
            r = NR+4*i+q
            unpack(a, 18, 19, r)
            a("v_mul_f32 v18, v18, v83"); a("v_mul_f32 v19, v19, v83")
            rnd2(a, 18, 19, 20)
            a("v_add_f32 v18, v18, v80"); a("v_add_f32 v19, v19, v80")
            a(f"v_cvt_pk_bf16_f32 v{r}, v18, v19")
        a(f"ds_write_b128 v15, v[{NR+4*i}:{NR+4*i+3}] offset:{256*i}")
    a("v_add_u32 v15, s26, v10")
    a("v_add_u32 v21, 4, v15")
    a("v_cmp_eq_u32 vcc, 0, v1")
    for i in range(4):
        a.wait_vm(("k", i))
        d = KR+4*i; pv = KR+16+i
        if i == 0: a(f"v_cndmask_b32 v{pv}, v{pv}, v16, vcc")
        a(f"v_alignbit_b32 v24, v{d}, v{pv}, 16")
        for q in range(1, 4): a(f"v_alignbit_b32 v{24+q}, v{d+q}, v{d+q-1}, 16")
        o = 32 + 1024*i
        a(f"ds_write_b128 v15, v[{d}:{d+3}] offset:{o}")
        a(f"ds_write_b128 v15, v[24:27] offset:{o+CS}")
        a(f"v_add_u32 v22, {o+2*CS}, v21")
        a(f"v_add_u32 v23, {o+3*CS}, v21")
        a(f"ds_write2_b32 v22, v{d}, v{d+1} offset0:0 offset1:1")
        a(f"ds_write2_b32 v22, v{d+2}, v{d+3} offset0:2 offset1:3")
        a(f"ds_write2_b32 v23, v24, v25 offset0:0 offset1:1")
        a(f"ds_write2_b32 v23, v26, v27 offset0:2 offset1:3")
    a("v_lshlrev_b32 v18, 5, v12"); a("v_lshl_add_u32 v18, v13, 4, v18")
    a("s_add_u32 s27, s25, 32"); a("v_add_u32 v18, s27, v18")
    a("v_bfe_u32 v19, v1, 2, 2"); a(f"v_mul_u32_u24 v19, {CS}, v19")
    a("v_and_b32 v20, 3, v1"); a("v_lshl_add_u32 v19, v20, 3, v19")
    a("v_lshlrev_b32 v20, 4, v13"); a("v_sub_u32 v19, v19, v20")
    a("s_add_u32 s27, s26, 56"); a("v_add_u32 v19, s27, v19")
    a("v_lshlrev_b32 v20, 5, v12"); a("v_lshl_add_u32 v20, v13, 3, v20")
    a("s_add_u32 s27, s25, 512"); a("v_add_u32 v20, s27, v20")
    ACC = 24
    a.wait_all(vm=False)
    a("s_barrier")
    stamp(a, 2)
    for r in range(32): a(f"v_mov_b32 v{ACC+r}, 0")
    BUF = [(64, 96), (128, 160)]
    def loads(r):
        Bb, Ab = BUF[r & 1]
        L = []
        for u in range(8):
            q = 8*u - r
            L.append(f"ds_read_b128 v[{Bb+4*u}:{Bb+4*u+3}], v18 offset:{64*(q+7)}")
        for aa in range(8):
            m = r + 8*aa
            L.append(f"ds_read_b64_tr_b16 v[{Ab+4*aa}:{Ab+4*aa+1}], v19 offset:{64*m+8}")
            L.append(f"ds_read_b64_tr_b16 v[{Ab+4*aa+2}:{Ab+4*aa+3}], v19 offset:{64*m}")
        return L
    for s in loads(0): a(s)
    for r in range(8):
        a.wait_all(vm=False)
        Bb, Ab = BUF[r & 1]
        nxt = loads(r+1) if r < 7 else [f"ds_read_b64 v[{216+2*jt}:{217+2*jt}], v20 offset:{512*jt}" for jt in range(8)]
        for aa in range(8):
            for jt in range(aa, 8):
                u = jt - aa
                a(f"v_mfma_f32_16x16x32_bf16 v[{ACC+4*jt}:{ACC+4*jt+3}], v[{Ab+4*aa}:{Ab+4*aa+3}], v[{Bb+4*u}:{Bb+4*u+3}], v[{ACC+4*jt}:{ACC+4*jt+3}]")
                if nxt: a(nxt.pop(0))
    a.wait_all()
    stamp(a, 3)
    a(f"s_add_u32 s24, s23, {OFF_X1T}")
    for jt in range(8):
        for h in range(2):
            y0 = ACC+4*jt+2*h; y1 = y0+1
            rnd2(a, y0, y1, 64)
            unpack(a, 65, 66, 216+2*jt+h)
            a("v_mul_f32 v65, v65, v57"); a("v_mul_f32 v66, v66, v57")
            rnd2(a, 65, 66, 64)
            a(f"v_add_f32 v{y0}, v{y0}, v65"); a(f"v_add_f32 v{y1}, v{y1}, v66")
            rnd2(a, y0, y1, 64)
            a(f"v_mul_f32 v{y0}, v{y0}, v56"); a(f"v_mul_f32 v{y1}, v{y1}, v56")
            rnd2(a, y0, y1, 64)
            unpack(a, 65, 66, XR+2*jt+h)
            a(f"v_add_f32 v{y0}, v{y0}, v65"); a(f"v_add_f32 v{y1}, v{y1}, v66")
            a(f"v_cvt_pk_bf16_f32 v{XR+2*jt+h}, v{y0}, v{y1}")
        a(f"buffer_store_dwordx2 v[{XR+2*jt}:{XR+2*jt+1}], v14, s[8:11], s24 offen")
        if jt < 7: a(f"s_add_u32 s24, s24, {16*18432}")
    if STAMP:
        stamp(a, 4); a.wait_all(); stamp(a, 5); stamp_store(a, 6, 2)
    a("s_endpgm")
    a.label("K2_MODF"); a.hist = []; a.vm = []; a.lg = []
    a.wait_all()
    srd(a, 8, 6, WS_REC)
    a("v_lshlrev_b32 v1, 2, v0")
    a("v_lshlrev_b32 v2, 4, v0")
    for q in range(4): a(f"v_mov_b32 v{4+q}, 0")
    a(f"s_mov_b32 s20, {OFF_FLG}")
    a(f"s_mov_b32 s21, {OFF_FLG + 8192}")
    for q in range(4):
        a(f"buffer_store_dwordx4 v[4:7], v2, s[8:11], s{20 + q//2} offen" + (" offset:0" if q % 2 == 0 else ""))
        if q % 2 == 0: a("v_add_u32 v2, 4096, v2")
        else: a("v_subrev_u32 v2, 4096, v2")
    for i in range(7):
        for ks in range(3):
            a(f"s_mov_b32 s20, {OFF_MODP + ks*3456*4 + 1728*4 + 1024*i}")
            a(f"buffer_load_dword v{10+3*i+ks}, v1, s[8:11], s20 offen")
    a.wait_all()
    for i in range(7):
        b = 10+3*i
        a(f"v_add_f32 v{b}, v{b}, v{b+1}"); a(f"v_add_f32 v{b}, v{b}, v{b+2}")
        rnd1(a, b)
        a(f"v_add_f32 v{b+1}, 1.0, v{b}")
        rnd1(a, b+1)
        a(f"v_add_u32 v2, {256*i}, v0")
        a("v_subrev_u32 v3, 576, v2")
        a("v_cmp_gt_u32 vcc, 576, v3")
        a(f"v_cndmask_b32 v{b}, v{b}, v{b+1}, vcc")
        a(f"s_mov_b32 s20, {OFF_MODF + 1024*i}")
        if i == 6:
            a("v_cmp_gt_u32 vcc, 1728, v2")
            a("s_and_saveexec_b64 s[22:23], vcc")
            a("s_cbranch_execz K2_END")
        a(f"buffer_store_dword v{b}, v1, s[8:11], s20 offen")
    a.label("K2_END")
    a("s_endpgm")
    a.label("K2_WARM"); a.hist = []; a.vm = []; a.lg = []
    a("s_cmp_ge_u32 s2, 253")
    a("s_cbranch_scc1 K2_END")
    a("s_load_dwordx4 s[12:15], s[0:1], 80")
    a("s_load_dwordx2 s[16:17], s[0:1], 96")
    a("s_sub_u32 s3, s2, 145")
    a("v_lshlrev_b32 v1, 4, v0")
    a.wait_all()
    a("s_cmp_ge_u32 s3, 36"); a("s_cselect_b32 s12, s14, s12"); a("s_cselect_b32 s13, s15, s13")
    a("s_cselect_b32 s18, 36, 0")
    a("s_cmp_ge_u32 s3, 72"); a("s_cselect_b32 s12, s16, s12"); a("s_cselect_b32 s13, s17, s13")
    a("s_cselect_b32 s18, 72, s18")
    a("s_sub_u32 s3, s3, s18"); a("s_mul_i32 s3, s3, 147456")
    srd(a, 8, 12, 576*9216)
    for i in range(36):
        a(f"buffer_load_dwordx4 v[{4+4*(i % 18)}:{7+4*(i % 18)}], v1, s[8:11], s3 offen")
        a("s_add_u32 s3, s3, 4096")
    a("s_endpgm")
    return a.text(), dict(vgpr=232, sgpr=40, accum=232), f"grid=({145 if EXP == 'nowarm' else 253},1,1) block=(256,1,1) lds={HB0+4*HS}"

def k3():
    a = Asm()
    RED = 18432
    a("s_load_dwordx2 s[6:7], s[0:1], 136")
    a("s_cmp_ge_u32 s2, 128")
    a("s_cbranch_scc1 K3_END")
    stamp(a, 0)
    a("v_and_b32 v1, 63, v0")
    a("v_lshrrev_b32 v2, 6, v0")
    a("v_readfirstlane_b32 s16, v2")
    a("v_lshlrev_b32 v3, 4, v1")
    a("v_and_b32 v4, 15, v1")
    a("v_lshrrev_b32 v5, 4, v1")
    a("s_mul_i32 s17, s16, 3072")
    a("s_mul_i32 s18, s2, 18432")
    a("s_add_u32 s18, s18, s17")
    a(f"s_add_u32 s18, s18, {OFF_X1T}")
    a.wait_all()
    srd(a, 8, 6, WS_REC)
    a("s_mov_b32 m0, s17")
    for i in range(3):
        a(f"buffer_load_dwordx4 v3, s[8:11], s18 offen offset:{1024*i} lds", tag="x")
    a("s_mul_i32 s19, s16, 384")
    a(f"s_add_u32 s19, s19, {OFF_MODF}")
    a("v_lshlrev_b32 v6, 5, v5")
    SB = 40; CB = 64
    for i in range(3):
        for h in range(2):
            a(f"buffer_load_dwordx4 v[{SB+8*i+4*h}:{SB+8*i+4*h+3}], v6, s[8:11], s19 offen offset:{128*i+16*h}", tag="m")
            a(f"buffer_load_dwordx4 v[{CB+8*i+4*h}:{CB+8*i+4*h+3}], v6, s[8:11], s19 offen offset:{2304+128*i+16*h}", tag="m")
    a("v_bfe_u32 v7, v1, 2, 2"); a("v_lshlrev_b32 v7, 5, v7")
    a("v_and_b32 v8, 3, v1"); a("v_lshl_add_u32 v7, v8, 3, v7")
    a("v_lshl_add_u32 v7, v5, 8, v7")
    a("v_add_u32 v7, s17, v7")
    a.wait_vm("x")
    stamp(a, 1)
    X = 10
    for i in range(3):
        a(f"ds_read_b64_tr_b16 v[{X+4*i}:{X+4*i+1}], v7 offset:{1024*i}", tag=("t", i))
        a(f"ds_read_b64_tr_b16 v[{X+4*i+2}:{X+4*i+3}], v7 offset:{1024*i+128}", tag=("t", i))
    a("v_mul_u32_u24 v8, 1152, v4"); a("v_lshl_add_u32 v8, v5, 4, v8")
    a("s_mul_i32 s20, s2, 18432"); a("s_mul_i32 s21, s16, 192"); a("s_add_u32 s20, s20, s21")
    a(f"s_add_u32 s20, s20, {OFF_X1R}")
    F = 88
    for i in range(3):
        a.wait_lg(("t", i))
        a(f"buffer_store_dwordx4 v[{X+4*i}:{X+4*i+3}], v8, s[8:11], s20 offen offset:{64*i}")
        for q in range(4): unpack(a, F+8*i+2*q, F+8*i+2*q+1, X+4*i+q)
    def xreduce(r, off):
        a(f"v_mov_b32 v24, v{r}")
        a(f"v_permlane32_swap_b32 v24, v{r}")
        a(f"v_add_f32 v{r}, v{r}, v24")
        a(f"v_mov_b32 v24, v{r}")
        a(f"v_permlane16_swap_b32 v24, v{r}")
        a(f"v_add_f32 v{r}, v{r}, v24")
        a(f"ds_write_b32 v22, v{r} offset:{off}")
        a.wait_all(vm=False)
        a("s_barrier")
        a(f"ds_read_b128 v[24:27], v23 offset:{off}")
        a(f"ds_read_b64 v[28:29], v23 offset:{off+16}")
        a.wait_all(vm=False)
        a("v_add_f32 v24, v24, v25"); a("v_add_f32 v26, v26, v27"); a("v_add_f32 v28, v28, v29")
        a("v_add_f32 v24, v24, v26"); a(f"v_add_f32 v{r}, v24, v28")
    a("v_lshlrev_b32 v23, 5, v4")
    a("v_lshl_add_u32 v22, v2, 2, v23")
    a(f"v_add_f32 v30, v{F}, v{F+1}"); a(f"v_add_f32 v31, v{F+2}, v{F+3}")
    for i in range(4, 24, 2):
        a(f"v_add_f32 v30, v30, v{F+i}"); a(f"v_add_f32 v31, v31, v{F+i+1}")
    a("v_add_f32 v30, v30, v31")
    xreduce(30, RED)
    a(f"v_mul_f32 v30, {f32(1.0/576):#x}, v30")
    a("v_mov_b32 v31, 0"); a("v_mov_b32 v32, 0")
    for i in range(0, 24, 2):
        a(f"v_sub_f32 v33, v{F+i}, v30"); a(f"v_sub_f32 v34, v{F+i+1}, v30")
        a("v_fmac_f32 v31, v33, v33"); a("v_fmac_f32 v32, v34, v34")
    a("v_add_f32 v31, v31, v32")
    xreduce(31, RED + 512)
    a(f"v_mul_f32 v31, {f32(1.0/576):#x}, v31")
    rnd1(a, 31)
    a(f"v_add_f32 v31, {f32(1e-5):#x}, v31")
    rnd1(a, 31)
    a("v_sqrt_f32 v31, v31")
    rnd1(a, 31)
    a("v_rcp_f32 v32, v31")
    rnd1(a, 30)
    if G16:
        a("v_lshlrev_b32 v9, 4, v1")
        a("s_mul_i32 s20, s2, 18432"); a("s_add_u32 s20, s20, s17")
    else:
        a("v_lshlrev_b32 v9, 9, v5"); a("v_lshl_add_u32 v9, v4, 4, v9")
        a("s_lshr_b32 s20, s2, 1"); a("s_mul_i32 s20, s20, 36864")
        a("s_and_b32 s21, s2, 1"); a("s_lshl_b32 s21, s21, 8"); a("s_add_u32 s20, s20, s21")
        a("s_mul_i32 s21, s16, 6144"); a("s_add_u32 s20, s20, s21")
    a(f"s_add_u32 s20, s20, {OFF_H2P}")
    a("s_add_u32 s21, s20, 4096")
    stamp(a, 2)
    a.wait_vm("m")
    for i in range(3):
        for q in range(4):
            r0 = F+8*i+2*q; r1 = r0+1
            a(f"v_sub_f32 v{r0}, v{r0}, v30"); a(f"v_sub_f32 v{r1}, v{r1}, v30")
            rnd2(a, r0, r1, 33)
            a(f"v_mul_f32 v33, v{r0}, v32"); a(f"v_mul_f32 v34, v{r1}, v32")
            a(f"v_fma_f32 v{r0}, -v33, v31, v{r0}"); a(f"v_fma_f32 v{r1}, -v34, v31, v{r1}")
            a(f"v_fmac_f32 v33, v{r0}, v32"); a(f"v_fmac_f32 v34, v{r1}, v32")
            rnd2(a, 33, 34, 35)
            a(f"v_mul_f32 v33, v33, v{CB+8*i+2*q}"); a(f"v_mul_f32 v34, v34, v{CB+8*i+2*q+1}")
            rnd2(a, 33, 34, 35)
            a(f"v_add_f32 v33, v33, v{SB+8*i+2*q}"); a(f"v_add_f32 v34, v34, v{SB+8*i+2*q+1}")
            a(f"v_cvt_pk_bf16_f32 v{112+4*i+q}, v33, v34")
        o = (1024 if G16 else 2048)*i
        a(f"buffer_store_dwordx4 v[{112+4*i}:{112+4*i+3}], v9, s[8:11], s{20 + o//4096} offen offset:{o%4096}")
    if STAMP:
        stamp(a, 3); a.wait_all(); stamp(a, 4); stamp_store(a, 5, 3)
    a.label("K3_END")
    a("s_endpgm")
    return a.text(), dict(vgpr=124, sgpr=40, accum=124), f"grid=(128,1,1) block=(384,1,1) lds={RED+1024}"

def dma_voffsets(a, base, pitch, swap23=False):
    t0, t1 = base+9, base+10
    for i in range(9):
        a(f"v_add_u32 v{t0}, {64*i}, v1")
        a(f"v_mul_u32_u24 v{t1}, 3641, v{t0}")
        a(f"v_lshrrev_b32 v{t1}, 16, v{t1}")
        a(f"v_mul_u32_u24 v{base+i}, 18, v{t1}")
        a(f"v_sub_u32 v{t0}, v{t0}, v{base+i}")
        if swap23:
            a(f"v_lshrrev_b32 v{base+i}, 1, v{t1}")
            a(f"v_xor_b32 v{base+i}, v{base+i}, v{t1}")
            a(f"v_and_b32 v{base+i}, 4, v{base+i}")
            a(f"v_mul_u32_u24 v{base+i}, 3, v{base+i}")
            a(f"v_xor_b32 v{t1}, v{t1}, v{base+i}")
        a(f"v_mul_u32_u24 v{base+i}, {pitch}, v{t1}")
        a(f"v_lshl_add_u32 v{base+i}, v{t0}, 4, v{base+i}")

def rot_soffsets(a, rho_s, sD, sT0, sT1, dbase, tb0, tb1, dstage, tmp):
    for j in range(9):
        a(f"s_add_u32 s{tmp}, s{rho_s}, {j}")
        a(f"s_sub_u32 s{tmp+1}, s{tmp}, 9")
        a(f"s_cmp_ge_u32 s{tmp}, 9")
        a(f"s_cselect_b32 s{tmp}, s{tmp+1}, s{tmp}")
        a(f"s_mul_i32 s{tmp+1}, s{tmp}, {dstage}")
        a(f"s_add_u32 s{sD+j}, s{dbase}, s{tmp+1}")
        a(f"s_lshl_b32 s{tmp+1}, s{tmp}, 12")
        a(f"s_add_u32 s{sT0+j}, s{tb0}, s{tmp+1}")
        a(f"s_add_u32 s{sT1+j}, s{tb1}, s{tmp+1}")

def kloop(a, dma, tok, trd, mfma, PF, pro_tok, slots, between=None):
    for i in range(9): dma(0, i)
    for ks in range(pro_tok):
        for b in range(2): tok(ks, b)
    if between: between()
    ops = []
    for st in range(1, 9):
        for i in range(9):
            avail = -1 if st <= 3 else 4*(st-3)+3
            ops.append((4*st-1-0.5, i, avail, dma, (st, i)))
    for ks in range(pro_tok, 36):
        for b in range(2):
            avail = -1 if ks < PF else ks-PF+1
            ops.append((ks, b, avail, tok, (ks, b)))
    ops.sort(key=lambda o: (o[0], o[1]))
    stamp(a, 3)
    a.wait_vm(("d", 0))
    a("s_barrier")
    stamp(a, 4)
    for aa in range(9): trd(0, aa)
    for ks in range(36):
        st, kk = divmod(ks, 4)
        if kk == 3 and st < 8:
            assert not any(o[3] is dma and o[4][0] == st+1 for o in ops), (ks,)
            a.wait_vm(("d", st+1))
            a("s_barrier")
        assert not any(o[3] is tok and o[4][0] == ks for o in ops), (ks,)
        a.wait_vm(("t", ks))
        for aa in range(9):
            a.wait_lg(("a", ks, aa))
            for b in range(2): mfma(ks, aa, b)
            if ks < 35: trd(ks+1, aa)
            if aa in slots:
                for o in ops:
                    if o[2] <= ks:
                        ops.remove(o); o[3](*o[4]); break
    assert not ops

def k4():
    a = Asm()
    SLOT = 37120; UPO = 18560; NSLOT = 4; PF = 8
    a("s_load_dwordx2 s[6:7], s[0:1], 136")
    a("s_load_dwordx4 s[12:15], s[0:1], 80")
    a("s_cmp_ge_u32 s2, 256")
    a("s_cbranch_scc1 K4_END")
    stamp(a, 0)
    M = 224
    a(f"v_and_b32 v{M}, 63, v0")
    a(f"v_lshrrev_b32 v{M+1}, 6, v0")
    a(f"v_readfirstlane_b32 s16, v{M+1}")
    a(f"v_mov_b32 v1, v{M}")
    a("s_and_b32 s17, s2, 7"); a("s_lshr_b32 s18, s2, 3")
    a("s_and_b32 s19, s18, 3"); a("s_lshl_b32 s17, s17, 2"); a("s_add_u32 s17, s17, s19")
    a("s_lshr_b32 s18, s18, 2")
    a("s_lshl_b32 s19, s19, 1"); a("s_add_u32 s19, s19, s18")
    a("s_sub_u32 s20, s19, 9"); a("s_cmp_ge_u32 s19, 9"); a("s_cselect_b32 s19, s20, s19")
    if EXP == "norot": a("s_mov_b32 s19, 0")
    DV = M+2
    dma_voffsets(a, DV, 9216)
    a("s_and_b32 s22, s16, 1"); a("s_lshr_b32 s23, s16, 1")
    a(f"s_mul_i32 s28, s22, {32*9216}"); a("s_mul_i32 s30, s17, 288"); a("s_add_u32 s28, s28, s30")
    a(f"s_mul_i32 s29, s23, {UPO}"); a("s_mul_i32 s30, s22, 9216"); a("s_add_u32 s29, s29, s30")
    VT = M+13
    a(f"v_lshlrev_b32 v{VT}, 4, v{M}")
    a("s_lshl_b32 s31, s18, 3"); a("s_lshl_b32 s30, s16, 1"); a("s_add_u32 s31, s31, s30")
    a("s_mul_i32 s31, s31, 36864"); a(f"s_add_u32 s31, s31, {OFF_H2P}")
    a("s_add_u32 s32, s31, 36864")
    SD, ST0, ST1 = 33, 42, 51
    rot_soffsets(a, 19, SD, ST0, ST1, 28, 31, 32, 64*9216, 22)
    a.wait_all()
    stamp(a, 1)
    srd(a, 8, 6, WS_REC)
    a("s_cmp_ge_u32 s16, 2")
    a("s_cselect_b32 s20, s14, s12"); a("s_cselect_b32 s21, s15, s13")
    srd(a, 24, 20, 576*9216)
    AF = 64; BR = 100
    VA = M+14; VS = M+16
    def dma(st, i):
        a(f"s_add_u32 m0, s29, {(st % NSLOT)*SLOT + i*1024}")
        a(f"buffer_load_dwordx4 v{DV+i}, s[24:27], s{SD+st} offen lds", tag=("d", st))
    def tok(ks, b):
        rb = BR + 8 * (ks % PF) + 4*b
        a(f"buffer_load_dwordx4 a[{rb}:{rb+3}], v{VT}, s[8:11], s{(ST0, ST1)[b] + ks//4} offen offset:{(ks % 4)*1024}", tag=("t", ks))
    def acc(t):
        return f"v[{16*t}:{16*t+15}]" if t < 14 else f"a[{16*(t-14)}:{16*(t-14)+15}]"
    def trd(ks, aa):
        if EXP == "notr" and ks > 1: return
        st, kk = divmod(ks, 4); slot = st % NSLOT
        off = (slot & 1)*SLOT + kk*4608 + aa*32
        va = VA + (slot >> 1)
        a(f"ds_read_b64_tr_b16 a[{AF+4*aa}:{AF+4*aa+1}], v{va} offset:{off}", tag=("a", ks, aa))
        a(f"ds_read_b64_tr_b16 a[{AF+4*aa+2}:{AF+4*aa+3}], v{va} offset:{off+1152}", tag=("a", ks, aa))
    def mfma(ks, aa, b):
        t = 2*aa + b; rb = BR + 8 * (ks % PF) + 4*b
        if EXP == "m16":
            for hh in range(2):
                o = 8*(ks & 1) + 4*hh
                c = f"v[{16*t+o}:{16*t+o+3}]" if t < 14 else f"a[{16*(t-14)+o}:{16*(t-14)+o+3}]"
                a(f"v_mfma_f32_16x16x32_bf16 {c}, a[{AF+4*aa}:{AF+4*aa+3}], a[{rb}:{rb+3}], {c if ks > 1 else 0}")
                if a.defer: a.defer.pop(0)()
            return
        a(f"v_mfma_f32_32x32x16_bf16 {acc(t)}, a[{AF+4*aa}:{AF+4*aa+3}], a[{rb}:{rb+3}], {acc(t) if ks else 0}")
    def between():
        stamp(a, 2)
        a(f"v_bfe_u32 v2, v{M}, 4, 1"); a(f"v_mul_u32_u24 v{VA}, {UPO}, v2")
        a(f"v_lshrrev_b32 v2, 5, v{M}"); a(f"v_bfe_u32 v3, v{M}, 2, 2"); a("v_lshl_add_u32 v2, v2, 3, v3")
        a("v_mul_u32_u24 v2, 288, v2"); a(f"v_add_u32 v{VA}, v{VA}, v2")
        a(f"v_and_b32 v2, 3, v{M}"); a(f"v_lshl_add_u32 v{VA}, v2, 3, v{VA}")
        a(f"v_add_u32 v{VA+1}, {2*SLOT}, v{VA}")
        a(f"v_bfe_u32 v2, v{M}, 4, 1"); a(f"v_mul_u32_u24 v{VS}, 147456, v2")
        a(f"v_lshrrev_b32 v2, 5, v{M}"); a(f"v_lshl_add_u32 v{VS}, v2, 8, v{VS}")
        a(f"v_and_b32 v2, 15, v{M}"); a(f"v_lshl_add_u32 v{VS}, v2, 4, v{VS}")
        a("s_lshl_b32 s20, s18, 4"); a("s_lshl_b32 s21, s16, 2"); a("s_add_u32 s20, s20, s21")
        a("s_mul_i32 s20, s20, 147456"); a("s_mul_i32 s21, s17, 4608"); a("s_add_u32 s20, s20, s21")
        a(f"s_add_u32 s20, s20, {OFF_HM}")
        a("s_add_u32 s21, s20, 4096")
        a(f"s_add_u32 s22, s20, {2*147456}")
        a("s_add_u32 s23, s22, 4096")
    kloop(a, dma, tok, trd, mfma, PF, 3, (0, 2, 3, 5, 6, 8), between)
    stamp(a, 5)
    T = M+18
    for t in range(18):
        aa, b = divmod(t, 2)
        if t < 14:
            g = 16*t
        else:
            g = 0
            for r in range(16): a(f"v_accvgpr_read_b32 v{g+r}, a{16*(t-14)+r}")
        o = T + 4*(t % 3)
        for q in range(4):
            a(f"v_pk_mul_f32 v[{g+2*q}:{g+2*q+1}], v[{g+2*q}:{g+2*q+1}], v[{g+8+2*q}:{g+8+2*q+1}]")
        for q in range(4):
            a(f"v_cvt_pk_bf16_f32 v{o+q}, v{g+2*q}, v{g+2*q+1}")
        so = 20 + 2*b + (1 if aa == 8 else 0)
        a(f"buffer_store_dwordx4 v[{o}:{o+3}], v{VS}, s[8:11], s{so} offen offset:{(aa*512) % 4096}")
    if STAMP:
        stamp(a, 6); a.wait_all(); stamp(a, 7); stamp_store(a, 8, 4)
    a.label("K4_END")
    a("s_endpgm")
    return a.text(), dict(vgpr=256+BR+8*PF, sgpr=60, accum=256), f"grid=(256,1,1) block=(256,1,1) lds={NSLOT*SLOT}"

def k4b():
    a = Asm()
    SLOT = 36864; UPO = 18432; NSLOT = 4; PF = 4; NA = 6
    a("s_load_dwordx2 s[6:7], s[0:1], 136")
    a("s_load_dwordx4 s[12:15], s[0:1], 80")
    a("s_cmp_ge_u32 s2, 256")
    a("s_cbranch_scc1 K4_END")
    stamp(a, 0)
    M = 224
    a(f"v_and_b32 v{M}, 63, v0")
    a(f"v_lshrrev_b32 v{M+1}, 6, v0")
    a(f"v_readfirstlane_b32 s16, v{M+1}")
    a(f"v_mov_b32 v1, v{M}")
    a("s_and_b32 s17, s2, 7"); a("s_lshr_b32 s18, s2, 3")
    a("s_and_b32 s19, s18, 3"); a("s_lshl_b32 s17, s17, 2"); a("s_add_u32 s17, s17, s19")
    a("s_lshr_b32 s18, s18, 2")
    a("s_lshl_b32 s19, s19, 1"); a("s_add_u32 s19, s19, s18")
    a("s_sub_u32 s20, s19, 9"); a("s_cmp_ge_u32 s19, 9"); a("s_cselect_b32 s19, s20, s19")
    if EXP == "norot": a("s_mov_b32 s19, 0")
    DV = M+2
    dma_voffsets(a, DV, 9216, swap23=True)
    a("s_and_b32 s22, s16, 1"); a("s_lshr_b32 s23, s16, 1")
    a(f"s_mul_i32 s28, s22, {32*9216}"); a("s_mul_i32 s30, s17, 288"); a("s_add_u32 s28, s28, s30")
    a(f"s_mul_i32 s29, s23, {UPO}"); a("s_mul_i32 s30, s22, 9216"); a("s_add_u32 s29, s29, s30")
    VT = M+13
    a(f"v_lshlrev_b32 v{VT}, 4, v{M}")
    for b in range(1, 4): a(f"v_add_u32 v{VT+b}, {18432*b}, v{VT}")
    a("s_lshl_b32 s31, s18, 4"); a("s_lshl_b32 s30, s16, 2"); a("s_add_u32 s31, s31, s30")
    a("s_mul_i32 s32, s31, 18432"); a(f"s_add_u32 s32, s32, {OFF_H2P}")
    SD, ST = 33, 42
    for j in range(9):
        a(f"s_add_u32 s22, s19, {j}"); a("s_sub_u32 s23, s22, 9"); a("s_cmp_ge_u32 s22, 9"); a("s_cselect_b32 s22, s23, s22")
        a(f"s_mul_i32 s23, s22, {64*9216}"); a(f"s_add_u32 s{SD+j}, s28, s23")
        a("s_lshl_b32 s23, s22, 11"); a(f"s_add_u32 s{ST+j}, s32, s23")
    a.wait_all()
    stamp_n(a, 1)
    srd(a, 8, 6, WS_REC)
    a("s_cmp_ge_u32 s16, 2")
    a("s_cselect_b32 s20, s14, s12"); a("s_cselect_b32 s21, s15, s13")
    srd(a, 24, 20, 576*9216)
    AF = 64; BR = AF + 4*NA
    VA = M+17
    def dma(st, i):
        a(f"s_add_u32 m0, s29, {(st % NSLOT)*SLOT + i*1024}")
        a(f"buffer_load_dwordx4 v{DV+i}, s[24:27], s{SD+st} offen lds", tag=("d", st))
    def tok(ks, b):
        rb = BR + 16 * (ks % PF) + 4*b
        a(f"buffer_load_dwordx4 a[{rb}:{rb+3}], v{VT+b}, s[8:11], s{ST + ks//2} offen offset:{(ks % 2)*1024}", tag=("t", ks))
    def accr(mat, aa, b):
        if aa < 7: return ("v", 32*aa + 16*mat + 4*b)
        return ("a", 32*(aa-7) + 16*mat + 4*b)
    def acc(mat, aa, b):
        k, r = accr(mat, aa, b); return f"{k}[{r}:{r+3}]"
    def trd(n, q):
        if EXP == "notr" and n > 40: return
        ks, fi = divmod(n, 18); aa, mat = divmod(fi, 2)
        st, kk = divmod(ks, 2); slot = st % NSLOT
        off = mat*UPO + kk*9216 + aa*32 + q*2304
        r = AF + 4*(n % NA) + 2*q
        a(f"ds_read_b64_tr_b16 a[{r}:{r+1}], v{VA+slot} offset:{off}", tag=("a", n))
    for i in range(9): dma(0, i)
    for b in range(4): tok(0, b)
    stamp_n(a, 2)
    a(f"v_lshrrev_b32 v2, 5, v{M}"); a("v_lshlrev_b32 v2, 4, v2")
    a(f"v_bfe_u32 v3, v{M}, 4, 1"); a("v_lshl_add_u32 v2, v3, 2, v2")
    a(f"v_bfe_u32 v3, v{M}, 2, 2"); a("v_add_u32 v2, v2, v3")
    a(f"v_mul_u32_u24 v{VA}, 288, v2")
    a(f"v_and_b32 v2, 3, v{M}"); a(f"v_lshl_add_u32 v{VA}, v2, 3, v{VA}")
    for sl in range(1, 4): a(f"v_add_u32 v{VA+sl}, {sl*SLOT}, v{VA}")
    a("s_mul_i32 s20, s31, 147456"); a("s_mul_i32 s21, s17, 9"); a("s_lshr_b32 s21, s21, 1"); a("s_lshl_b32 s21, s21, 10")
    a("s_add_u32 s20, s20, s21"); a(f"s_add_u32 s52, s20, {OFF_HM}")
    for b in range(1, 4): a(f"s_add_u32 s{52+b}, s52, {147456*b}")
    for b in range(4): a(f"s_add_u32 s{56+b}, s{52+b}, 4096")
    NF = 18*18
    D = NA - 1
    ops = []
    for st in range(1, 9):
        for i in range(9):
            ops.append((36*st - D - 0.5, i, -1 if st <= 3 else 36*(st-2) - D, dma, (st, i)))
    for ks in range(1, 18):
        for b in range(4):
            ops.append((18*ks, b, -1 if ks < PF else 18*(ks-PF+1), tok, (ks, b)))
    ops.sort(key=lambda o: (o[0], o[1]))
    stamp_n(a, 3)
    a.wait_vm(("d", 0))
    a("s_barrier")
    if EXP == "stages": stamp(a, 1)
    stamp_n(a, 4)
    for n in range(D):
        trd(n, 0); trd(n, 1)
    for n in range(NF):
        ks, fi = divmod(n, 18); aa, mat = divmod(fi, 2)
        if (n + D) % 36 == 0 and n + D < NF:
            st1 = (n + D)//36
            assert not any(o[3] is dma and o[4][0] == st1 for o in ops)
            a.wait_vm(("d", st1))
            a("s_barrier")
            if EXP == "stages" and st1 in (1, 2, 3, 5, 7): lg = list(a.lg); stamp(a, {1:2, 2:3, 3:4, 5:5, 7:6}[st1])
        if fi == 0:
            assert not any(o[3] is tok and o[4][0] == ks for o in ops)
            a.wait_vm(("t", ks))
        a.wait_lg(("a", n))
        ar = AF + 4*(n % NA)
        for b in range(4):
            rb = BR + 16 * (ks % PF) + 4*b
            c = acc(mat, aa, b)
            a(f"v_mfma_f32_16x16x32_bf16 {c}, a[{ar}:{ar+3}], a[{rb}:{rb+3}], {c if ks else 0}")
            if b < 2 and n + D < NF: trd(n + D, b)
            if b == 2 and (n % 3 != 2):
                for o in ops:
                    if o[2] <= n:
                        ops.remove(o); o[3](*o[4]); break
    assert not ops
    stamp_n(a, 5)
    T = M+21
    T = 246
    def prod(aa, b, o):
        (k, g), (_, u) = accr(0, aa, b), accr(1, aa, b)
        if k == "a":
            for r in range(4):
                a(f"v_accvgpr_read_b32 v{0+r}, a{g+r}"); a(f"v_accvgpr_read_b32 v{4+r}, a{u+r}")
            g, u = 0, 4
        for q in range(2):
            a(f"v_pk_mul_f32 v[{g+2*q}:{g+2*q+1}], v[{g+2*q}:{g+2*q+1}], v[{u+2*q}:{u+2*q+1}]")
        for q in range(2):
            a(f"v_cvt_pk_bf16_f32 v{o+q}, v{g+2*q}, v{g+2*q+1}")
    def epi(par):
        cnt = 0
        groups = [(0, 1), (2, 3), (4, 5), (6, 7), (8,)] if par == 0 else [(0,), (1, 2), (3, 4), (5, 6), (7, 8)]
        for gr in groups:
            for b in range(4):
                o = T + 4*(cnt % 2); cnt += 1
                L = gr[0] + par; kap = L >> 1
                so = (52 if kap < 4 else 56) + b; im = (kap % 4)*1024
                if len(gr) == 2:
                    prod(gr[0], b, o); prod(gr[1], b, o+2)
                    a(f"buffer_store_dwordx4 v[{o}:{o+3}], v{VT}, s[8:11], s{so} offen offset:{im}")
                else:
                    prod(gr[0], b, o)
                    a(f"buffer_store_dwordx2 v[{o}:{o+1}], v{VT}, s[8:11], s{so} offen offset:{im + 8*(L & 1)}")
    a("s_bitcmp1_b32 s17, 0")
    a("s_cbranch_scc1 K4_ODD")
    h = list(a.hist); vm = list(a.vm)
    epi(0)
    a("s_branch K4_FIN")
    a.label("K4_ODD"); a.hist = h; a.vm = vm
    epi(1)
    a.label("K4_FIN")
    if STAMP:
        stamp_n(a, 6); a.wait_all(); stamp(a, 7); stamp_store(a, 8, 4)
    a.label("K4_END")
    a("s_endpgm")
    return a.text(), dict(vgpr=256+BR+16*PF, sgpr=60, accum=256), f"grid=(256,1,1) block=(256,1,1) lds={NSLOT*SLOT}"

def poll(a, label, vflag, vaddr, soff, nl, tmp_s):
    a(f"s_mov_b32 s{tmp_s}, 0x20000")
    a.label(label)
    a(f"buffer_load_dword v{vflag}, v{vaddr}, s[8:11], s{soff} offen sc1")
    a("s_waitcnt vmcnt(0)"); a.vm = []
    a(f"v_cmp_ne_u32 vcc, 0, v{vflag}")
    a(f"s_sub_u32 s{tmp_s}, s{tmp_s}, 1")
    a(f"s_cbranch_scc1 {label}_X")
    a(f"s_and_b32 s{tmp_s+1}, vcc_lo, {(1 << nl) - 1}")
    a(f"s_cmp_lg_u32 s{tmp_s+1}, {(1 << nl) - 1}")
    a(f"s_cbranch_scc1 {label}")
    a.label(label + "_X")

def kgg():
    a = Asm()
    SLOT = 36864; UPO = 18432; NSLOT = 4; PF = 4; NA = 6
    a("s_load_dwordx2 s[6:7], s[0:1], 136")
    a("s_load_dwordx4 s[12:15], s[0:1], 80")
    a("s_load_dwordx2 s[4:5], s[0:1], 96")
    a("s_load_dwordx2 s[62:63], s[0:1], 120")
    a("s_cmp_ge_u32 s2, 256")
    a("s_cbranch_scc1 GG_END")
    if EXP == "badmap":
        a("s_lshr_b32 s3, s2, 5"); a("s_and_b32 s2, s2, 31"); a("s_lshl_b32 s2, s2, 3"); a("s_or_b32 s2, s2, s3")
    stamp(a, 0)
    M = 224
    a(f"v_and_b32 v{M}, 63, v0")
    a(f"v_lshrrev_b32 v{M+1}, 6, v0")
    a(f"v_readfirstlane_b32 s16, v{M+1}")
    a(f"v_mov_b32 v1, v{M}")
    a("s_and_b32 s17, s2, 7"); a("s_lshr_b32 s18, s2, 3")
    a("s_and_b32 s19, s18, 3"); a("s_lshl_b32 s17, s17, 2"); a("s_add_u32 s17, s17, s19")
    a("s_lshr_b32 s18, s18, 2")
    a("s_lshl_b32 s19, s19, 1"); a("s_add_u32 s19, s19, s18")
    a("s_sub_u32 s20, s19, 9"); a("s_cmp_ge_u32 s19, 9"); a("s_cselect_b32 s19, s20, s19")
    DV = M+2
    dma_voffsets(a, DV, 9216, swap23=True)
    a("s_and_b32 s22, s16, 1"); a("s_lshr_b32 s23, s16, 1")
    a(f"s_mul_i32 s28, s22, {32*9216}"); a("s_mul_i32 s30, s17, 288"); a("s_add_u32 s28, s28, s30")
    a(f"s_mul_i32 s29, s23, {UPO}"); a("s_mul_i32 s30, s22, 9216"); a("s_add_u32 s29, s29, s30")
    VT = M+13
    a(f"v_lshlrev_b32 v{VT}, 4, v{M}")
    for b in range(1, 4): a(f"v_add_u32 v{VT+b}, {18432*b}, v{VT}")
    a("s_lshl_b32 s31, s18, 4"); a("s_lshl_b32 s30, s16, 2"); a("s_add_u32 s31, s31, s30")
    a("s_mul_i32 s32, s31, 18432"); a(f"s_add_u32 s32, s32, {OFF_H2P}")
    SD, ST = 33, 42
    for j in range(9):
        a(f"s_add_u32 s22, s19, {j}"); a("s_sub_u32 s23, s22, 9"); a("s_cmp_ge_u32 s22, 9"); a("s_cselect_b32 s22, s23, s22")
        a(f"s_mul_i32 s23, s22, {64*9216}"); a(f"s_add_u32 s{SD+j}, s28, s23")
        a("s_lshl_b32 s23, s22, 11"); a(f"s_add_u32 s{ST+j}, s32, s23")
    a.wait_all()
    srd(a, 8, 6, WS_REC)
    a("s_cmp_ge_u32 s16, 2")
    a("s_cselect_b32 s20, s14, s12"); a("s_cselect_b32 s21, s15, s13")
    srd(a, 24, 20, 576*9216)
    srd(a, 12, 4, 4608*1152)
    AF = 64; BR = AF + 4*NA; DV2A = BR + 16*PF
    VA = M+17
    def dma(st, i):
        a(f"s_add_u32 m0, s29, {(st % NSLOT)*SLOT + i*1024}")
        a(f"buffer_load_dwordx4 v{DV+i}, s[24:27], s{SD+st} offen lds", tag=("d", st))
    def tok(ks, b):
        rb = BR + 16 * (ks % PF) + 4*b
        a(f"buffer_load_dwordx4 a[{rb}:{rb+3}], v{VT+b}, s[8:11], s{ST + ks//2} offen offset:{(ks % 2)*1024}", tag=("t", ks))
    def accr(mat, aa, b):
        if aa < 7: return ("v", 32*aa + 16*mat + 4*b)
        return ("a", 32*(aa-7) + 16*mat + 4*b)
    def acc(mat, aa, b):
        k, r = accr(mat, aa, b); return f"{k}[{r}:{r+3}]"
    def trd(n, q):
        ks, fi = divmod(n, 18); aa, mat = divmod(fi, 2)
        st, kk = divmod(ks, 2); slot = st % NSLOT
        off = mat*UPO + kk*9216 + aa*32 + q*2304
        r = AF + 4*(n % NA) + 2*q
        a(f"ds_read_b64_tr_b16 a[{r}:{r+1}], v{VA+slot} offset:{off}", tag=("a", n))
    for i in range(9): dma(0, i)
    for b in range(4): tok(0, b)
    a(f"v_lshrrev_b32 v2, 5, v{M}"); a("v_lshlrev_b32 v2, 4, v2")
    a(f"v_bfe_u32 v3, v{M}, 4, 1"); a("v_lshl_add_u32 v2, v3, 2, v2")
    a(f"v_bfe_u32 v3, v{M}, 2, 2"); a("v_add_u32 v2, v2, v3")
    a(f"v_mul_u32_u24 v{VA}, 288, v2")
    a(f"v_and_b32 v2, 3, v{M}"); a(f"v_lshl_add_u32 v{VA}, v2, 3, v{VA}")
    for sl in range(1, 4): a(f"v_add_u32 v{VA+sl}, {sl*SLOT}, v{VA}")
    a("s_mul_i32 s20, s31, 147456"); a("s_mul_i32 s21, s17, 9"); a("s_lshr_b32 s21, s21, 1"); a("s_lshl_b32 s21, s21, 10")
    a("s_add_u32 s20, s20, s21"); a(f"s_add_u32 s52, s20, {OFF_HM}")
    for b in range(1, 4): a(f"s_add_u32 s{52+b}, s52, {147456*b}")
    for b in range(4): a(f"s_add_u32 s{56+b}, s{52+b}, 4096")
    dma_voffsets(a, 10, 1152)
    for i in range(9): a(f"v_accvgpr_write_b32 a{DV2A+i}, v{10+i}")
    a("s_and_b32 s20, s2, 7"); a("s_lshr_b32 s21, s2, 3")
    a("s_and_b32 s5, s21, 3"); a("s_lshr_b32 s4, s21, 2")
    a("s_and_b32 s22, s20, 1"); a("s_lshl_b32 s22, s22, 3"); a("s_add_u32 s4, s4, s22")
    a("s_lshr_b32 s3, s20, 1")
    a(f"s_mul_i32 s60, s3, {1152*1152}"); a(f"s_mul_i32 s20, s16, {32*1152}"); a("s_add_u32 s60, s60, s20")
    a("s_mul_i32 s20, s5, 288"); a("s_add_u32 s60, s60, s20")
    a(f"s_add_u32 s61, s60, {128*1152}")
    a("s_mul_i32 s51, s16, 9216")
    PFA = DV2A + 9
    a("s_lshr_b32 s20, s2, 3"); a("s_lshl_b32 s20, s20, 2"); a("s_add_u32 s20, s20, s16"); a("s_mul_i32 s20, s20, 162")
    a(f"s_mul_i32 s21, s3, {1152*1152//64}"); a("s_add_u32 s20, s20, s21")
    for i in range(3):
        a(f"v_add_u32 v2, {64*i}, v{M}"); a("v_min_u32 v2, 161, v2"); a("v_add_u32 v2, s20, v2"); a("v_lshlrev_b32 v2, 6, v2")
        a(f"v_accvgpr_write_b32 a{PFA+i}, v2")
    def pfw(i):
        if EXP == "nopf": return
        a(f"v_accvgpr_read_b32 v254, a{PFA+i}")
        a(f"buffer_load_dword v255, v254, s[12:15], 0 offen", tag="pf")
    def slot2(st): return (st + 1) % NSLOT
    def dma2(st, i, so=None):
        a(f"s_add_u32 m0, s51, {slot2(st)*SLOT + i*1024}")
        a(f"buffer_load_dwordx4 v{DV+i}, s[12:15], s{so if so is not None else SD+st} offen lds", tag=("d2", st))
    def swapdv():
        for i in range(9): a(f"v_accvgpr_read_b32 v{DV+i}, a{DV2A+i}")
    NF = 18*18
    D = NA - 1
    ops = []
    for st in range(1, 9):
        for i in range(9):
            ops.append((36*st - D - 0.5, i, -1 if st <= 3 else 36*(st-2) - D, dma, (st, i)))
    for ks in range(1, 18):
        for b in range(4):
            ops.append((18*ks, b, -1 if ks < PF else 18*(ks-PF+1), tok, (ks, b)))
    for i in range(3): ops.append((NF, i, 36*5 + 6*i, pfw, (i,)))
    ops.append((NF+1, 0, 36*7 - D, swapdv, ()))
    for st in range(2):
        for i in range(9):
            ops.append((NF+2+st, i, 36*(7+st) - D, dma2, (st, i, 60+st)))
    ops.sort(key=lambda o: (o[0], o[1]))
    a.wait_vm(("d", 0))
    a("s_barrier")
    stamp(a, 1)
    for n in range(D):
        trd(n, 0); trd(n, 1)
    for n in range(NF):
        ks, fi = divmod(n, 18); aa, mat = divmod(fi, 2)
        if (n + D) % 36 == 0 and n + D < NF:
            st1 = (n + D)//36
            assert not any(o[3] is dma and o[4][0] == st1 for o in ops)
            a.wait_vm(("d", st1))
            a("s_barrier")
        if fi == 0:
            assert not any(o[3] is tok and o[4][0] == ks for o in ops)
            a.wait_vm(("t", ks))
        a.wait_lg(("a", n))
        ar = AF + 4*(n % NA)
        for b in range(4):
            rb = BR + 16 * (ks % PF) + 4*b
            c = acc(mat, aa, b)
            a(f"v_mfma_f32_16x16x32_bf16 {c}, a[{ar}:{ar+3}], a[{rb}:{rb+3}], {c if ks else 0}")
            if b < 2 and n + D < NF: trd(n + D, b)
            if b == 2 and (n % 3 != 2):
                for o in ops:
                    if o[2] <= n:
                        if o[3] is swapdv: assert not any(p[3] is dma for p in ops)
                        ops.remove(o); o[3](*o[4]); break
    assert not ops
    stamp(a, 2)
    T = 246
    def prod(aa, b, o):
        (k, g), (_, u) = accr(0, aa, b), accr(1, aa, b)
        if k == "a":
            for r in range(4):
                a(f"v_accvgpr_read_b32 v{0+r}, a{g+r}"); a(f"v_accvgpr_read_b32 v{4+r}, a{u+r}")
            g, u = 0, 4
        for q in range(2):
            a(f"v_pk_mul_f32 v[{g+2*q}:{g+2*q+1}], v[{g+2*q}:{g+2*q+1}], v[{u+2*q}:{u+2*q+1}]")
        for q in range(2):
            a(f"v_cvt_pk_bf16_f32 v{o+q}, v{g+2*q}, v{g+2*q+1}")
    def epi(par):
        cnt = 0
        groups = [(0, 1), (2, 3), (4, 5), (6, 7), (8,)] if par == 0 else [(0,), (1, 2), (3, 4), (5, 6), (7, 8)]
        for gr in groups:
            for b in range(4):
                o = T + 4*(cnt % 2); cnt += 1
                L = gr[0] + par; kap = L >> 1
                so = (52 if kap < 4 else 56) + b; im = (kap % 4)*1024
                if len(gr) == 2:
                    prod(gr[0], b, o); prod(gr[1], b, o+2)
                    a(f"buffer_store_dwordx4 v[{o}:{o+3}], v{VT}, s[8:11], s{so} offen offset:{im} sc1")
                else:
                    prod(gr[0], b, o)
                    a(f"buffer_store_dwordx2 v[{o}:{o+1}], v{VT}, s[8:11], s{so} offen offset:{im + 8*(L & 1)} sc1")
    a("s_bitcmp1_b32 s17, 0")
    a("s_cbranch_scc1 GG_ODD")
    h = list(a.hist); vm = list(a.vm)
    epi(0)
    a("s_branch GG_FIN")
    a.label("GG_ODD"); a.hist = h; a.vm = vm
    epi(1)
    a.label("GG_FIN"); a.hist = []
    a("s_lshl_b32 s20, s18, 2"); a("s_lshr_b32 s21, s17, 3"); a("s_add_u32 s20, s20, s21"); a("s_lshl_b32 s20, s20, 7")
    a("s_and_b32 s21, s17, 7"); a("s_lshl_b32 s21, s21, 2"); a("s_add_u32 s20, s20, s21"); a(f"s_add_u32 s20, s20, {OFF_FLG}")
    a("s_lshr_b32 s21, s4, 1"); a("s_lshl_b32 s21, s21, 2"); a("s_add_u32 s21, s21, s3"); a("s_lshl_b32 s21, s21, 7"); a(f"s_add_u32 s21, s21, {OFF_FLG}")
    ST0, ST1 = 42, 52
    a("s_lshl_b32 s31, s4, 3"); a("s_lshl_b32 s30, s16, 1"); a("s_add_u32 s31, s31, s30")
    a("s_mul_i32 s31, s31, 147456"); a("s_mul_i32 s30, s3, 36864"); a("s_add_u32 s31, s31, s30")
    a(f"s_add_u32 s31, s31, {OFF_HM}")
    for j in range(9):
        a(f"s_add_u32 s{SD+j}, s60, {j*128*1152}")
    for j in range(9):
        a(f"s_add_u32 s{ST0+j}, s31, {j*4096}")
    a(f"v_add_u32 v{VT+1}, 147456, v{VT}")
    a(f"v_lshrrev_b32 v2, 2, v{M}")
    a(f"v_mul_u32_u24 v{VA}, 288, v2")
    a(f"v_and_b32 v2, 3, v{M}"); a(f"v_lshl_add_u32 v{VA}, v2, 3, v{VA}")
    for sl in range(1, 4): a(f"v_add_u32 v{VA+sl}, {sl*SLOT}, v{VA}")
    a(f"v_lshlrev_b32 v{VT+2}, 2, v{M}")
    a(f"v_mov_b32 v{VT+3}, 1")
    a.wait_all()
    stamp(a, 3)
    a("s_barrier")
    a("s_cmp_lg_u32 s16, 0")
    a("s_cbranch_scc1 GG_W1")
    a("s_mov_b64 exec, 1")
    a(f"buffer_store_dword v{VT+3}, v{VT+2}, s[8:11], s20 offen sc1")
    a("s_mov_b64 exec, -1")
    poll(a, "GG_P1", 2, VT+2, 21, 8, 22)
    a.label("GG_W1"); a.hist = []; a.vm = []
    for st in (2, 3):
        for i in range(9): dma2(st, i)
    a("s_barrier")
    stamp(a, 4)
    PF2 = 12; AF2 = 72; BR2 = 108
    def tok2(ks, b):
        rb = BR2 + 8 * (ks % PF2) + 4*b
        a(f"buffer_load_dwordx4 v[{rb}:{rb+3}], v{VT+b}, s[8:11], s{ST0 + ks//4} offen offset:{(ks % 4)*1024} sc1", tag=("t2", ks))
    def trd2(n, q):
        ks, aa = divmod(n, 9); st, kk = divmod(ks, 4)
        off = kk*9216 + aa*32 + q*16*288
        a(f"ds_read_b64_tr_b16 v[{AF2+4*aa+2*q}:{AF2+4*aa+2*q+1}], v{VA+slot2(st)} offset:{off}", tag=("a2", n))
    def dm0(st, i): a(f"s_add_u32 m0, s51, {slot2(st)*SLOT + i*1024}")
    def dld(st, i): a(f"buffer_load_dwordx4 v{DV+i}, s[12:15], s{SD+st} offen lds", tag=("d2", st))
    PRO2 = 4
    for ks in range(PRO2):
        for b in range(2): tok2(ks, b)
    N2 = 36*9; D2 = 8
    ops = []
    for st in range(4, 9):
        for i in range(9): ops.append((36*st - D2 - 0.5, i, 36*(st-2) - D2, dld, (st, i)))
    for ks in range(PRO2, 36):
        for b in range(2): ops.append((9*ks, b, -1 if ks < PF2 else 9*(ks-PF2+1), tok2, (ks, b)))
    ops.sort(key=lambda o: (o[0], o[1]))
    for n in range(D2):
        trd2(n, 0); trd2(n, 1)
    armed = None
    for n in range(N2):
        ks, aa = divmod(n, 9)
        if (n + D2) % 36 == 0 and n + D2 < N2:
            st1 = (n + D2)//36
            assert not any(o[3] is dld and o[4][0] == st1 for o in ops) and not (armed and armed[0] == st1)
            a.wait_vm(("d2", st1))
            a("s_barrier")
        if aa == 0:
            assert not any(o[3] is tok2 and o[4][0] == ks for o in ops)
            a.wait_vm(("t2", ks))
        if n % 2 == 0: a.wait_lg(("a2", min(n+1, N2-1)))
        for b in range(2):
            t = 2*aa + b; rb = BR2 + 8 * (ks % PF2) + 4*b
            c = f"v[{4*t}:{4*t+3}]"
            a(f"v_mfma_f32_16x16x32_bf16 {c}, v[{AF2+4*aa}:{AF2+4*aa+3}], v[{rb}:{rb+3}], {c if ks else 0}")
            if n + D2 < N2: trd2(n + D2, b)
            if b == 0 or n % 2 == 1:
                if armed:
                    dld(*armed); armed = None
                else:
                    for o in ops:
                        if o[2] <= n:
                            ops.remove(o)
                            if o[3] is dld: dm0(*o[4]); armed = o[4]
                            else: o[3](*o[4])
                            break
    assert not ops and not armed
    stamp(a, 5)
    a("s_lshl_b32 s22, s4, 2"); a("s_add_u32 s22, s22, s5")
    a("s_lshl_b32 s23, s22, 2"); a("s_add_u32 s28, s23, s16"); a("s_lshl_b32 s28, s28, 2"); a("s_add_u32 s28, s28, s3")
    a("s_mul_i32 s28, s28, 18432"); a(f"s_add_u32 s28, s28, {OFF_PART}")
    for q in range(1, 5): a(f"s_add_u32 s{28+q}, s28, {4096*q}")
    a("s_cmp_eq_u32 s16, s3")
    a("s_cbranch_scc1 GG_OWN")
    h = list(a.hist)
    for t in range(18):
        a(f"buffer_store_dwordx4 v[{4*t}:{4*t+3}], v{VT}, s[8:11], s{28 + t//4} offen offset:{(t % 4)*1024} sc1")
    a("s_branch GG_PUB")
    a.label("GG_OWN"); a.hist = h
    OWN = 2 * SLOT
    a(f"v_add_u32 v{VA}, {OWN}, v{VT}")
    for t in range(18):
        a(f"ds_write_b128 v{VA}, v[{4*t}:{4*t+3}] offset:{1024*t}")
    a.label("GG_PUB"); a.hist = []
    a("s_min_u32 s23, s16, 1"); a("s_lshl_b32 s33, s16, 2"); a("s_add_u32 s33, s33, s23")
    a(f"v_and_b32 v2, 15, v{M}"); a("v_mul_u32_u24 v144, 1152, v2")
    a(f"v_lshrrev_b32 v2, 4, v{M}"); a("v_lshl_add_u32 v144, v2, 3, v144")
    a("v_lshlrev_b32 v145, 4, v2")
    a("s_lshl_b32 s34, s4, 7"); a("s_lshl_b32 s35, s3, 5"); a("s_add_u32 s34, s34, s35"); a("s_mul_i32 s34, s34, 1152")
    a("s_mul_i32 s35, s5, 288"); a("s_add_u32 s34, s34, s35")
    a("s_mul_i32 s35, s5, 576"); a(f"s_add_u32 s35, s35, {OFF_MODF + 4608}")
    XO = 42
    for i in range(5):
        a(f"s_add_u32 s36, s33, {i}")
        a("s_lshr_b32 s37, s36, 1"); a("s_and_b32 s36, s36, 1")
        a(f"s_mul_i32 s36, s36, {16*1152}"); a("s_lshl_b32 s38, s37, 5"); a("s_add_u32 s36, s36, s38")
        a(f"s_add_u32 s{XO+i}, s34, s36")
        a(f"s_add_u32 s39, s{XO+i}, {OFF_X1R}")
        a(f"buffer_load_dwordx2 v[{108+2*i}:{109+2*i}], v144, s[8:11], s39 offen")
        a("s_lshl_b32 s38, s37, 6"); a("s_add_u32 s38, s38, s35")
        a(f"buffer_load_dwordx4 v[{120+4*i}:{123+4*i}], v145, s[8:11], s38 offen")
    a("s_lshl_b32 s21, s22, 7"); a(f"s_add_u32 s21, s21, {OFF_FLG + 4096}")
    a("s_lshl_b32 s20, s3, 2"); a("s_add_u32 s20, s20, s21")
    a("s_lshl_b32 s36, s22, 2"); a("s_add_u32 s36, s36, s3"); a("s_lshl_b32 s36, s36, 2")
    a("s_lshl_b32 s37, s33, 10"); a(f"s_add_u32 s37, s37, {OFF_PART}")
    for i in range(1, 4):
        a(f"s_add_u32 s38, s3, {i}"); a("s_and_b32 s38, s38, 3"); a("s_add_u32 s38, s38, s36")
        a("s_mul_i32 s38, s38, 18432"); a(f"s_add_u32 s{47+i}, s38, s37")
    a(f"v_add_u32 v146, 4096, v{VT}")
    a("s_lshl_b32 s38, s33, 10"); a(f"s_add_u32 s38, s38, {OWN}"); a(f"v_add_u32 v147, s38, v{VT}")
    srd(a, 24, 62, 2048*1152)
    a.wait_all()
    stamp(a, 6)
    a("s_barrier")
    a("s_cmp_lg_u32 s16, 0")
    a("s_cbranch_scc1 GG_W2")
    a("s_mov_b64 exec, 1")
    a(f"buffer_store_dword v{VT+3}, v{VT+2}, s[8:11], s20 offen sc1")
    a("s_mov_b64 exec, -1")
    poll(a, "GG_P2", 2, VT+2, 21, 4, 22)
    a.label("GG_W2"); a.hist = []; a.vm = []
    a("s_barrier")
    for i in range(5):
        for q in range(3):
            r = 4*(4*i + q)
            a(f"buffer_load_dwordx4 v[{r}:{r+3}], v{VT if i < 4 else 146}, s[8:11], s{48+q} offen offset:{(i % 4)*1024} sc1", tag=("r", i))
    for i in range(5):
        r = 4*(4*i + 3)
        a(f"ds_read_b128 v[{r}:{r+3}], v147 offset:{1024*i}")
    a.wait_all(vm=False)
    for i in range(5):
        a.wait_vm(("r", i))
        r = 16*i
        for e in range(4):
            a(f"v_add_f32 v{r+e}, v{r+e}, v{r+4+e}"); a(f"v_add_f32 v{r+8+e}, v{r+8+e}, v{r+12+e}")
        for e in range(4): a(f"v_add_f32 v{r+e}, v{r+e}, v{r+8+e}")
        for e in range(0, 4, 2):
            rnd2(a, r+e, r+e+1, 80)
            a(f"v_mul_f32 v{r+e}, v{r+e}, v{120+4*i+e}"); a(f"v_mul_f32 v{r+e+1}, v{r+e+1}, v{120+4*i+e+1}")
            rnd2(a, r+e, r+e+1, 80)
            unpack(a, 80, 81, 108+2*i+e//2)
            a(f"v_add_f32 v{r+e}, v{r+e}, v80"); a(f"v_add_f32 v{r+e+1}, v{r+e+1}, v81")
            a(f"v_cvt_pk_bf16_f32 v{108+2*i+e//2}, v{r+e}, v{r+e+1}")
        a(f"buffer_store_dwordx2 v[{108+2*i}:{109+2*i}], v144, s[24:27], s{XO+i} offen")
    if STAMP:
        a.wait_all(); stamp(a, 7); stamp_store(a, 8, 4)
    a.label("GG_END")
    a("s_endpgm")
    return a.text(), dict(vgpr=256+DV2A+12, sgpr=64, accum=256), f"grid=(256,1,1) block=(256,1,1) lds={NSLOT*SLOT}"
def k5():
    a = Asm()
    SLOT = 36864; NSLOT = 4; PF = 12
    a("s_load_dwordx2 s[6:7], s[0:1], 136")
    a("s_load_dwordx2 s[12:13], s[0:1], 96")
    a("s_cmp_ge_u32 s2, 256")
    a("s_cbranch_scc1 K5_END")
    stamp(a, 0)
    M = 208
    a(f"v_and_b32 v{M}, 63, v0")
    a(f"v_lshrrev_b32 v{M+1}, 6, v0")
    a(f"v_readfirstlane_b32 s16, v{M+1}")
    a(f"v_mov_b32 v1, v{M}")
    a("s_and_b32 s17, s2, 7"); a("s_lshr_b32 s18, s2, 3")
    a("s_and_b32 s19, s18, 3")
    a("s_lshr_b32 s18, s18, 2")
    a("s_lshl_b32 s14, s19, 1"); a("s_add_u32 s14, s14, s18")
    a("s_sub_u32 s20, s14, 9"); a("s_cmp_ge_u32 s14, 9"); a("s_cselect_b32 s14, s20, s14")
    if EXP == "norot": a("s_mov_b32 s14, 0")
    a("s_and_b32 s20, s17, 1"); a("s_lshl_b32 s20, s20, 3"); a("s_add_u32 s18, s18, s20")
    a("s_lshr_b32 s17, s17, 1")
    DV = M+2
    dma_voffsets(a, DV, 1152)
    a(f"s_mul_i32 s28, s17, {1152*1152}"); a(f"s_mul_i32 s30, s16, {32*1152}"); a("s_add_u32 s28, s28, s30")
    a("s_mul_i32 s30, s19, 288"); a("s_add_u32 s28, s28, s30")
    a("s_mul_i32 s29, s16, 9216")
    VT = M+13
    a(f"v_lshlrev_b32 v{VT}, 4, v{M}")
    a("s_lshl_b32 s31, s18, 3"); a("s_lshl_b32 s30, s16, 1"); a("s_add_u32 s31, s31, s30")
    a("s_mul_i32 s31, s31, 147456"); a("s_mul_i32 s30, s17, 36864"); a("s_add_u32 s31, s31, s30")
    a(f"s_add_u32 s31, s31, {OFF_HM}")
    a("s_add_u32 s32, s31, 147456")
    SD, ST0, ST1 = 33, 42, 51
    rot_soffsets(a, 14, SD, ST0, ST1, 28, 31, 32, 128*1152, 22)
    a.wait_all()
    stamp(a, 1)
    srd(a, 8, 6, WS_REC)
    srd(a, 24, 12, 4608*1152)
    AF = 72; BR = 108
    VA = M+14; VS = M+18
    def dma(st, i):
        a(f"s_add_u32 m0, s29, {(st % NSLOT)*SLOT + i*1024}")
        a(f"buffer_load_dwordx4 v{DV+i}, s[24:27], s{SD+st} offen lds", tag=("d", st))
    def tok(ks, b):
        rb = BR + 8 * (ks % PF) + 4*b
        a(f"buffer_load_dwordx4 v[{rb}:{rb+3}], v{VT}, s[8:11], s{(ST0, ST1)[b] + ks//4} offen offset:{(ks % 4)*1024}", tag=("t", ks))
    def trd(ks, aa):
        st, kk = divmod(ks, 4); slot = st % NSLOT
        off = kk*9216 + aa*32
        a(f"ds_read_b64_tr_b16 v[{AF+4*aa}:{AF+4*aa+1}], v{VA+slot} offset:{off}", tag=("a", ks, aa))
        a(f"ds_read_b64_tr_b16 v[{AF+4*aa+2}:{AF+4*aa+3}], v{VA+slot} offset:{off+(16 if G16 else 8)*288}", tag=("a", ks, aa))
    def mfma(ks, aa, b):
        t = 2*aa + b; rb = BR + 8 * (ks % PF) + 4*b
        c = f"v[{4*t}:{4*t+3}]"
        a(f"v_mfma_f32_16x16x32_bf16 {c}, v[{AF+4*aa}:{AF+4*aa+3}], v[{rb}:{rb+3}], {c if ks else 0}")
    def between():
        stamp(a, 2)
        if G16:
            a(f"v_lshrrev_b32 v2, 2, v{M}")
        else:
            a(f"v_lshrrev_b32 v2, 5, v{M}"); a("v_lshlrev_b32 v2, 4, v2")
            a(f"v_bfe_u32 v3, v{M}, 4, 1"); a("v_lshl_add_u32 v2, v3, 2, v2")
            a(f"v_bfe_u32 v3, v{M}, 2, 2"); a("v_add_u32 v2, v2, v3")
        a(f"v_mul_u32_u24 v{VA}, 288, v2")
        a(f"v_and_b32 v2, 3, v{M}"); a(f"v_lshl_add_u32 v{VA}, v2, 3, v{VA}")
        a(f"v_add_u32 v{VA+1}, {SLOT}, v{VA}")
        a(f"v_add_u32 v{VA+2}, {2*SLOT}, v{VA}")
        a(f"v_add_u32 v{VA+3}, {3*SLOT}, v{VA}")
        a(f"v_and_b32 v2, 15, v{M}"); a(f"v_mul_u32_u24 v{VS}, 2304, v2")
        a(f"v_lshrrev_b32 v2, 4, v{M}"); a(f"v_lshl_add_u32 v{VS}, v2, 4, v{VS}")
        a("s_lshl_b32 s20, s17, 11"); a("s_lshl_b32 s21, s18, 7"); a("s_add_u32 s20, s20, s21")
        a("s_lshl_b32 s21, s16, 5"); a("s_add_u32 s20, s20, s21")
        a("s_mul_i32 s20, s20, 2304"); a("s_mul_i32 s21, s19, 576"); a("s_add_u32 s20, s20, s21")
        a(f"s_add_u32 s20, s20, {OFF_PART}")
        a(f"s_add_u32 s21, s20, {16*2304}")
    kloop(a, dma, tok, trd, mfma, PF, 4, (0, 1, 2, 3, 4, 5, 6, 7, 8), between)
    stamp(a, 5)
    for t in range(18):
        aa, b = divmod(t, 2)
        a(f"buffer_store_dwordx4 v[{4*t}:{4*t+3}], v{VS}, s[8:11], s{20+b} offen offset:{64*aa}")
    if STAMP:
        stamp(a, 6); a.wait_all(); stamp(a, 7); stamp_store(a, 8, 5)
    a.label("K5_END")
    a("s_endpgm")
    return a.text(), dict(vgpr=228, sgpr=60, accum=228), f"grid=(256,1,1) block=(256,1,1) lds={NSLOT*SLOT}"

def k6():
    a = Asm()
    a("s_load_dwordx2 s[6:7], s[0:1], 136")
    a("s_load_dwordx2 s[4:5], s[0:1], 120")
    a("s_cmp_ge_u32 s2, 576")
    a("s_cbranch_scc1 K6_END")
    stamp(a, 0)
    a("s_lshl_b32 s3, s2, 8"); a("v_add_u32 v1, s3, v0")
    a("v_lshlrev_b32 v2, 5, v1")
    a("v_lshlrev_b32 v3, 4, v1")
    a("s_mov_b32 s12, 0x38e38e4")
    a("v_mul_hi_u32 v4, s12, v1"); a("v_mul_u32_u24 v4, 72, v4"); a("v_sub_u32 v4, v1, v4")
    a("v_lshlrev_b32 v4, 5, v4")
    a.wait_all()
    srd(a, 8, 6, WS_REC)
    srd(a, 12, 4, 2048*1152)
    for s in range(4):
        a(f"s_mov_b32 s16, {OFF_PART + s*2048*2304}")
        a(f"buffer_load_dwordx4 v[{8+8*s}:{11+8*s}], v2, s[8:11], s16 offen")
        a(f"buffer_load_dwordx4 v[{12+8*s}:{15+8*s}], v2, s[8:11], s16 offen offset:16")
    a(f"s_mov_b32 s16, {OFF_X1R}")
    a("buffer_load_dwordx4 v[40:43], v3, s[8:11], s16 offen")
    a(f"s_mov_b32 s16, {OFF_MODF + 4608}")
    a("buffer_load_dwordx4 v[44:47], v4, s[8:11], s16 offen")
    a("buffer_load_dwordx4 v[48:51], v4, s[8:11], s16 offen offset:16")
    a.wait_all()
    stamp(a, 1)
    for e in range(8):
        a(f"v_add_f32 v{8+e}, v{8+e}, v{16+e}")
        a(f"v_add_f32 v{24+e}, v{24+e}, v{32+e}")
    for e in range(8):
        a(f"v_add_f32 v{8+e}, v{8+e}, v{24+e}")
    for e in range(0, 8, 2):
        rnd2(a, 8+e, 9+e, 5)
        a(f"v_mul_f32 v{8+e}, v{8+e}, v{44+e}"); a(f"v_mul_f32 v{9+e}, v{9+e}, v{45+e}")
        rnd2(a, 8+e, 9+e, 5)
        unpack(a, 5, 6, 40+e//2)
        a(f"v_add_f32 v{8+e}, v{8+e}, v5"); a(f"v_add_f32 v{9+e}, v{9+e}, v6")
        a(f"v_cvt_pk_bf16_f32 v{52+e//2}, v{8+e}, v{9+e}")
    a("buffer_store_dwordx4 v[52:55], v3, s[12:15], 0 offen")
    if STAMP:
        a.wait_all(); stamp(a, 2); stamp_store(a, 3, 6)
    a.label("K6_END")
    a("s_endpgm")
    return a.text(), dict(vgpr=56, sgpr=40, accum=56), "grid=(576,1,1) block=(256,1,1) lds=0"

HEADER = open("adaLN_cond__ssm_conv_s4__glu_gated_bilinear__prompt.s.ref").read().split("; Override launch")[0]

def build(kernels, path):
    out = HEADER
    bodies = []
    for name, fn in kernels:
        text, res, launch = fn()
        out += f"; @launch kernel={name} {launch}\n"
        bodies.append((name, text, res))
    out += '.amdgcn_target "amdgcn-amd-amdhsa--gfx950"\n.text\n'
    seen = set()
    for name, text, res in bodies:
        if name in seen: continue
        seen.add(name)
        out += kernel_header(name) + text
    out += '.section .rodata,"a"\n'
    seen = set()
    for name, text, res in bodies:
        if name in seen: continue
        seen.add(name)
        out += kernel_desc(name, res["vgpr"], 102 if STAMP else res["sgpr"], res["accum"])
    open(path, "w").write(out)

if __name__ == "__main__":
    if len(sys.argv) > 2 and sys.argv[2] == "stamp": STAMP = True
    if len(sys.argv) > 3: EXP = sys.argv[3]
    if EXP == "g32": G16 = False
    path = sys.argv[1] if len(sys.argv) > 1 else "adaLN_cond__ssm_conv_s4__glu_gated_bilinear__prompt.s"
    if EXP in ("sep", "g32", "norot", "notr", "stages"):
        build([("prep_kernel", k1), ("conv_kernel", k2), ("ln2_kernel", k3), ("gemm1_kernel", k4b if G16 else k4), ("gemm2_kernel", k5), ("fin_kernel", k6)], path)
    else:
        build([("prep_kernel", k1), ("conv_kernel", k2), ("ln2_kernel", k3), ("gg_kernel", kgg)], path)
```

```python
import sys
from asmlib import *

OFF_NT   = 0x000000
OFF_XT   = 0x240000
OFF_KC   = 0x480000
OFF_X1T  = 0x6C0000
OFF_H2P  = 0x900000
OFF_X1R  = 0xB40000
OFF_MODP = 0xD80000
OFF_MODF = 0xD90000
OFF_FLG  = 0xDA0000
OFF_HM   = 0xE00000
OFF_PART = 0x2000000
WS_REC   = 0x8000000
LOG2E = 0x3fb8aa3b
INV2PI = 0x3e22f983
def f32(x):
    import struct
    return struct.unpack("<I", struct.pack("<f", x))[0]

OFF_STAMP = 0x3800000
STAMP = False
G16 = True
EXP = None
def stamp(a, i):
    if not STAMP: return
    if i == 0:
        a("v_lshrrev_b32 v1, 6, v0"); a("v_readfirstlane_b32 s99, v1")
    a(f"s_memtime s[{64+4*i}:{65+4*i}]")
    a(f"s_memrealtime s[{66+4*i}:{67+4*i}]")
    a("s_waitcnt lgkmcnt(0)"); a.lg = []
def stamp_n(a, i):
    if EXP != "stages": stamp(a, i)
def stamp_m(a, i):
    if EXP not in ("ln2st", "g2st"): stamp(a, i)
def stamp_g(a, i):
    if EXP == "g2st":
        lg = list(a.lg); stamp(a, i)
def stamp_x(a, i):
    if EXP == "ln2st": stamp(a, i)
def stamp_store(a, n, kid, tidreg="v0"):
    if not STAMP: return
    a(f"s_lshl_b32 s100, {'s98' if kid == 1 else 's2'}, 11")
    a(f"s_lshl_b32 s101, s99, 7")
    a(f"s_add_u32 s100, s100, s101")
    a(f"s_add_u32 s100, s100, {OFF_STAMP + kid*0x200000}")
    a("s_mov_b64 exec, 1")
    a("v_mov_b32 v1, 0")
    for i in range(n):
        for q in range(4):
            a(f"v_mov_b32 v{4+q}, s{64+4*i+q}")
        a(f"buffer_store_dwordx4 v[4:7], v1, s[8:11], s100 offen offset:{16*i}")
        a("s_waitcnt vmcnt(0)")

def srd(a, d, lo, nrec):
    a(f"s_mov_b32 s{d}, s{lo}")
    a(f"s_and_b32 s{d+1}, s{lo+1}, 0xffff")
    a(f"s_mov_b32 s{d+2}, {nrec:#x}")
    a(f"s_mov_b32 s{d+3}, 0x00020000")

def unpack(a, dlo, dhi, src):
    a(f"v_lshlrev_b32 v{dlo}, 16, v{src}")
    a(f"v_and_b32 v{dhi}, 0xffff0000, v{src}")

def rnd1(a, r):
    a(f"v_cvt_pk_bf16_f32 v{r}, v{r}, v{r}")
    a(f"v_and_b32 v{r}, 0xffff0000, v{r}")

def rnd2(a, r0, r1, tmp):
    a(f"v_cvt_pk_bf16_f32 v{tmp}, v{r0}, v{r1}")
    unpack(a, r0, r1, tmp)

def row16_sum(a, r):
    for s in (8, 4, 2, 1):
        a(f"v_add_f32_dpp v{r}, v{r}, v{r} row_ror:{s} row_mask:0xf bank_mask:0xf")

N_LN1, N_MOD, N_KG, N_WARM = 128, 162, 576, 108
def k1():
    a = Asm()
    stamp(a, 0)
    a("s_load_dwordx2 s[6:7], s[0:1], 136")
    if STAMP: a("s_mov_b32 s98, s2")
    a(f"s_cmp_lt_u32 s2, {N_KG}")
    a("s_cbranch_scc1 K1_KGEN")
    a(f"s_cmp_ge_u32 s2, {N_LN1+N_MOD+N_KG}")
    a("s_cbranch_scc1 K1_WARM")
    a(f"s_sub_u32 s2, s2, {N_KG}")
    a(f"s_cmp_ge_u32 s2, {N_LN1}")
    a("s_cbranch_scc1 K1_MOD")
    PITCH = 1216; LN_N = 0; LN_X = 16 * PITCH
    a("s_load_dwordx2 s[4:5], s[0:1], 0")
    a("v_lshrrev_b32 v1, 4, v0")
    a("v_and_b32 v2, 15, v0")
    a("v_mul_u32_u24 v3, 1152, v1")
    a("v_lshl_add_u32 v3, v2, 3, v3")
    a("s_mul_i32 s3, s2, 18432")
    a.wait_all()
    srd(a, 12, 4, 2048*1152)
    srd(a, 8, 6, WS_REC)
    X = 10
    for k in range(9):
        a(f"buffer_load_dwordx2 v[{X+2*k}:{X+2*k+1}], v3, s[12:15], s3 offen offset:{128*k}", tag=("x", k))
    a(f"v_mul_u32_u24 v4, {PITCH}, v1")
    a("v_lshl_add_u32 v4, v2, 3, v4")
    F = 28
    for k in range(9):
        a.wait_vm(("x", k))
        for h in range(2):
            unpack(a, F+4*k+2*h, F+4*k+2*h+1, X+2*k+h)
        a(f"ds_write_b64 v4, v[{X+2*k}:{X+2*k+1}] offset:{LN_X+128*k}")
    stamp(a, 1)
    a(f"v_add_f32 v5, v{F}, v{F+1}")
    a(f"v_add_f32 v6, v{F+2}, v{F+3}")
    for i in range(4, 36, 2):
        a(f"v_add_f32 v5, v5, v{F+i}")
        a(f"v_add_f32 v6, v6, v{F+i+1}")
    a("v_add_f32 v5, v5, v6")
    row16_sum(a, 5)
    a(f"v_mul_f32 v5, {f32(1.0/576):#x}, v5")
    a("v_mov_b32 v6, 0"); a("v_mov_b32 v7, 0")
    for i in range(0, 36, 2):
        a(f"v_sub_f32 v8, v{F+i}, v5"); a(f"v_sub_f32 v9, v{F+i+1}, v5")
        a("v_fmac_f32 v6, v8, v8"); a("v_fmac_f32 v7, v9, v9")
    a("v_add_f32 v6, v6, v7")
    row16_sum(a, 6)
    a(f"v_mul_f32 v6, {f32(1.0/576):#x}, v6")
    rnd1(a, 6)
    a(f"v_add_f32 v6, {f32(1e-5):#x}, v6")
    rnd1(a, 6)
    a("v_sqrt_f32 v6, v6")
    rnd1(a, 6)
    a("v_rcp_f32 v7, v6")
    rnd1(a, 5)
    for k in range(9):
        for h in range(2):
            r0 = F+4*k+2*h; r1 = r0+1
            a(f"v_sub_f32 v{r0}, v{r0}, v5"); a(f"v_sub_f32 v{r1}, v{r1}, v5")
            rnd2(a, r0, r1, 8)
            a(f"v_mul_f32 v8, v{r0}, v7"); a(f"v_mul_f32 v9, v{r1}, v7")
            a(f"v_fma_f32 v{r0}, -v8, v6, v{r0}"); a(f"v_fma_f32 v{r1}, -v9, v6, v{r1}")
            a(f"v_fmac_f32 v8, v{r0}, v7"); a(f"v_fmac_f32 v9, v{r1}, v7")
            a(f"v_cvt_pk_bf16_f32 v{X+2*k+h}, v8, v9")
        a(f"ds_write_b64 v4, v[{X+2*k}:{X+2*k+1}] offset:{LN_N+128*k}")
    a("v_and_b32 v1, 63, v0")
    a("v_lshrrev_b32 v2, 6, v0")
    a("v_readfirstlane_b32 s16, v2")
    a("v_lshrrev_b32 v3, 4, v1")
    a("v_and_b32 v5, 1, v3")
    a("v_lshrrev_b32 v6, 1, v3")
    a("v_bfe_u32 v7, v1, 2, 2")
    a("v_and_b32 v8, 3, v1")
    a("v_lshl_add_u32 v7, v6, 3, v7")
    a(f"v_mul_u32_u24 v7, {PITCH}, v7")
    a("v_lshl_add_u32 v7, v5, 5, v7")
    a("v_lshl_add_u32 v7, v8, 3, v7")
    a("s_lshr_b32 s17, s16, 1")
    a("s_and_b32 s18, s16, 1")
    a(f"s_mul_i32 s19, s17, {LN_X}")
    a("s_mul_i32 s20, s18, 576")
    a("s_add_u32 s19, s19, s20")
    a("v_add_u32 v7, s19, v7")
    a("v_and_b32 v9, 15, v1")
    a("v_lshl_add_u32 v9, v5, 4, v9")
    a("v_lshlrev_b32 v9, 5, v9")
    a("v_lshl_add_u32 v9, v6, 4, v9")
    a(f"s_mul_i32 s21, s17, {OFF_XT - OFF_NT}")
    a("s_add_u32 s21, s21, s3")
    a("s_mul_i32 s22, s18, 9216")
    a("s_add_u32 s21, s21, s22")
    if OFF_NT: a(f"s_add_u32 s21, s21, {OFF_NT}")
    a("s_add_u32 s22, s21, 4096")
    a("s_add_u32 s23, s21, 8192")
    a.wait_all(vm=False)
    a("s_barrier")
    stamp(a, 2)
    for i in range(9):
        a(f"ds_read_b64_tr_b16 v[{F+4*i}:{F+4*i+1}], v7 offset:{64*i}", tag=("t", i))
        a(f"ds_read_b64_tr_b16 v[{F+4*i+2}:{F+4*i+3}], v7 offset:{64*i+4*PITCH}", tag=("t", i))
    for i in range(9):
        a.wait_lg(("t", i))
        a(f"buffer_store_dwordx4 v[{F+4*i}:{F+4*i+3}], v9, s[8:11], s{21+i//4} offen offset:{1024*(i%4)}")
    if STAMP:
        a.wait_all(); stamp(a, 3); stamp_store(a, 4, 1)
    a("s_endpgm")
    a.label("K1_MOD"); a.hist = []; a.vm = []; a.lg = []
    a("s_load_dwordx2 s[4:5], s[0:1], 112")
    a("s_load_dwordx2 s[16:17], s[0:1], 104")
    a(f"s_sub_u32 s3, s2, {N_LN1}")
    a("s_mov_b32 s20, 0")
    a("s_cmp_ge_u32 s3, 54"); a("s_cselect_b32 s20, 1, s20")
    a("s_cmp_ge_u32 s3, 108"); a("s_cselect_b32 s20, 2, s20")
    a("s_mul_i32 s21, s20, 54"); a("s_sub_u32 s21, s3, s21")
    a("v_lshrrev_b32 v1, 3, v0")
    a("v_and_b32 v2, 7, v0")
    a("v_mul_u32_u24 v3, 6912, v1")
    a("v_lshl_add_u32 v3, v2, 4, v3")
    a("v_lshlrev_b32 v4, 1, v1")
    a(f"s_mul_i32 s22, s20, {192*6912}")
    a("s_lshl_b32 s23, s21, 7")
    a("s_add_u32 s22, s22, s23")
    a("s_mul_i32 s23, s20, 384")
    a.wait_all()
    srd(a, 12, 4, 576*6912)
    srd(a, 24, 16, 1152)
    srd(a, 8, 6, WS_REC)
    for i in range(6):
        a(f"buffer_load_ushort v{10+i}, v4, s[24:27], s23 offen offset:{64*i}", tag="c")
    for i in range(6):
        a(f"buffer_load_dwordx4 v[{16+4*i}:{19+4*i}], v3, s[12:15], s22 offen", tag=("w", i))
        if i < 5: a(f"s_add_u32 s22, s22, {32*6912}")
    for j in range(8): a(f"v_mov_b32 v{40+j}, 0")
    a.wait_vm("c")
    for i in range(6):
        r = 10+i
        a(f"v_lshlrev_b32 v{r}, 16, v{r}")
        a(f"v_mul_f32 v5, {(LOG2E|0x80000000):#x}, v{r}")
        a("v_exp_f32 v5, v5")
        a("v_add_f32 v5, 1.0, v5")
        a("v_rcp_f32 v5, v5")
        a(f"v_mul_f32 v{r}, v{r}, v5")
        rnd1(a, r)
    for i in range(6):
        a.wait_vm(("w", i))
        for q in range(4):
            unpack(a, 5, 6, 16+4*i+q)
            a(f"v_fmac_f32 v{40+2*q}, v{10+i}, v5")
            a(f"v_fmac_f32 v{41+2*q}, v{10+i}, v6")
    stamp(a, 1)
    a("v_lshlrev_b32 v5, 8, v1")
    a("v_lshl_add_u32 v5, v2, 5, v5")
    a("ds_write_b128 v5, v[40:43]")
    a("ds_write_b128 v5, v[44:47] offset:16")
    a("v_lshlrev_b32 v6, 2, v0")
    a("v_lshrrev_b32 v7, 6, v0")
    a("v_readfirstlane_b32 s16, v7")
    a.wait_all(vm=False)
    a("s_barrier")
    stamp(a, 2)
    a("s_cmp_lg_u32 s16, 0")
    a("s_cbranch_scc1 K1_END")
    for i in range(32):
        a(f"ds_read_b32 v{10+i}, v6 offset:{256*i}", tag=("r", i))
    a.wait_all(vm=False)
    for st in (16, 8, 4, 2, 1):
        for i in range(st):
            a(f"v_add_f32 v{10+i}, v{10+i}, v{10+i+st}")
    a(f"s_mul_i32 s22, s20, {3456*4}")
    a("s_lshl_b32 s23, s21, 8")
    a("s_add_u32 s22, s22, s23")
    a(f"s_add_u32 s22, s22, {OFF_MODP}")
    a("buffer_store_dword v10, v6, s[8:11], s22 offen")
    if STAMP:
        a.wait_all(); stamp(a, 3); stamp_store(a, 4, 1)
    a("s_endpgm")
    a.label("K1_KGEN"); a.hist = []; a.vm = []; a.lg = []
    a("s_load_dwordx8 s[16:23], s[0:1], 8")
    a("s_load_dwordx4 s[24:27], s[0:1], 40")
    a("s_load_dwordx2 s[28:29], s[0:1], 56")
    a("s_mov_b32 s3, s2")
    a("v_and_b32 v1, 63, v0")
    a("v_lshrrev_b32 v2, 6, v0")
    a("v_lshrrev_b32 v3, 4, v1")
    a("v_and_b32 v4, 15, v0")
    a("v_and_b32 v5, 31, v0")
    a("v_lshl_add_u32 v5, v2, 5, v5")
    a("v_lshlrev_b32 v6, 4, v5")
    a("v_lshlrev_b32 v5, 1, v5")
    a("s_lshl_b32 s4, s3, 8")
    a("v_add_u32 v5, s4, v5")
    a("s_lshl_b32 s5, s3, 1")
    a("v_mov_b32 v15, s5")
    a.wait_all()
    a("global_load_ushort v7, v15, s[28:29]", tag="p")
    for q in range(6):
        a(f"global_load_ushort v{28+q}, v5, s[{16+2*q}:{17+2*q}]", tag="p")
    srd(a, 8, 6, WS_REC)
    a("v_and_b32 v12, 7, v4")
    a("v_lshrrev_b32 v13, 3, v4")
    a("v_lshl_add_u32 v8, v13, 7, v12")
    a("v_lshrrev_b32 v12, 2, v4"); a("v_lshlrev_b32 v12, 7, v12")
    a("v_and_b32 v13, 3, v4"); a("v_lshl_add_u32 v12, v13, 1, v12")
    a("v_add_u32 v12, 256, v12")
    a("v_subrev_u32 v13, 8, v4"); a("v_lshrrev_b32 v13, 1, v13"); a("v_lshlrev_b32 v13, 7, v13")
    a("v_and_b32 v14, 1, v4"); a("v_lshl_add_u32 v13, v14, 2, v13")
    a("v_add_u32 v13, 512, v13")
    a("v_cmp_gt_u32 vcc, 8, v4")
    a("v_cndmask_b32 v9, v13, v12, vcc")
    a("v_lshlrev_b32 v12, 7, v4"); a("v_add_u32 v12, 1024, v12")
    a("v_mov_b32 v13, 2048")
    a("v_cndmask_b32 v10, v13, v12, vcc")
    a("v_lshlrev_b32 v11, 3, v4")
    HT = 12288; T16 = 12544; PT = 16896
    a("v_lshlrev_b32 v12, 2, v4")
    for T in range(3):
        a(f"ds_write_b32 v12, v{8+T} offset:{HT+64*T}")
    for T in range(4):
        a(f"v_cvt_f32_u32 v{8+T}, v{8+T}")
    a("v_lshlrev_b32 v12, 9, v2"); a("v_lshl_add_u32 v12, v3, 6, v12")
    a("s_mov_b32 s30, 0x07060302")
    a.wait_vm("p")
    stamp(a, 1)
    a("v_lshlrev_b32 v7, 16, v7")
    a(f"v_mul_f32 v7, {LOG2E:#x}, v7")
    a("v_exp_f32 v7, v7")
    rnd1(a, 7)
    for q in range(6): a(f"v_lshlrev_b32 v{28+q}, 16, v{28+q}")
    for q in range(4): a(f"v_mul_f32 v{28+q}, v7, v{28+q}")
    a(f"v_mul_f32 v36, {LOG2E:#x}, v28")
    a(f"v_mul_f32 v37, {INV2PI:#x}, v29")
    a("v_mul_f32 v38, v32, v30"); a("v_mul_f32 v39, v32, v31")
    a("v_fma_f32 v38, -v33, v31, v38")
    a("v_fmac_f32 v39, v33, v30")
    a(f"ds_write_b128 v6, v[36:39] offset:{PT}")
    P = 64
    for st in range(8):
        a(f"ds_read_b128 v[{P+4*st}:{P+4*st+3}], v12 offset:{PT+256*(st >> 2)+16*(st & 3)}", tag=("pp", st))
    FR = 96
    def fr(kp, T, lo): return FR + 8*T + 4*lo
    def valu(st):
        kp, e2 = divmod(st, 4)
        pr = P + 4*st; E = 36; Er = 48
        L = []
        for T in (3, 0, 1, 2):
            L.append(f"v_mul_f32 v{E+3*T}, v{pr}, v{8+T}")
            L.append(f"v_mul_f32 v{E+3*T+1}, v{pr+1}, v{8+T}")
        for T in (3, 0, 1, 2):
            L.append(f"v_exp_f32 v{E+3*T}, v{E+3*T}")
            L.append(f"v_fract_f32 v{E+3*T+1}, v{E+3*T+1}")
        for T in (3, 0, 1, 2):
            L.append(f"v_cos_f32 v{E+3*T+2}, v{E+3*T+1}")
            L.append(f"v_sin_f32 v{E+3*T+1}, v{E+3*T+1}")
        for T in (3, 0, 1, 2):
            L.append(f"v_mul_f32 v{E+3*T+1}, v{E+3*T}, v{E+3*T+1}")
            L.append(f"v_mul_f32 v{E+3*T}, v{E+3*T}, v{E+3*T+2}")
        L.append(f"v_mul_f32 v{Er}, v{pr+2}, v{E+9}")
        L.append(f"v_mul_f32 v{Er+1}, v{pr+2}, v{E+10}")
        L.append(f"v_fma_f32 v{Er}, -v{pr+3}, v{E+10}, v{Er}")
        L.append(f"v_fma_f32 v{Er+1}, -v{pr+3}, v{E+9}, -v{Er+1}")
        for T in range(4):
            r = Er if T == 3 else E+3*T
            L.append(f"v_perm_b32 v{fr(kp,T,0)+e2}, v{r+1}, v{r}, s30")
            L.append(f"v_and_b32 v50, 0xffff0000, v{r}")
            L.append(f"v_and_b32 v51, 0xffff0000, v{r+1}")
            L.append(f"v_sub_f32 v50, v{r}, v50")
            L.append(f"v_sub_f32 v51, v{r+1}, v51")
            L.append(f"v_perm_b32 v{fr(kp,T,1)+e2}, v51, v50, s30")
        return L
    def mf(kp):
        L = []
        for pi, (al, bl) in enumerate(((1, 0), (0, 1), (0, 0))):
            for T in range(3):
                c = f"v[{16+4*T}:{19+4*T}]"
                A = fr(kp, T, al); B = fr(kp, 3, bl)
                L.append(f"v_mfma_f32_16x16x32_bf16 {c}, v[{A}:{A+3}], v[{B}:{B+3}], {c if (kp or pi) else 0}")
        return L
    for st in range(8):
        a.wait_lg(("pp", st))
        Mf = mf(0) if st == 4 else []
        for idx, ins in enumerate(valu(st)):
            if Mf and idx % 3 == 2: a(Mf.pop(0))
            a(ins)
    for ins in mf(1): a(ins)
    stamp(a, 2)
    a("v_mul_u32_u24 v12, 3072, v2")
    a("v_lshl_add_u32 v12, v1, 4, v12")
    for T in range(3):
        a(f"ds_write_b128 v12, v[{16+4*T}:{19+4*T}] offset:{1024*T}")
    a("v_readfirstlane_b32 s16, v2")
    a("v_lshlrev_b32 v13, 4, v0")
    a("v_lshlrev_b32 v14, 6, v2")
    a("v_lshl_add_u32 v14, v3, 4, v14")
    a.wait_all(vm=False)
    a("s_barrier")
    a("s_cmp_eq_u32 s16, 3")
    a("s_cbranch_scc1 K1_KG_C")
    for w in range(4):
        a(f"ds_read_b128 v[{16+4*w}:{19+4*w}], v13 offset:{3072*w}")
    a(f"ds_read_b128 v[32:35], v14 offset:{HT}")
    a.wait_all(vm=False)
    for r in range(4):
        a(f"v_add_f32 v{16+r}, v{16+r}, v{20+r}")
        a(f"v_add_f32 v{24+r}, v{24+r}, v{28+r}")
        a(f"v_lshl_add_u32 v{32+r}, v4, 3, v{32+r}")
    for r in range(4):
        a(f"v_add_f32 v{16+r}, v{16+r}, v{24+r}")
        a(f"v_lshlrev_b32 v{32+r}, 1, v{32+r}")
    for r in range(4):
        a(f"v_cvt_pk_bf16_f32 v{16+r}, v{16+r}, v{16+r}")
    for r in range(4):
        a(f"ds_write_b16 v{32+r}, v{16+r} offset:{T16}")
    a.label("K1_KG_C"); a.fence(4)
    a("v_lshlrev_b32 v12, 3, v0")
    for e in range(8):
        a(f"v_add_u32 v{16+e}, {e}, v12")
        a(f"v_cvt_f32_u32 v{16+e}, v{16+e}")
    for e in range(0, 8, 2):
        rnd2(a, 16+e, 17+e, 13)
    for e in range(8):
        a(f"v_cvt_u32_f32 v{16+e}, v{16+e}")
        a(f"v_lshlrev_b32 v{16+e}, 1, v{16+e}")
    a("v_lshlrev_b32 v12, 4, v0")
    a("s_lshl_b32 s4, s3, 12")
    a(f"s_add_u32 s4, s4, {OFF_KC}")
    a.wait_all(vm=False)
    a("s_barrier")
    for e in range(8):
        a(f"ds_read_u16 v{24+e}, v{16+e} offset:{T16}")
    a.wait_all(vm=False)
    for e in range(4):
        a(f"v_lshl_or_b32 v{32+e}, v{25+2*e}, 16, v{24+2*e}")
    a("buffer_store_dwordx4 v[32:35], v12, s[8:11], s4 offen")
    if STAMP:
        a.wait_all(); stamp(a, 3); stamp_store(a, 4, 1)
    a.label("K1_END")
    a("s_endpgm")
    a.label("K1_WARM"); a.hist = []; a.vm = []; a.lg = []
    a(f"s_cmp_ge_u32 s2, {N_LN1+N_MOD+N_KG+N_WARM}")
    a("s_cbranch_scc1 K1_END")
    a("s_load_dwordx4 s[12:15], s[0:1], 80")
    a("s_load_dwordx2 s[16:17], s[0:1], 96")
    a(f"s_sub_u32 s3, s2, {N_LN1+N_MOD+N_KG}")
    a("v_lshlrev_b32 v1, 4, v0")
    a.wait_all()
    a("s_cmp_ge_u32 s3, 36"); a("s_cselect_b32 s12, s14, s12"); a("s_cselect_b32 s13, s15, s13")
    a("s_cselect_b32 s18, 36, 0")
    a("s_cmp_ge_u32 s3, 72"); a("s_cselect_b32 s12, s16, s12"); a("s_cselect_b32 s13, s17, s13")
    a("s_cselect_b32 s18, 72, s18")
    a("s_sub_u32 s3, s3, s18"); a("s_mul_i32 s3, s3, 147456")
    srd(a, 8, 12, 576*9216)
    for i in range(36):
        a(f"buffer_load_dwordx4 v[{4+4*(i % 18)}:{7+4*(i % 18)}], v1, s[8:11], s3 offen")
        a("s_add_u32 s3, s3, 4096")
        if i % 6 == 5: a("s_waitcnt vmcnt(2)")
    a("s_endpgm")
    return a.text(), dict(vgpr=128, sgpr=100 if STAMP else 40, accum=128), f"grid=({N_LN1+N_MOD+N_KG+N_WARM},1,1) block=(256,1,1) lds=38912"

def k2():
    a = Asm()
    CS = 4160; KB = 4 * CS; HB0 = 4 * KB; HS = 4640
    a("s_load_dwordx2 s[6:7], s[0:1], 136")
    a("s_load_dwordx2 s[4:5], s[0:1], 64")
    a("s_cmp_gt_u32 s2, 144")
    a("s_cbranch_scc1 K2_END")
    a("s_cmp_eq_u32 s2, 144")
    a("s_cbranch_scc1 K2_MODF")
    stamp(a, 0)
    a("v_and_b32 v1, 63, v0")
    a("v_lshrrev_b32 v2, 6, v0")
    a("v_readfirstlane_b32 s16, v2")
    a("v_and_b32 v3, 7, v1")
    a("v_lshrrev_b32 v4, 3, v1")
    a("v_lshrrev_b32 v5, 1, v3")
    a("s_lshl_b32 s17, s2, 2")
    a("s_add_u32 s18, s17, s16")
    a.wait_all()
    srd(a, 8, 6, WS_REC)
    a("v_mul_u32_u24 v6, 18432, v4")
    a("v_lshl_add_u32 v6, v3, 4, v6")
    a(f"s_mul_i32 s19, s16, {32*18432}")
    a("s_lshl_b32 s20, s17, 5")
    a("s_add_u32 s19, s19, s20")
    if OFF_NT: a(f"s_add_u32 s19, s19, {OFF_NT}")
    NR = 64
    for i in range(4):
        a(f"buffer_load_dwordx4 v[{NR+4*i}:{NR+4*i+3}], v6, s[8:11], s19 offen", tag=("n", i))
        if i < 3: a(f"s_add_u32 s19, s19, {8*18432}")
    a("v_add_u32 v7, s17, v5"); a("v_lshlrev_b32 v7, 2, v7")
    a("s_lshl_b32 s20, s18, 2"); a("v_mov_b32 v8, s20")
    a(f"s_mov_b32 s21, {OFF_MODP}")
    for ks in range(3):
        a(f"buffer_load_dword v{80+ks}, v7, s[8:11], s21 offen", tag="m")
        a(f"buffer_load_dword v{83+ks}, v7, s[8:11], s21 offen offset:2304", tag="m")
        a(f"s_add_u32 s22, s21, 4608")
        a(f"buffer_load_dword v{86+ks}, v8, s[8:11], s22 offen", tag="m")
        if ks < 2: a(f"s_add_u32 s21, s21, {3456*4}")
    a("s_lshl_b32 s20, s18, 1"); a("v_mov_b32 v9, s20")
    a("global_load_ushort v89, v9, s[4:5]", tag="m")
    a("v_lshlrev_b32 v10, 4, v1")
    a("v_subrev_u32 v11, 4, v10")
    a("s_lshl_b32 s21, s18, 12")
    a(f"s_add_u32 s21, s21, {OFF_KC}")
    a("s_sub_u32 s22, s21, 4")
    KR = 96
    for i in range(4):
        a(f"buffer_load_dwordx4 v[{KR+4*i}:{KR+4*i+3}], v10, s[8:11], s21 offen offset:{1024*i}", tag=("k", i))
        a(f"buffer_load_dword v{KR+16+i}, v10, s[8:11], s22 offen offset:{1024*i}", tag=("k", i))
    a("v_and_b32 v12, 15, v1")
    a("v_lshrrev_b32 v13, 4, v1")
    a("v_mul_u32_u24 v14, 18432, v12")
    a("v_lshl_add_u32 v14, v13, 3, v14")
    a("s_lshl_b32 s23, s18, 5")
    a(f"s_add_u32 s24, s23, {OFF_XT}")
    XR = 200
    for jt in range(8):
        a(f"buffer_load_dwordx2 v[{XR+2*jt}:{XR+2*jt+1}], v14, s[8:11], s24 offen", tag="x")
        if jt < 7: a(f"s_add_u32 s24, s24, {16*18432}")
    a("v_mov_b32 v16, 0"); a("v_mov_b32 v17, 0")
    a(f"s_mul_i32 s25, s16, {HS}"); a(f"s_add_u32 s25, s25, {HB0}")
    a(f"s_mul_i32 s26, s16, {KB}")
    a("v_lshlrev_b32 v15, 3, v1"); a("v_add_u32 v15, s25, v15")
    a("ds_write_b64 v15, v[16:17]")
    a(f"v_mul_u32_u24 v15, {CS}, v13"); a("v_lshl_add_u32 v15, v12, 2, v15"); a("v_add_u32 v15, s26, v15")
    a("ds_write_b32 v15, v16")
    a.wait_vm("m")
    stamp(a, 1)
    for b in (80, 83, 86):
        a(f"v_add_f32 v{b}, v{b}, v{b+1}"); a(f"v_add_f32 v{b}, v{b}, v{b+2}")
        rnd1(a, b)
    a("v_add_f32 v83, 1.0, v83"); rnd1(a, 83)
    a("v_lshlrev_b32 v57, 16, v89")
    a("v_mov_b32 v56, v86")
    a(f"v_mul_u32_u24 v15, {HS}, v5")
    a("v_and_b32 v18, 1, v3")
    a("v_lshl_add_u32 v15, v18, 4, v15")
    a("v_lshl_add_u32 v15, v4, 5, v15")
    a("s_lshl_b32 s27, s16, 10"); a(f"s_add_u32 s27, s27, {HB0+512}")
    a("v_add_u32 v15, s27, v15")
    for i in range(4):
        for q in range(4):
            r = NR+4*i+q
            unpack(a, 18, 19, r)
            a("v_mul_f32 v18, v18, v83"); a("v_mul_f32 v19, v19, v83")
            rnd2(a, 18, 19, 20)
            a("v_add_f32 v18, v18, v80"); a("v_add_f32 v19, v19, v80")
            a(f"v_cvt_pk_bf16_f32 v{r}, v18, v19")
        a(f"ds_write_b128 v15, v[{NR+4*i}:{NR+4*i+3}] offset:{256*i}")
    a("v_add_u32 v15, s26, v10")
    a("v_add_u32 v21, 4, v15")
    a("v_cmp_eq_u32 vcc, 0, v1")
    for i in range(4):
        a.wait_vm(("k", i))
        d = KR+4*i; pv = KR+16+i
        if i == 0: a(f"v_cndmask_b32 v{pv}, v{pv}, v16, vcc")
        a(f"v_alignbit_b32 v24, v{d}, v{pv}, 16")
        for q in range(1, 4): a(f"v_alignbit_b32 v{24+q}, v{d+q}, v{d+q-1}, 16")
        o = 32 + 1024*i
        a(f"ds_write_b128 v15, v[{d}:{d+3}] offset:{o}")
        a(f"ds_write_b128 v15, v[24:27] offset:{o+CS}")
        a(f"v_add_u32 v22, {o+2*CS}, v21")
        a(f"v_add_u32 v23, {o+3*CS}, v21")
        a(f"ds_write2_b32 v22, v{d}, v{d+1} offset0:0 offset1:1")
        a(f"ds_write2_b32 v22, v{d+2}, v{d+3} offset0:2 offset1:3")
        a(f"ds_write2_b32 v23, v24, v25 offset0:0 offset1:1")
        a(f"ds_write2_b32 v23, v26, v27 offset0:2 offset1:3")
    a("v_lshlrev_b32 v18, 5, v12"); a("v_lshl_add_u32 v18, v13, 4, v18")
    a("s_add_u32 s27, s25, 32"); a("v_add_u32 v18, s27, v18")
    a("v_bfe_u32 v19, v1, 2, 2"); a(f"v_mul_u32_u24 v19, {CS}, v19")
    a("v_and_b32 v20, 3, v1"); a("v_lshl_add_u32 v19, v20, 3, v19")
    a("v_lshlrev_b32 v20, 4, v13"); a("v_sub_u32 v19, v19, v20")
    a("s_add_u32 s27, s26, 56"); a("v_add_u32 v19, s27, v19")
    a("v_lshlrev_b32 v20, 5, v12"); a("v_lshl_add_u32 v20, v13, 3, v20")
    a("s_add_u32 s27, s25, 512"); a("v_add_u32 v20, s27, v20")
    ACC = 24
    a.wait_all(vm=False)
    a("s_barrier")
    stamp(a, 2)
    for r in range(32): a(f"v_mov_b32 v{ACC+r}, 0")
    BUF = [(64, 96), (128, 160)]
    def loads(r):
        Bb, Ab = BUF[r & 1]
        L = []
        for u in range(8):
            q = 8*u - r
            L.append(f"ds_read_b128 v[{Bb+4*u}:{Bb+4*u+3}], v18 offset:{64*(q+7)}")
        for aa in range(8):
            m = r + 8*aa
            L.append(f"ds_read_b64_tr_b16 v[{Ab+4*aa}:{Ab+4*aa+1}], v19 offset:{64*m+8}")
            L.append(f"ds_read_b64_tr_b16 v[{Ab+4*aa+2}:{Ab+4*aa+3}], v19 offset:{64*m}")
        return L
    for s in loads(0): a(s)
    for r in range(8):
        a.wait_all(vm=False)
        Bb, Ab = BUF[r & 1]
        nxt = loads(r+1) if r < 7 else [f"ds_read_b64 v[{216+2*jt}:{217+2*jt}], v20 offset:{512*jt}" for jt in range(8)]
        for aa in range(8):
            for jt in range(aa, 8):
                u = jt - aa
                a(f"v_mfma_f32_16x16x32_bf16 v[{ACC+4*jt}:{ACC+4*jt+3}], v[{Ab+4*aa}:{Ab+4*aa+3}], v[{Bb+4*u}:{Bb+4*u+3}], v[{ACC+4*jt}:{ACC+4*jt+3}]")
                if nxt: a(nxt.pop(0))
    a.wait_all()
    stamp(a, 3)
    a(f"s_add_u32 s24, s23, {OFF_X1T}")
    for jt in range(8):
        for h in range(2):
            y0 = ACC+4*jt+2*h; y1 = y0+1
            rnd2(a, y0, y1, 64)
            unpack(a, 65, 66, 216+2*jt+h)
            a("v_mul_f32 v65, v65, v57"); a("v_mul_f32 v66, v66, v57")
            rnd2(a, 65, 66, 64)
            a(f"v_add_f32 v{y0}, v{y0}, v65"); a(f"v_add_f32 v{y1}, v{y1}, v66")
            rnd2(a, y0, y1, 64)
            a(f"v_mul_f32 v{y0}, v{y0}, v56"); a(f"v_mul_f32 v{y1}, v{y1}, v56")
            rnd2(a, y0, y1, 64)
            unpack(a, 65, 66, XR+2*jt+h)
            a(f"v_add_f32 v{y0}, v{y0}, v65"); a(f"v_add_f32 v{y1}, v{y1}, v66")
            a(f"v_cvt_pk_bf16_f32 v{XR+2*jt+h}, v{y0}, v{y1}")
        a(f"buffer_store_dwordx2 v[{XR+2*jt}:{XR+2*jt+1}], v14, s[8:11], s24 offen")
        if jt < 7: a(f"s_add_u32 s24, s24, {16*18432}")
    if STAMP:
        stamp(a, 4); a.wait_all(); stamp(a, 5); stamp_store(a, 6, 2)
    a("s_endpgm")
    a.label("K2_MODF"); a.hist = []; a.vm = []; a.lg = []
    a.wait_all()
    srd(a, 8, 6, WS_REC)
    a("v_lshlrev_b32 v1, 2, v0")
    a("v_lshlrev_b32 v2, 4, v0")
    for q in range(4): a(f"v_mov_b32 v{4+q}, 0")
    a(f"s_mov_b32 s20, {OFF_FLG}")
    a(f"s_mov_b32 s21, {OFF_FLG + 8192}")
    for q in range(4):
        a(f"buffer_store_dwordx4 v[4:7], v2, s[8:11], s{20 + q//2} offen" + (" offset:0" if q % 2 == 0 else ""))
        if q % 2 == 0: a("v_add_u32 v2, 4096, v2")
        else: a("v_subrev_u32 v2, 4096, v2")
    for i in range(7):
        for ks in range(3):
            a(f"s_mov_b32 s20, {OFF_MODP + ks*3456*4 + 1728*4 + 1024*i}")
            a(f"buffer_load_dword v{10+3*i+ks}, v1, s[8:11], s20 offen")
    a.wait_all()
    for i in range(7):
        b = 10+3*i
        a(f"v_add_f32 v{b}, v{b}, v{b+1}"); a(f"v_add_f32 v{b}, v{b}, v{b+2}")
        rnd1(a, b)
        a(f"v_add_f32 v{b+1}, 1.0, v{b}")
        rnd1(a, b+1)
        a(f"v_add_u32 v2, {256*i}, v0")
        a("v_subrev_u32 v3, 576, v2")
        a("v_cmp_gt_u32 vcc, 576, v3")
        a(f"v_cndmask_b32 v{b}, v{b}, v{b+1}, vcc")
        a(f"s_mov_b32 s20, {OFF_MODF + 1024*i}")
        if i == 6:
            a("v_cmp_gt_u32 vcc, 1728, v2")
            a("s_and_saveexec_b64 s[22:23], vcc")
            a("s_cbranch_execz K2_END")
        a(f"buffer_store_dword v{b}, v1, s[8:11], s20 offen")
    a.label("K2_END")
    a("s_endpgm")
    return a.text(), dict(vgpr=232, sgpr=40, accum=232), f"grid=(145,1,1) block=(256,1,1) lds={HB0+4*HS}"

def k3():
    a = Asm()
    RED = 18432
    a("s_load_dwordx2 s[6:7], s[0:1], 136")
    a("s_cmp_ge_u32 s2, 128")
    a("s_cbranch_scc1 K3_END")
    stamp(a, 0)
    a("v_and_b32 v1, 63, v0")
    a("v_lshrrev_b32 v2, 6, v0")
    a("v_readfirstlane_b32 s16, v2")
    a("v_lshlrev_b32 v3, 4, v1")
    a("v_and_b32 v4, 15, v1")
    a("v_lshrrev_b32 v5, 4, v1")
    a("s_mul_i32 s17, s16, 3072")
    a("s_mul_i32 s18, s2, 18432")
    a("s_add_u32 s18, s18, s17")
    a(f"s_add_u32 s18, s18, {OFF_X1T}")
    a.wait_all()
    srd(a, 8, 6, WS_REC)
    a("s_mov_b32 m0, s17")
    for i in range(3):
        a(f"buffer_load_dwordx4 v3, s[8:11], s18 offen offset:{1024*i} lds", tag="x")
    a("s_mul_i32 s19, s16, 384")
    a(f"s_add_u32 s19, s19, {OFF_MODF}")
    a("v_lshlrev_b32 v6, 5, v5")
    SB = 40; CB = 64
    for i in range(3):
        for h in range(2):
            a(f"buffer_load_dwordx4 v[{SB+8*i+4*h}:{SB+8*i+4*h+3}], v6, s[8:11], s19 offen offset:{128*i+16*h}", tag="m")
            a(f"buffer_load_dwordx4 v[{CB+8*i+4*h}:{CB+8*i+4*h+3}], v6, s[8:11], s19 offen offset:{2304+128*i+16*h}", tag="m")
    a("v_bfe_u32 v7, v1, 2, 2"); a("v_lshlrev_b32 v7, 5, v7")
    a("v_and_b32 v8, 3, v1"); a("v_lshl_add_u32 v7, v8, 3, v7")
    a("v_lshl_add_u32 v7, v5, 8, v7")
    a("v_add_u32 v7, s17, v7")
    a.wait_vm("x")
    stamp(a, 1)
    X = 10
    for i in range(3):
        a(f"ds_read_b64_tr_b16 v[{X+4*i}:{X+4*i+1}], v7 offset:{1024*i}", tag=("t", i))
        a(f"ds_read_b64_tr_b16 v[{X+4*i+2}:{X+4*i+3}], v7 offset:{1024*i+128}", tag=("t", i))
    a("v_mul_u32_u24 v8, 1152, v4"); a("v_lshl_add_u32 v8, v5, 4, v8")
    a("s_mul_i32 s20, s2, 18432"); a("s_mul_i32 s21, s16, 192"); a("s_add_u32 s20, s20, s21")
    a(f"s_add_u32 s20, s20, {OFF_X1R}")
    F = 88
    for i in range(3):
        a.wait_lg(("t", i))
        a(f"buffer_store_dwordx4 v[{X+4*i}:{X+4*i+3}], v8, s[8:11], s20 offen offset:{64*i}")
        for q in range(4): unpack(a, F+8*i+2*q, F+8*i+2*q+1, X+4*i+q)
    def xreduce(r, off):
        a(f"v_mov_b32 v24, v{r}")
        a(f"v_permlane32_swap_b32 v24, v{r}")
        a(f"v_add_f32 v{r}, v{r}, v24")
        a(f"v_mov_b32 v24, v{r}")
        a(f"v_permlane16_swap_b32 v24, v{r}")
        a(f"v_add_f32 v{r}, v{r}, v24")
        a(f"ds_write_b32 v22, v{r} offset:{off}")
        a.wait_all(vm=False)
        a("s_barrier")
        a(f"ds_read_b128 v[24:27], v23 offset:{off}")
        a(f"ds_read_b64 v[28:29], v23 offset:{off+16}")
        a.wait_all(vm=False)
        a("v_add_f32 v24, v24, v25"); a("v_add_f32 v26, v26, v27"); a("v_add_f32 v28, v28, v29")
        a("v_add_f32 v24, v24, v26"); a(f"v_add_f32 v{r}, v24, v28")
    a("v_lshlrev_b32 v23, 5, v4")
    a("v_lshl_add_u32 v22, v2, 2, v23")
    a(f"v_add_f32 v30, v{F}, v{F+1}"); a(f"v_add_f32 v31, v{F+2}, v{F+3}")
    for i in range(4, 24, 2):
        a(f"v_add_f32 v30, v30, v{F+i}"); a(f"v_add_f32 v31, v31, v{F+i+1}")
    a("v_add_f32 v30, v30, v31")
    xreduce(30, RED)
    a(f"v_mul_f32 v30, {f32(1.0/576):#x}, v30")
    a("v_mov_b32 v31, 0"); a("v_mov_b32 v32, 0")
    for i in range(0, 24, 2):
        a(f"v_sub_f32 v33, v{F+i}, v30"); a(f"v_sub_f32 v34, v{F+i+1}, v30")
        a("v_fmac_f32 v31, v33, v33"); a("v_fmac_f32 v32, v34, v34")
    a("v_add_f32 v31, v31, v32")
    xreduce(31, RED + 512)
    a(f"v_mul_f32 v31, {f32(1.0/576):#x}, v31")
    rnd1(a, 31)
    a(f"v_add_f32 v31, {f32(1e-5):#x}, v31")
    rnd1(a, 31)
    a("v_sqrt_f32 v31, v31")
    rnd1(a, 31)
    a("v_rcp_f32 v32, v31")
    rnd1(a, 30)
    if G16:
        a("v_lshlrev_b32 v9, 4, v1")
        a("s_mul_i32 s20, s2, 18432"); a("s_add_u32 s20, s20, s17")
    else:
        a("v_lshlrev_b32 v9, 9, v5"); a("v_lshl_add_u32 v9, v4, 4, v9")
        a("s_lshr_b32 s20, s2, 1"); a("s_mul_i32 s20, s20, 36864")
        a("s_and_b32 s21, s2, 1"); a("s_lshl_b32 s21, s21, 8"); a("s_add_u32 s20, s20, s21")
        a("s_mul_i32 s21, s16, 6144"); a("s_add_u32 s20, s20, s21")
    a(f"s_add_u32 s20, s20, {OFF_H2P}")
    a("s_add_u32 s21, s20, 4096")
    stamp(a, 2)
    a.wait_vm("m")
    for i in range(3):
        for q in range(4):
            r0 = F+8*i+2*q; r1 = r0+1
            a(f"v_sub_f32 v{r0}, v{r0}, v30"); a(f"v_sub_f32 v{r1}, v{r1}, v30")
            rnd2(a, r0, r1, 33)
            a(f"v_mul_f32 v33, v{r0}, v32"); a(f"v_mul_f32 v34, v{r1}, v32")
            a(f"v_fma_f32 v{r0}, -v33, v31, v{r0}"); a(f"v_fma_f32 v{r1}, -v34, v31, v{r1}")
            a(f"v_fmac_f32 v33, v{r0}, v32"); a(f"v_fmac_f32 v34, v{r1}, v32")
            rnd2(a, 33, 34, 35)
            a(f"v_mul_f32 v33, v33, v{CB+8*i+2*q}"); a(f"v_mul_f32 v34, v34, v{CB+8*i+2*q+1}")
            rnd2(a, 33, 34, 35)
            a(f"v_add_f32 v33, v33, v{SB+8*i+2*q}"); a(f"v_add_f32 v34, v34, v{SB+8*i+2*q+1}")
            a(f"v_cvt_pk_bf16_f32 v{112+4*i+q}, v33, v34")
        o = (1024 if G16 else 2048)*i
        a(f"buffer_store_dwordx4 v[{112+4*i}:{112+4*i+3}], v9, s[8:11], s{20 + o//4096} offen offset:{o%4096}")
    if STAMP:
        stamp(a, 3); a.wait_all(); stamp(a, 4); stamp_store(a, 5, 3)
    a.label("K3_END")
    a("s_endpgm")
    return a.text(), dict(vgpr=124, sgpr=40, accum=124), f"grid=(128,1,1) block=(384,1,1) lds={RED+1024}"

def dma_voffsets(a, base, pitch, swap23=False):
    t0, t1 = base+9, base+10
    for i in range(9):
        a(f"v_add_u32 v{t0}, {64*i}, v1")
        a(f"v_mul_u32_u24 v{t1}, 3641, v{t0}")
        a(f"v_lshrrev_b32 v{t1}, 16, v{t1}")
        a(f"v_mul_u32_u24 v{base+i}, 18, v{t1}")
        a(f"v_sub_u32 v{t0}, v{t0}, v{base+i}")
        if swap23:
            a(f"v_lshrrev_b32 v{base+i}, 1, v{t1}")
            a(f"v_xor_b32 v{base+i}, v{base+i}, v{t1}")
            a(f"v_and_b32 v{base+i}, 4, v{base+i}")
            a(f"v_mul_u32_u24 v{base+i}, 3, v{base+i}")
            a(f"v_xor_b32 v{t1}, v{t1}, v{base+i}")
        a(f"v_mul_u32_u24 v{base+i}, {pitch}, v{t1}")
        a(f"v_lshl_add_u32 v{base+i}, v{t0}, 4, v{base+i}")

def rot_soffsets(a, rho_s, sD, sT0, sT1, dbase, tb0, tb1, dstage, tmp):
    for j in range(9):
        a(f"s_add_u32 s{tmp}, s{rho_s}, {j}")
        a(f"s_sub_u32 s{tmp+1}, s{tmp}, 9")
        a(f"s_cmp_ge_u32 s{tmp}, 9")
        a(f"s_cselect_b32 s{tmp}, s{tmp+1}, s{tmp}")
        a(f"s_mul_i32 s{tmp+1}, s{tmp}, {dstage}")
        a(f"s_add_u32 s{sD+j}, s{dbase}, s{tmp+1}")
        a(f"s_lshl_b32 s{tmp+1}, s{tmp}, 12")
        a(f"s_add_u32 s{sT0+j}, s{tb0}, s{tmp+1}")
        a(f"s_add_u32 s{sT1+j}, s{tb1}, s{tmp+1}")

def kloop(a, dma, tok, trd, mfma, PF, pro_tok, slots, between=None):
    for i in range(9): dma(0, i)
    for ks in range(pro_tok):
        for b in range(2): tok(ks, b)
    if between: between()
    ops = []
    for st in range(1, 9):
        for i in range(9):
            avail = -1 if st <= 3 else 4*(st-3)+3
            ops.append((4*st-1-0.5, i, avail, dma, (st, i)))
    for ks in range(pro_tok, 36):
        for b in range(2):
            avail = -1 if ks < PF else ks-PF+1
            ops.append((ks, b, avail, tok, (ks, b)))
    ops.sort(key=lambda o: (o[0], o[1]))
    stamp(a, 3)
    a.wait_vm(("d", 0))
    a("s_barrier")
    stamp(a, 4)
    for aa in range(9): trd(0, aa)
    for ks in range(36):
        st, kk = divmod(ks, 4)
        if kk == 3 and st < 8:
            assert not any(o[3] is dma and o[4][0] == st+1 for o in ops), (ks,)
            a.wait_vm(("d", st+1))
            a("s_barrier")
        assert not any(o[3] is tok and o[4][0] == ks for o in ops), (ks,)
        a.wait_vm(("t", ks))
        for aa in range(9):
            a.wait_lg(("a", ks, aa))
            for b in range(2): mfma(ks, aa, b)
            if ks < 35: trd(ks+1, aa)
            if aa in slots:
                for o in ops:
                    if o[2] <= ks:
                        ops.remove(o); o[3](*o[4]); break
    assert not ops

def k4():
    a = Asm()
    SLOT = 37120; UPO = 18560; NSLOT = 4; PF = 8
    a("s_load_dwordx2 s[6:7], s[0:1], 136")
    a("s_load_dwordx4 s[12:15], s[0:1], 80")
    a("s_cmp_ge_u32 s2, 256")
    a("s_cbranch_scc1 K4_END")
    stamp(a, 0)
    M = 224
    a(f"v_and_b32 v{M}, 63, v0")
    a(f"v_lshrrev_b32 v{M+1}, 6, v0")
    a(f"v_readfirstlane_b32 s16, v{M+1}")
    a(f"v_mov_b32 v1, v{M}")
    a("s_and_b32 s17, s2, 7"); a("s_lshr_b32 s18, s2, 3")
    a("s_and_b32 s19, s18, 3"); a("s_lshl_b32 s17, s17, 2"); a("s_add_u32 s17, s17, s19")
    a("s_lshr_b32 s18, s18, 2")
    a("s_lshl_b32 s19, s19, 1"); a("s_add_u32 s19, s19, s18")
    a("s_sub_u32 s20, s19, 9"); a("s_cmp_ge_u32 s19, 9"); a("s_cselect_b32 s19, s20, s19")
    if EXP == "norot": a("s_mov_b32 s19, 0")
    DV = M+2
    dma_voffsets(a, DV, 9216)
    a("s_and_b32 s22, s16, 1"); a("s_lshr_b32 s23, s16, 1")
    a(f"s_mul_i32 s28, s22, {32*9216}"); a("s_mul_i32 s30, s17, 288"); a("s_add_u32 s28, s28, s30")
    a(f"s_mul_i32 s29, s23, {UPO}"); a("s_mul_i32 s30, s22, 9216"); a("s_add_u32 s29, s29, s30")
    VT = M+13
    a(f"v_lshlrev_b32 v{VT}, 4, v{M}")
    a("s_lshl_b32 s31, s18, 3"); a("s_lshl_b32 s30, s16, 1"); a("s_add_u32 s31, s31, s30")
    a("s_mul_i32 s31, s31, 36864"); a(f"s_add_u32 s31, s31, {OFF_H2P}")
    a("s_add_u32 s32, s31, 36864")
    SD, ST0, ST1 = 33, 42, 51
    rot_soffsets(a, 19, SD, ST0, ST1, 28, 31, 32, 64*9216, 22)
    a.wait_all()
    stamp(a, 1)
    srd(a, 8, 6, WS_REC)
    a("s_cmp_ge_u32 s16, 2")
    a("s_cselect_b32 s20, s14, s12"); a("s_cselect_b32 s21, s15, s13")
    srd(a, 24, 20, 576*9216)
    AF = 64; BR = 100
    VA = M+14; VS = M+16
    def dma(st, i):
        a(f"s_add_u32 m0, s29, {(st % NSLOT)*SLOT + i*1024}")
        a(f"buffer_load_dwordx4 v{DV+i}, s[24:27], s{SD+st} offen lds", tag=("d", st))
    def tok(ks, b):
        rb = BR + 8 * (ks % PF) + 4*b
        a(f"buffer_load_dwordx4 a[{rb}:{rb+3}], v{VT}, s[8:11], s{(ST0, ST1)[b] + ks//4} offen offset:{(ks % 4)*1024}", tag=("t", ks))
    def acc(t):
        return f"v[{16*t}:{16*t+15}]" if t < 14 else f"a[{16*(t-14)}:{16*(t-14)+15}]"
    def trd(ks, aa):
        if EXP == "notr" and ks > 1: return
        st, kk = divmod(ks, 4); slot = st % NSLOT
        off = (slot & 1)*SLOT + kk*4608 + aa*32
        va = VA + (slot >> 1)
        a(f"ds_read_b64_tr_b16 a[{AF+4*aa}:{AF+4*aa+1}], v{va} offset:{off}", tag=("a", ks, aa))
        a(f"ds_read_b64_tr_b16 a[{AF+4*aa+2}:{AF+4*aa+3}], v{va} offset:{off+1152}", tag=("a", ks, aa))
    def mfma(ks, aa, b):
        t = 2*aa + b; rb = BR + 8 * (ks % PF) + 4*b
        if EXP == "m16":
            for hh in range(2):
                o = 8*(ks & 1) + 4*hh
                c = f"v[{16*t+o}:{16*t+o+3}]" if t < 14 else f"a[{16*(t-14)+o}:{16*(t-14)+o+3}]"
                a(f"v_mfma_f32_16x16x32_bf16 {c}, a[{AF+4*aa}:{AF+4*aa+3}], a[{rb}:{rb+3}], {c if ks > 1 else 0}")
                if a.defer: a.defer.pop(0)()
            return
        a(f"v_mfma_f32_32x32x16_bf16 {acc(t)}, a[{AF+4*aa}:{AF+4*aa+3}], a[{rb}:{rb+3}], {acc(t) if ks else 0}")
    def between():
        stamp(a, 2)
        a(f"v_bfe_u32 v2, v{M}, 4, 1"); a(f"v_mul_u32_u24 v{VA}, {UPO}, v2")
        a(f"v_lshrrev_b32 v2, 5, v{M}"); a(f"v_bfe_u32 v3, v{M}, 2, 2"); a("v_lshl_add_u32 v2, v2, 3, v3")
        a("v_mul_u32_u24 v2, 288, v2"); a(f"v_add_u32 v{VA}, v{VA}, v2")
        a(f"v_and_b32 v2, 3, v{M}"); a(f"v_lshl_add_u32 v{VA}, v2, 3, v{VA}")
        a(f"v_add_u32 v{VA+1}, {2*SLOT}, v{VA}")
        a(f"v_bfe_u32 v2, v{M}, 4, 1"); a(f"v_mul_u32_u24 v{VS}, 147456, v2")
        a(f"v_lshrrev_b32 v2, 5, v{M}"); a(f"v_lshl_add_u32 v{VS}, v2, 8, v{VS}")
        a(f"v_and_b32 v2, 15, v{M}"); a(f"v_lshl_add_u32 v{VS}, v2, 4, v{VS}")
        a("s_lshl_b32 s20, s18, 4"); a("s_lshl_b32 s21, s16, 2"); a("s_add_u32 s20, s20, s21")
        a("s_mul_i32 s20, s20, 147456"); a("s_mul_i32 s21, s17, 4608"); a("s_add_u32 s20, s20, s21")
        a(f"s_add_u32 s20, s20, {OFF_HM}")
        a("s_add_u32 s21, s20, 4096")
        a(f"s_add_u32 s22, s20, {2*147456}")
        a("s_add_u32 s23, s22, 4096")
    kloop(a, dma, tok, trd, mfma, PF, 3, (0, 2, 3, 5, 6, 8), between)
    stamp(a, 5)
    T = M+18
    for t in range(18):
        aa, b = divmod(t, 2)
        if t < 14:
            g = 16*t
        else:
            g = 0
            for r in range(16): a(f"v_accvgpr_read_b32 v{g+r}, a{16*(t-14)+r}")
        o = T + 4*(t % 3)
        for q in range(4):
            a(f"v_pk_mul_f32 v[{g+2*q}:{g+2*q+1}], v[{g+2*q}:{g+2*q+1}], v[{g+8+2*q}:{g+8+2*q+1}]")
        for q in range(4):
            a(f"v_cvt_pk_bf16_f32 v{o+q}, v{g+2*q}, v{g+2*q+1}")
        so = 20 + 2*b + (1 if aa == 8 else 0)
        a(f"buffer_store_dwordx4 v[{o}:{o+3}], v{VS}, s[8:11], s{so} offen offset:{(aa*512) % 4096}")
    if STAMP:
        stamp(a, 6); a.wait_all(); stamp(a, 7); stamp_store(a, 8, 4)
    a.label("K4_END")
    a("s_endpgm")
    return a.text(), dict(vgpr=256+BR+8*PF, sgpr=60, accum=256), f"grid=(256,1,1) block=(256,1,1) lds={NSLOT*SLOT}"

def k4b():
    a = Asm()
    SLOT = 36864; UPO = 18432; NSLOT = 4; PF = 4; NA = 6
    a("s_load_dwordx2 s[6:7], s[0:1], 136")
    a("s_load_dwordx4 s[12:15], s[0:1], 80")
    a("s_cmp_ge_u32 s2, 256")
    a("s_cbranch_scc1 K4_END")
    stamp(a, 0)
    M = 224
    a(f"v_and_b32 v{M}, 63, v0")
    a(f"v_lshrrev_b32 v{M+1}, 6, v0")
    a(f"v_readfirstlane_b32 s16, v{M+1}")
    a(f"v_mov_b32 v1, v{M}")
    a("s_and_b32 s17, s2, 7"); a("s_lshr_b32 s18, s2, 3")
    a("s_and_b32 s19, s18, 3"); a("s_lshl_b32 s17, s17, 2"); a("s_add_u32 s17, s17, s19")
    a("s_lshr_b32 s18, s18, 2")
    a("s_lshl_b32 s19, s19, 1"); a("s_add_u32 s19, s19, s18")
    a("s_sub_u32 s20, s19, 9"); a("s_cmp_ge_u32 s19, 9"); a("s_cselect_b32 s19, s20, s19")
    if EXP == "norot": a("s_mov_b32 s19, 0")
    DV = M+2
    dma_voffsets(a, DV, 9216, swap23=True)
    a("s_and_b32 s22, s16, 1"); a("s_lshr_b32 s23, s16, 1")
    a(f"s_mul_i32 s28, s22, {32*9216}"); a("s_mul_i32 s30, s17, 288"); a("s_add_u32 s28, s28, s30")
    a(f"s_mul_i32 s29, s23, {UPO}"); a("s_mul_i32 s30, s22, 9216"); a("s_add_u32 s29, s29, s30")
    VT = M+13
    a(f"v_lshlrev_b32 v{VT}, 4, v{M}")
    for b in range(1, 4): a(f"v_add_u32 v{VT+b}, {18432*b}, v{VT}")
    a("s_lshl_b32 s31, s18, 4"); a("s_lshl_b32 s30, s16, 2"); a("s_add_u32 s31, s31, s30")
    a("s_mul_i32 s32, s31, 18432"); a(f"s_add_u32 s32, s32, {OFF_H2P}")
    SD, ST = 33, 42
    for j in range(9):
        a(f"s_add_u32 s22, s19, {j}"); a("s_sub_u32 s23, s22, 9"); a("s_cmp_ge_u32 s22, 9"); a("s_cselect_b32 s22, s23, s22")
        a(f"s_mul_i32 s23, s22, {64*9216}"); a(f"s_add_u32 s{SD+j}, s28, s23")
        a("s_lshl_b32 s23, s22, 11"); a(f"s_add_u32 s{ST+j}, s32, s23")
    a.wait_all()
    stamp_n(a, 1)
    srd(a, 8, 6, WS_REC)
    a("s_cmp_ge_u32 s16, 2")
    a("s_cselect_b32 s20, s14, s12"); a("s_cselect_b32 s21, s15, s13")
    srd(a, 24, 20, 576*9216)
    AF = 64; BR = AF + 4*NA
    VA = M+17
    def dma(st, i):
        a(f"s_add_u32 m0, s29, {(st % NSLOT)*SLOT + i*1024}")
        a(f"buffer_load_dwordx4 v{DV+i}, s[24:27], s{SD+st} offen lds", tag=("d", st))
    def tok(ks, b):
        rb = BR + 16 * (ks % PF) + 4*b
        a(f"buffer_load_dwordx4 a[{rb}:{rb+3}], v{VT+b}, s[8:11], s{ST + ks//2} offen offset:{(ks % 2)*1024}", tag=("t", ks))
    def accr(mat, aa, b):
        if aa < 7: return ("v", 32*aa + 16*mat + 4*b)
        return ("a", 32*(aa-7) + 16*mat + 4*b)
    def acc(mat, aa, b):
        k, r = accr(mat, aa, b); return f"{k}[{r}:{r+3}]"
    def trd(n, q):
        if EXP == "notr" and n > 40: return
        ks, fi = divmod(n, 18); aa, mat = divmod(fi, 2)
        st, kk = divmod(ks, 2); slot = st % NSLOT
        off = mat*UPO + kk*9216 + aa*32 + q*2304
        r = AF + 4*(n % NA) + 2*q
        a(f"ds_read_b64_tr_b16 a[{r}:{r+1}], v{VA+slot} offset:{off}", tag=("a", n))
    for i in range(9): dma(0, i)
    for b in range(4): tok(0, b)
    stamp_n(a, 2)
    a(f"v_lshrrev_b32 v2, 5, v{M}"); a("v_lshlrev_b32 v2, 4, v2")
    a(f"v_bfe_u32 v3, v{M}, 4, 1"); a("v_lshl_add_u32 v2, v3, 2, v2")
    a(f"v_bfe_u32 v3, v{M}, 2, 2"); a("v_add_u32 v2, v2, v3")
    a(f"v_mul_u32_u24 v{VA}, 288, v2")
    a(f"v_and_b32 v2, 3, v{M}"); a(f"v_lshl_add_u32 v{VA}, v2, 3, v{VA}")
    for sl in range(1, 4): a(f"v_add_u32 v{VA+sl}, {sl*SLOT}, v{VA}")
    a("s_mul_i32 s20, s31, 147456"); a("s_mul_i32 s21, s17, 9"); a("s_lshr_b32 s21, s21, 1"); a("s_lshl_b32 s21, s21, 10")
    a("s_add_u32 s20, s20, s21"); a(f"s_add_u32 s52, s20, {OFF_HM}")
    for b in range(1, 4): a(f"s_add_u32 s{52+b}, s52, {147456*b}")
    for b in range(4): a(f"s_add_u32 s{56+b}, s{52+b}, 4096")
    NF = 18*18
    D = NA - 1
    ops = []
    for st in range(1, 9):
        for i in range(9):
            ops.append((36*st - D - 0.5, i, -1 if st <= 3 else 36*(st-2) - D, dma, (st, i)))
    for ks in range(1, 18):
        for b in range(4):
            ops.append((18*ks, b, -1 if ks < PF else 18*(ks-PF+1), tok, (ks, b)))
    ops.sort(key=lambda o: (o[0], o[1]))
    stamp_n(a, 3)
    a.wait_vm(("d", 0))
    a("s_barrier")
    if EXP == "stages": stamp(a, 1)
    stamp_n(a, 4)
    for n in range(D):
        trd(n, 0); trd(n, 1)
    for n in range(NF):
        ks, fi = divmod(n, 18); aa, mat = divmod(fi, 2)
        if (n + D) % 36 == 0 and n + D < NF:
            st1 = (n + D)//36
            assert not any(o[3] is dma and o[4][0] == st1 for o in ops)
            a.wait_vm(("d", st1))
            a("s_barrier")
            if EXP == "stages" and st1 in (1, 2, 3, 5, 7): lg = list(a.lg); stamp(a, {1:2, 2:3, 3:4, 5:5, 7:6}[st1])
        if fi == 0:
            assert not any(o[3] is tok and o[4][0] == ks for o in ops)
            a.wait_vm(("t", ks))
        a.wait_lg(("a", n))
        ar = AF + 4*(n % NA)
        for b in range(4):
            rb = BR + 16 * (ks % PF) + 4*b
            c = acc(mat, aa, b)
            a(f"v_mfma_f32_16x16x32_bf16 {c}, a[{ar}:{ar+3}], a[{rb}:{rb+3}], {c if ks else 0}")
            if b < 2 and n + D < NF: trd(n + D, b)
            if b == 2 and (n % 3 != 2):
                for o in ops:
                    if o[2] <= n:
                        ops.remove(o); o[3](*o[4]); break
    assert not ops
    stamp_n(a, 5)
    T = M+21
    T = 246
    def prod(aa, b, o):
        (k, g), (_, u) = accr(0, aa, b), accr(1, aa, b)
        if k == "a":
            for r in range(4):
                a(f"v_accvgpr_read_b32 v{0+r}, a{g+r}"); a(f"v_accvgpr_read_b32 v{4+r}, a{u+r}")
            g, u = 0, 4
        for q in range(2):
            a(f"v_pk_mul_f32 v[{g+2*q}:{g+2*q+1}], v[{g+2*q}:{g+2*q+1}], v[{u+2*q}:{u+2*q+1}]")
        for q in range(2):
            a(f"v_cvt_pk_bf16_f32 v{o+q}, v{g+2*q}, v{g+2*q+1}")
    def epi(par):
        cnt = 0
        groups = [(0, 1), (2, 3), (4, 5), (6, 7), (8,)] if par == 0 else [(0,), (1, 2), (3, 4), (5, 6), (7, 8)]
        for gr in groups:
            for b in range(4):
                o = T + 4*(cnt % 2); cnt += 1
                L = gr[0] + par; kap = L >> 1
                so = (52 if kap < 4 else 56) + b; im = (kap % 4)*1024
                if len(gr) == 2:
                    prod(gr[0], b, o); prod(gr[1], b, o+2)
                    a(f"buffer_store_dwordx4 v[{o}:{o+3}], v{VT}, s[8:11], s{so} offen offset:{im}")
                else:
                    prod(gr[0], b, o)
                    a(f"buffer_store_dwordx2 v[{o}:{o+1}], v{VT}, s[8:11], s{so} offen offset:{im + 8*(L & 1)}")
    a("s_bitcmp1_b32 s17, 0")
    a("s_cbranch_scc1 K4_ODD")
    h = list(a.hist); vm = list(a.vm)
    epi(0)
    a("s_branch K4_FIN")
    a.label("K4_ODD"); a.hist = h; a.vm = vm
    epi(1)
    a.label("K4_FIN")
    if STAMP:
        stamp_n(a, 6); a.wait_all(); stamp(a, 7); stamp_store(a, 8, 4)
    a.label("K4_END")
    a("s_endpgm")
    return a.text(), dict(vgpr=256+BR+16*PF, sgpr=60, accum=256), f"grid=(256,1,1) block=(256,1,1) lds={NSLOT*SLOT}"

def poll(a, label, vflag, vaddr, soff, nl, tmp_s, depth=4):
    msk = (1 << nl) - 1
    a(f"s_mov_b32 s{tmp_s}, 0x8000")
    for d in range(depth - 1):
        a(f"buffer_load_dword v{vflag+d}, v{vaddr}, s[8:11], s{soff} offen sc1")
    a.label(label)
    for d in range(depth):
        a(f"buffer_load_dword v{vflag+(d+depth-1) % depth}, v{vaddr}, s[8:11], s{soff} offen sc1")
        a(f"s_waitcnt vmcnt({depth-1})")
        a(f"v_cmp_ne_u32 vcc, 0, v{vflag+d}")
        a(f"s_and_b32 s{tmp_s+1}, vcc_lo, {msk:#x}")
        a(f"s_cmp_eq_u32 s{tmp_s+1}, {msk:#x}")
        a(f"s_cbranch_scc1 {label}_X")
    a(f"s_sub_u32 s{tmp_s}, s{tmp_s}, 1")
    a(f"s_cbranch_scc0 {label}")
    a.label(label + "_X")
    a.vm = [None] * (depth - 1)

def kgg():
    a = Asm()
    SLOT = 36864; UPO = 18432; NSLOT = 4; PF = 4; NA = 6
    L2B = 3*SLOT; RED = L2B + 18432
    a("s_load_dwordx2 s[6:7], s[0:1], 136")
    a("s_load_dwordx4 s[12:15], s[0:1], 80")
    a("s_load_dwordx2 s[4:5], s[0:1], 96")
    a("s_load_dwordx2 s[62:63], s[0:1], 120")
    a("s_cmp_ge_u32 s2, 256")
    a("s_cbranch_scc1 GG_END")
    stamp(a, 0)
    M = 224; DV = M+2; VT = M+13; VA = M+17
    a(f"v_and_b32 v{M}, 63, v0")
    a(f"v_lshrrev_b32 v{M+1}, 6, v0")
    a(f"v_readfirstlane_b32 s16, v{M+1}")
    a(f"v_lshlrev_b32 v{VT}, 4, v{M}")
    a(f"v_lshrrev_b32 v5, 4, v{M}")
    a("v_lshlrev_b32 v6, 5, v5")
    a("s_lshr_b32 s17, s2, 1"); a("s_mul_i32 s17, s17, 18432")
    a("s_and_b32 s18, s2, 1")
    a("s_mul_i32 s19, s16, 6144")
    a("s_add_u32 s20, s17, s19"); a(f"s_add_u32 s20, s20, {OFF_X1T}"); a("s_add_u32 s21, s20, 4096")
    a("s_mul_i32 s22, s16, 768"); a("s_mul_i32 s23, s18, 384"); a("s_add_u32 s22, s22, s23"); a(f"s_add_u32 s22, s22, {OFF_MODF}")
    a(f"s_add_u32 s19, s19, {L2B}")
    a("s_mul_i32 s3, s16, 384"); a("s_mul_i32 s23, s18, 192"); a("s_add_u32 s3, s3, s23"); a("s_add_u32 s3, s3, s17"); a(f"s_add_u32 s3, s3, {OFF_X1R}")
    a("s_mul_i32 s51, s18, 3072")
    a("s_mul_i32 s60, s16, 6144"); a("s_add_u32 s60, s60, s51"); a("s_add_u32 s60, s60, s17"); a(f"s_add_u32 s60, s60, {OFF_H2P}")
    a("s_mov_b32 s61, s19")
    a.wait_all()
    srd(a, 8, 6, WS_REC)
    a("s_cmp_eq_u32 s16, 3")
    a("s_cbranch_scc1 GG_S1")
    a("s_mov_b32 m0, s19")
    for i in range(4): a(f"buffer_load_dwordx4 v{VT}, s[8:11], s20 offen offset:{1024*i} lds", tag="x")
    a("s_add_u32 m0, s19, 4096")
    for i in range(2): a(f"buffer_load_dwordx4 v{VT}, s[8:11], s21 offen offset:{1024*i} lds", tag="x")
    SB = 100; CB = 124
    for i in range(3):
        for h in range(2):
            a(f"buffer_load_dwordx4 v[{SB+8*i+4*h}:{SB+8*i+4*h+3}], v6, s[8:11], s22 offen offset:{128*i+16*h}", tag="m")
            a(f"buffer_load_dwordx4 v[{CB+8*i+4*h}:{CB+8*i+4*h+3}], v6, s[8:11], s22 offen offset:{2304+128*i+16*h}", tag="m")
    a.label("GG_S1")
    a(f"v_mov_b32 v1, v{M}")
    a("s_and_b32 s17, s2, 7"); a("s_lshr_b32 s18, s2, 3")
    a("s_and_b32 s19, s18, 3"); a("s_lshl_b32 s17, s17, 2"); a("s_add_u32 s17, s17, s19")
    a("s_lshr_b32 s18, s18, 2")
    a("s_lshl_b32 s19, s19, 1"); a("s_add_u32 s19, s19, s18")
    a("s_sub_u32 s20, s19, 9"); a("s_cmp_ge_u32 s19, 9"); a("s_cselect_b32 s19, s20, s19")
    dma_voffsets(a, DV, 9216, swap23=True)
    a("s_and_b32 s22, s16, 1"); a("s_lshr_b32 s23, s16, 1")
    a(f"s_mul_i32 s28, s22, {32*9216}"); a("s_mul_i32 s30, s17, 288"); a("s_add_u32 s28, s28, s30")
    a(f"s_mul_i32 s29, s23, {UPO}"); a("s_mul_i32 s30, s22, 9216"); a("s_add_u32 s29, s29, s30")
    a("s_lshl_b32 s31, s18, 4"); a("s_lshl_b32 s30, s16, 2"); a("s_add_u32 s31, s31, s30")
    a("s_mul_i32 s32, s31, 18432"); a(f"s_add_u32 s32, s32, {OFF_H2P}")
    SD, ST = 33, 42
    for j in range(9):
        a(f"s_add_u32 s22, s19, {j}"); a("s_sub_u32 s23, s22, 9"); a("s_cmp_ge_u32 s22, 9"); a("s_cselect_b32 s22, s23, s22")
        a(f"s_mul_i32 s23, s22, {64*9216}"); a(f"s_add_u32 s{SD+j}, s28, s23")
        a("s_lshl_b32 s23, s22, 11"); a(f"s_add_u32 s{ST+j}, s32, s23")
    a("s_cmp_ge_u32 s16, 2")
    a("s_cselect_b32 s20, s14, s12"); a("s_cselect_b32 s21, s15, s13")
    srd(a, 24, 20, 576*9216)
    srd(a, 12, 4, 4608*1152)
    AF = 64; BR = AF + 4*NA; DV2A = BR + 16*PF
    def dma(st, i):
        a(f"s_add_u32 m0, s29, {(st % NSLOT)*SLOT + i*1024}")
        a(f"buffer_load_dwordx4 v{DV+i}, s[24:27], s{SD+st} offen lds", tag=("d", st))
    def tok(ks, b):
        rb = BR + 16 * (ks % PF) + 4*b
        a(f"buffer_load_dwordx4 a[{rb}:{rb+3}], v{VT+b}, s[8:11], s{ST + ks//2} offen offset:{(ks % 2)*1024} sc1", tag=("t", ks))
    def accr(mat, aa, b):
        if aa < 7: return ("v", 32*aa + 16*mat + 4*b)
        return ("a", 32*(aa-7) + 16*mat + 4*b)
    def acc(mat, aa, b):
        k, r = accr(mat, aa, b); return f"{k}[{r}:{r+3}]"
    def trd(n, q):
        ks, fi = divmod(n, 18); aa, mat = divmod(fi, 2)
        st, kk = divmod(ks, 2); slot = st % NSLOT
        off = mat*UPO + kk*9216 + aa*32 + q*2304
        r = AF + 4*(n % NA) + 2*q
        a(f"ds_read_b64_tr_b16 a[{r}:{r+1}], v{VA+slot} offset:{off}", tag=("a", n))
    for i in range(9): dma(0, i)
    def late_setup():
        for b in range(1, 4): a(f"v_add_u32 v{VT+b}, {18432*b}, v{VT}")
        a(f"v_lshrrev_b32 v2, 5, v{M}"); a("v_lshlrev_b32 v2, 4, v2")
        a(f"v_bfe_u32 v3, v{M}, 4, 1"); a("v_lshl_add_u32 v2, v3, 2, v2")
        a(f"v_bfe_u32 v3, v{M}, 2, 2"); a("v_add_u32 v2, v2, v3")
        a(f"v_mul_u32_u24 v{VA}, 288, v2")
        a(f"v_and_b32 v2, 3, v{M}"); a(f"v_lshl_add_u32 v{VA}, v2, 3, v{VA}")
        for sl in range(1, 4): a(f"v_add_u32 v{VA+sl}, {sl*SLOT}, v{VA}")
        a("s_mul_i32 s20, s31, 147456"); a("s_mul_i32 s21, s17, 9"); a("s_lshr_b32 s21, s21, 1"); a("s_lshl_b32 s21, s21, 10")
        a("s_add_u32 s20, s20, s21"); a(f"s_add_u32 s52, s20, {OFF_HM}")
        for b in range(1, 4): a(f"s_add_u32 s{52+b}, s52, {147456*b}")
        for b in range(4): a(f"s_add_u32 s{56+b}, s{52+b}, 4096")
        dma_voffsets(a, 10, 1152)
        for i in range(9): a(f"v_accvgpr_write_b32 a{DV2A+i}, v{10+i}")
        a("s_and_b32 s20, s2, 7"); a("s_lshr_b32 s21, s2, 3")
        a("s_and_b32 s5, s21, 3"); a("s_lshr_b32 s4, s21, 2")
        a("s_and_b32 s22, s20, 1"); a("s_lshl_b32 s22, s22, 3"); a("s_add_u32 s4, s4, s22")
        a("s_lshr_b32 s3, s20, 1")
        a(f"s_mul_i32 s60, s3, {1152*1152}"); a(f"s_mul_i32 s20, s16, {32*1152}"); a("s_add_u32 s60, s60, s20")
        a("s_mul_i32 s20, s5, 288"); a("s_add_u32 s60, s60, s20")
        a(f"s_add_u32 s61, s60, {128*1152}")
        a("s_mul_i32 s51, s16, 9216")
        a("s_lshl_b32 s30, s18, 5"); a("s_add_u32 s30, s30, s17"); a("s_mul_i32 s30, s30, 36864"); a("s_add_u32 s30, s30, s51")
        a(f"s_add_u32 s30, s30, {OFF_PART}"); a("s_add_u32 s32, s30, 4096"); a("s_add_u32 s28, s30, 8192")
        for q in range(4): a(f"v_mov_b32 v{246+q}, -1")
        a("s_lshr_b32 s20, s2, 3"); a("s_lshl_b32 s20, s20, 2"); a("s_add_u32 s20, s20, s16"); a("s_mul_i32 s20, s20, 162")
        a(f"s_mul_i32 s21, s3, {1152*1152//64}"); a("s_add_u32 s20, s20, s21")
        for i in range(3):
            a(f"v_add_u32 v2, {64*i}, v{M}"); a("v_min_u32 v2, 161, v2"); a("v_add_u32 v2, s20, v2"); a("v_lshlrev_b32 v2, 6, v2")
            a(f"v_accvgpr_write_b32 a{DV2A+9+i}, v2")
    def pfw(i):
        if EXP == "nopf": return
        a(f"v_accvgpr_read_b32 v254, a{DV2A+9+i}")
        a(f"buffer_load_dword v255, v254, s[12:15], 0 offen", tag="pf")
    a("s_cmp_eq_u32 s16, 3")
    a("s_cbranch_scc1 GG_W3")
    vm_w3 = [t for t in a.vm if t not in ("x", "m")]
    a(f"v_and_b32 v4, 15, v{M}")
    a(f"v_bfe_u32 v7, v{M}, 2, 2"); a("v_lshlrev_b32 v7, 5, v7")
    a(f"v_and_b32 v8, 3, v{M}"); a("v_lshl_add_u32 v7, v8, 3, v7")
    a("v_lshl_add_u32 v7, v5, 8, v7")
    a("v_add_u32 v7, s61, v7")
    a("v_subrev_u32 v8, s51, v7")
    a("v_add_u32 v7, s51, v7")
    a("v_mul_u32_u24 v9, 1152, v4"); a("v_lshl_add_u32 v9, v5, 4, v9")
    a("v_lshlrev_b32 v23, 4, v4"); a(f"v_add_u32 v23, {RED}, v23")
    a(f"v_lshl_add_u32 v22, v{M+1}, 2, v23")
    stamp_x(a, 1)
    a.wait_vm("x")
    stamp_x(a, 2)
    X = 24; F = 48
    for i in range(6):
        va = 7 if i < 3 else 8
        a(f"ds_read_b64_tr_b16 v[{X+4*i}:{X+4*i+1}], v{va} offset:{1024*i}", tag=("t", i))
        a(f"ds_read_b64_tr_b16 v[{X+4*i+2}:{X+4*i+3}], v{va} offset:{1024*i+128}", tag=("t", i))
    for i in range(6):
        a.wait_lg(("t", i))
        if i < 3: a(f"buffer_store_dwordx4 v[{X+4*i}:{X+4*i+3}], v9, s[8:11], s3 offen offset:{64*i} sc1", tag="st")
        for q in range(4): unpack(a, F+8*i+2*q, F+8*i+2*q+1, X+4*i+q)
    def xreduce(r, off):
        a(f"v_mov_b32 v10, v{r}")
        a(f"v_permlane32_swap_b32 v10, v{r}")
        a(f"v_add_f32 v{r}, v{r}, v10")
        a(f"v_mov_b32 v10, v{r}")
        a(f"v_permlane16_swap_b32 v10, v{r}")
        a(f"v_add_f32 v{r}, v{r}, v10")
        a(f"ds_write_b32 v22, v{r} offset:{off}")
        a.wait_all(vm=False)
        a("s_barrier")
        a(f"ds_read_b96 v[10:12], v23 offset:{off}")
        a.wait_all(vm=False)
        a("v_add_f32 v10, v10, v11"); a(f"v_add_f32 v{r}, v10, v12")
    for c in range(4): a(f"v_add_f32 v{14+c}, v{F+c}, v{F+4+c}")
    for i in range(8, 48, 4):
        for c in range(4): a(f"v_add_f32 v{14+c}, v{14+c}, v{F+i+c}")
    a("v_add_f32 v14, v14, v15"); a("v_add_f32 v16, v16, v17"); a("v_add_f32 v14, v14, v16")
    xreduce(14, 0)
    a(f"v_mul_f32 v14, {f32(1.0/576):#x}, v14")
    for i in range(0, 48, 2):
        a(f"v_sub_f32 v18, v{F+i}, v14"); a(f"v_sub_f32 v19, v{F+i+1}, v14")
        if i == 0: a("v_mul_f32 v15, v18, v18"); a("v_mul_f32 v16, v19, v19")
        else: a("v_fmac_f32 v15, v18, v18"); a("v_fmac_f32 v16, v19, v19")
    a("v_add_f32 v15, v15, v16")
    xreduce(15, 256)
    a(f"v_mul_f32 v15, {f32(1.0/576):#x}, v15")
    rnd1(a, 15)
    a(f"v_add_f32 v15, {f32(1e-5):#x}, v15")
    rnd1(a, 15)
    a("v_sqrt_f32 v15, v15")
    rnd1(a, 15)
    a("v_rcp_f32 v16, v15")
    rnd1(a, 14)
    stamp_x(a, 3)
    a.wait_vm("m")
    for i in range(3):
        for q in range(4):
            r0 = F+8*i+2*q; r1 = r0+1
            a(f"v_sub_f32 v{r0}, v{r0}, v14"); a(f"v_sub_f32 v{r1}, v{r1}, v14")
            rnd2(a, r0, r1, 17)
            a(f"v_mul_f32 v18, v{r0}, v16"); a(f"v_mul_f32 v19, v{r1}, v16")
            a(f"v_fma_f32 v{r0}, -v18, v15, v{r0}"); a(f"v_fma_f32 v{r1}, -v19, v15, v{r1}")
            a(f"v_fmac_f32 v18, v{r0}, v16"); a(f"v_fmac_f32 v19, v{r1}, v16")
            rnd2(a, 18, 19, 17)
            a(f"v_mul_f32 v18, v18, v{CB+8*i+2*q}"); a(f"v_mul_f32 v19, v19, v{CB+8*i+2*q+1}")
            rnd2(a, 18, 19, 17)
            a(f"v_add_f32 v18, v18, v{SB+8*i+2*q}"); a(f"v_add_f32 v19, v19, v{SB+8*i+2*q+1}")
            a(f"v_cvt_pk_bf16_f32 v{X+12+4*i+q}, v18, v19")
        a(f"buffer_store_dwordx4 v[{X+12+4*i}:{X+12+4*i+3}], v{VT}, s[8:11], s60 offen offset:{1024*i} sc1", tag="st")
    stamp_x(a, 4)
    a.wait_vm("st")
    a("s_barrier")
    stamp_x(a, 5)
    late_setup()
    for i in range(9): dma(1, i)
    vm_main = list(a.vm)
    a("s_branch GG_R4")
    a.label("GG_W3"); a.hist = []; a.vm = vm_w3; a.lg = []
    late_setup()
    for i in range(9): dma(1, i)
    a("s_lshr_b32 s20, s2, 5"); a("s_lshl_b32 s20, s20, 7"); a("s_and_b32 s21, s2, 31"); a("s_lshl_b32 s21, s21, 2")
    a("s_add_u32 s20, s20, s21"); a(f"s_add_u32 s20, s20, {OFF_FLG + 12288}")
    a("s_lshl_b32 s21, s18, 7"); a(f"s_add_u32 s21, s21, {OFF_FLG + 12288}")
    a(f"v_lshlrev_b32 v3, 2, v{M}"); a("v_mov_b32 v4, 1")
    a("s_barrier"); a("s_barrier")
    a.wait_all()
    a("s_barrier")
    a("s_mov_b64 exec, 1")
    a("buffer_store_dword v4, v3, s[8:11], s20 offen sc1")
    a("s_mov_b64 exec, -1")
    poll(a, "GG_P0", 6, 3, 21, 32, 22)
    a.label("GG_R4"); a.hist = []; a.vm = vm_main; a.lg = []
    a("s_barrier")
    stamp_x(a, 6)
    stamp_m(a, 1)
    for b in range(4): tok(0, b)
    def slot2(st): return (st + 1) % NSLOT
    def dma2(st, i, so=None):
        a(f"s_add_u32 m0, s51, {slot2(st)*SLOT + i*1024}")
        a(f"buffer_load_dwordx4 v{DV+i}, s[12:15], s{so if so is not None else SD+st} offen lds", tag=("d2", st))
    def swapdv():
        for i in range(9): a(f"v_accvgpr_read_b32 v{DV+i}, a{DV2A+i}")
    NF = 18*18
    D = NA - 1
    ops = []
    for st in range(2, 9):
        for i in range(9):
            ops.append((36*st - D - 0.5, i, -1 if st <= 3 else 36*(st-2) - D, dma, (st, i)))
    for ks in range(1, 18):
        for b in range(4):
            ops.append((18*ks, b, -1 if ks < PF else 18*(ks-PF+1), tok, (ks, b)))
    def poison(i):
        a(f"buffer_store_dwordx4 v[246:249], v{VT}, s[8:11], s{(30, 32, 28)[i//4]} offen offset:{(i % 4)*1024} sc1", tag="po")
    for i in range(9): ops.append((NF-1, i, 40 + 24*i, poison, (i,)))
    ops.append((NF+1, 0, 36*7 - D, swapdv, ()))
    for st in range(2):
        for i in range(9):
            ops.append((NF+2+st, i, 36*(7+st) - D, dma2, (st, i, 60+st)))
    ops.sort(key=lambda o: (o[0], o[1]))
    for n in range(D):
        trd(n, 0); trd(n, 1)
    for n in range(NF):
        ks, fi = divmod(n, 18); aa, mat = divmod(fi, 2)
        if (n + D) % 36 == 0 and n + D < NF:
            st1 = (n + D)//36
            assert not any(o[3] is dma and o[4][0] == st1 for o in ops)
            a.wait_vm(("d", st1))
            a("s_barrier")
        if fi == 0:
            assert not any(o[3] is tok and o[4][0] == ks for o in ops)
            a.wait_vm(("t", ks))
        a.wait_lg(("a", n))
        ar = AF + 4*(n % NA)
        for b in range(4):
            rb = BR + 16 * (ks % PF) + 4*b
            c = acc(mat, aa, b)
            a(f"v_mfma_f32_16x16x32_bf16 {c}, a[{ar}:{ar+3}], a[{rb}:{rb+3}], {c if ks else 0}")
            if b < 2 and n + D < NF: trd(n + D, b)
            if b == 2 and (n % 3 != 2):
                for o in ops:
                    if o[2] <= n:
                        if o[3] is swapdv: assert not any(p[3] is dma for p in ops)
                        ops.remove(o); o[3](*o[4]); break
    assert not ops
    stamp_m(a, 2)
    T = 246
    def prod(aa, b, o):
        (k, g), (_, u) = accr(0, aa, b), accr(1, aa, b)
        if k == "a":
            for r in range(4):
                a(f"v_accvgpr_read_b32 v{0+r}, a{g+r}"); a(f"v_accvgpr_read_b32 v{4+r}, a{u+r}")
            g, u = 0, 4
        for q in range(2):
            a(f"v_pk_mul_f32 v[{g+2*q}:{g+2*q+1}], v[{g+2*q}:{g+2*q+1}], v[{u+2*q}:{u+2*q+1}]")
        for q in range(2):
            a(f"v_cvt_pk_bf16_f32 v{o+q}, v{g+2*q}, v{g+2*q+1}")
    def epi(par):
        cnt = 0
        groups = [(0, 1), (2, 3), (4, 5), (6, 7), (8,)] if par == 0 else [(0,), (1, 2), (3, 4), (5, 6), (7, 8)]
        for gr in groups:
            for b in range(4):
                o = T + 4*(cnt % 2); cnt += 1
                L = gr[0] + par; kap = L >> 1
                so = (52 if kap < 4 else 56) + b; im = (kap % 4)*1024
                if len(gr) == 2:
                    prod(gr[0], b, o); prod(gr[1], b, o+2)
                    a(f"buffer_store_dwordx4 v[{o}:{o+3}], v{VT}, s[8:11], s{so} offen offset:{im} sc1")
                else:
                    prod(gr[0], b, o)
                    a(f"buffer_store_dwordx2 v[{o}:{o+1}], v{VT}, s[8:11], s{so} offen offset:{im + 8*(L & 1)} sc1")
    a("s_bitcmp1_b32 s17, 0")
    a("s_cbranch_scc1 GG_ODD")
    h = list(a.hist); vm = list(a.vm)
    epi(0)
    a("s_branch GG_FIN")
    a.label("GG_ODD"); a.hist = h; a.vm = vm
    epi(1)
    a.label("GG_FIN"); a.hist = []
    a("s_lshl_b32 s20, s18, 2"); a("s_lshr_b32 s21, s17, 3"); a("s_add_u32 s20, s20, s21"); a("s_lshl_b32 s20, s20, 7")
    a("s_and_b32 s21, s17, 7"); a("s_lshl_b32 s21, s21, 2"); a("s_add_u32 s20, s20, s21"); a(f"s_add_u32 s20, s20, {OFF_FLG}")
    a("s_lshr_b32 s21, s4, 1"); a("s_lshl_b32 s21, s21, 2"); a("s_add_u32 s21, s21, s3"); a("s_lshl_b32 s21, s21, 7"); a(f"s_add_u32 s21, s21, {OFF_FLG}")
    ST0, ST1 = 42, 52
    a("s_lshl_b32 s31, s4, 3"); a("s_lshl_b32 s30, s16, 1"); a("s_add_u32 s31, s31, s30")
    a("s_mul_i32 s31, s31, 147456"); a("s_mul_i32 s30, s3, 36864"); a("s_add_u32 s31, s31, s30")
    a(f"s_add_u32 s31, s31, {OFF_HM}")
    for j in range(9):
        a(f"s_add_u32 s{SD+j}, s60, {j*128*1152}")
    for j in range(9):
        a(f"s_add_u32 s{ST0+j}, s31, {j*4096}")
    a(f"v_add_u32 v{VT+1}, 147456, v{VT}")
    a(f"v_lshrrev_b32 v2, 2, v{M}")
    a(f"v_mul_u32_u24 v{VA}, 288, v2")
    a(f"v_and_b32 v2, 3, v{M}"); a(f"v_lshl_add_u32 v{VA}, v2, 3, v{VA}")
    for sl in range(1, 4): a(f"v_add_u32 v{VA+sl}, {sl*SLOT}, v{VA}")
    a(f"v_lshlrev_b32 v{VT+2}, 2, v{M}")
    a(f"v_mov_b32 v{VT+3}, 1")
    a.wait_all()
    stamp_m(a, 3)
    a("s_barrier")
    a("s_cmp_lg_u32 s16, 0")
    a("s_cbranch_scc1 GG_W1")
    a("s_mov_b64 exec, 1")
    a(f"buffer_store_dword v{VT+3}, v{VT+2}, s[8:11], s20 offen sc1")
    a("s_mov_b64 exec, -1")
    poll(a, "GG_P1", 2, VT+2, 21, 8, 22)
    a.label("GG_W1"); a.hist = []; a.vm = []
    for st in (2, 3):
        for i in range(9): dma2(st, i)
    a("s_barrier")
    stamp_m(a, 4)
    a("s_and_b32 s22, s4, 1"); a("s_lshl_b32 s22, s22, 2"); a("s_add_u32 s22, s22, s5"); a("s_lshl_b32 s22, s22, 2")
    a("s_lshr_b32 s23, s4, 1"); a("s_lshl_b32 s23, s23, 7"); a("s_add_u32 s23, s23, s22")
    a("s_lshl_b32 s28, s3, 5"); a("s_add_u32 s28, s28, s23"); a("s_add_u32 s28, s28, s16")
    a("s_mul_i32 s28, s28, 9216"); a(f"s_add_u32 s28, s28, {OFF_PART}")
    for q in range(1, 3): a(f"s_add_u32 s{28+q}, s28, {4096*q}")
    a("s_add_u32 s23, s23, s3")
    a("s_lshl_b32 s17, s16, 11"); a(f"s_add_u32 s17, s17, {OFF_PART}")
    for i in range(1, 4):
        a(f"s_add_u32 s18, s3, {i}"); a("s_and_b32 s18, s18, 3"); a("s_lshl_b32 s18, s18, 5"); a("s_add_u32 s18, s18, s23")
        a("s_mul_i32 s18, s18, 9216"); a(f"s_add_u32 s{52+i}, s18, s17")
    a("s_lshl_b32 s56, s4, 7"); a("s_lshl_b32 s18, s3, 5"); a("s_add_u32 s56, s56, s18"); a("s_mul_i32 s56, s56, 1152")
    a("s_mul_i32 s18, s5, 288"); a("s_add_u32 s56, s56, s18"); a("s_lshl_b32 s18, s16, 6"); a("s_add_u32 s56, s56, s18")
    a("s_mul_i32 s57, s5, 576"); a("s_lshl_b32 s18, s16, 7"); a("s_add_u32 s57, s57, s18"); a(f"s_add_u32 s57, s57, {OFF_MODF + 4608}")
    a(f"s_add_u32 s58, s56, {OFF_X1R}")
    a("s_lshl_b32 s59, s16, 12"); a(f"s_add_u32 s59, s59, {2*SLOT}")
    stamp_g(a, 1)
    PF2 = 12; AF2 = 72; BR2 = 108
    def tok2(ks, b):
        if EXP == "g2not" and ks >= 12: return
        rb = BR2 + 8 * (ks % PF2) + 4*b
        a(f"buffer_load_dwordx4 v[{rb}:{rb+3}], v{VT+b}, s[8:11], s{ST0 + ks//4} offen offset:{(ks % 4)*1024}" + ("" if EXP == "g2plain" else " sc1"), tag=("t2", ks))
    def trd2(n, q):
        ks, aa = divmod(n, 9); st, kk = divmod(ks, 4)
        off = kk*9216 + aa*32 + q*16*288
        a(f"ds_read_b64_tr_b16 v[{AF2+4*aa+2*q}:{AF2+4*aa+2*q+1}], v{VA+slot2(st)} offset:{off}", tag=("a2", n))
    def dm0(st, i): a(f"s_add_u32 m0, s51, {slot2(st)*SLOT + i*1024}")
    def dld(st, i):
        if EXP == "g2now": return
        a(f"buffer_load_dwordx4 v{DV+i}, s[12:15], s{SD+st} offen lds", tag=("d2", st))
    PRO2 = 4
    for ks in range(PRO2):
        for b in range(2): tok2(ks, b)
    N2 = 36*9; D2 = 8
    ops = []
    for st in range(4, 9):
        for i in range(9): ops.append((36*st - D2 - 0.5, i, 36*(st-2) - D2, dld, (st, i)))
    for ks in range(PRO2, 36):
        for b in range(2): ops.append((9*ks, b, -1 if ks < PF2 else 9*(ks-PF2+1), tok2, (ks, b)))
    ops.sort(key=lambda o: (o[0], o[1]))
    for n in range(D2):
        trd2(n, 0); trd2(n, 1)
    armed = None
    for n in range(N2):
        ks, aa = divmod(n, 9)
        if (n + D2) % 36 == 0 and n + D2 < N2:
            st1 = (n + D2)//36
            assert not any(o[3] is dld and o[4][0] == st1 for o in ops) and not (armed and armed[0] == st1)
            a.wait_vm(("d2", st1))
            a("s_barrier")
        if aa == 0:
            assert not any(o[3] is tok2 and o[4][0] == ks for o in ops)
            a.wait_vm(("t2", ks))
            if ks in (0, 6, 12, 24): stamp_g(a, {0: 2, 6: 3, 12: 4, 24: 5}[ks])
        if n % 2 == 0: a.wait_lg(("a2", min(n+1, N2-1)))
        for b in range(2):
            t = 2*aa + b; rb = BR2 + 8 * (ks % PF2) + 4*b
            c = f"v[{4*t}:{4*t+3}]"
            a(f"v_mfma_f32_16x16x32_bf16 {c}, v[{AF2+4*aa}:{AF2+4*aa+3}], v[{rb}:{rb+3}], {c if ks else 0}")
            if n + D2 < N2: trd2(n + D2, b)
            if b == 0 or n % 2 == 1:
                if armed:
                    dld(*armed); armed = None
                else:
                    for o in ops:
                        if o[2] <= n:
                            ops.remove(o)
                            if o[3] is dld: dm0(*o[4]); armed = o[4]
                            else: o[3](*o[4])
                            break
    assert not ops and not armed
    stamp_m(a, 5)
    a(f"v_add_u32 v{VA}, {2*SLOT}, v{VT}")
    stamp_g(a, 6)
    OWN = 2 * SLOT
    a("s_cmp_eq_u32 s16, s3")
    a("s_cbranch_scc1 GG_OWN")
    h = list(a.hist)
    for aa in range(9):
        o = 72 + 4*(aa % 3)
        for q in range(4): a(f"v_cvt_pk_bf16_f32 v{o+q}, v{8*aa+2*q}, v{8*aa+2*q+1}")
        a(f"buffer_store_dwordx4 v[{o}:{o+3}], v{VT}, s[8:11], s{28 + aa//4} offen offset:{(aa % 4)*1024} sc1")
    a("s_branch GG_PUB")
    a.label("GG_OWN"); a.hist = h
    for t in range(18):
        a(f"ds_write_b128 v{VA}, v[{4*t}:{4*t+3}] offset:{1024*t}")
    a.label("GG_PUB"); a.hist = []
    a(f"v_and_b32 v140, 15, v{M}"); a("v_mul_u32_u24 v144, 1152, v140")
    a(f"v_lshrrev_b32 v140, 4, v{M}"); a("v_lshl_add_u32 v144, v140, 3, v144")
    a("v_lshlrev_b32 v145, 4, v140")
    a(f"v_add_u32 v146, {16*1152}, v144")
    a(f"v_add_u32 v147, s59, v{VT}")
    for i in range(3):
        for b in range(2):
            a(f"buffer_load_dwordx2 v[{108+2*(2*i+b)}:{109+2*(2*i+b)}], v{144 if b == 0 else 146}, s[8:11], s58 offen offset:{32*i} sc1")
        a(f"buffer_load_dwordx4 v[{120+4*i}:{123+4*i}], v145, s[8:11], s57 offen offset:{64*i}")
    for q in range(3): a(f"s_mov_b32 s{48+q}, s{53+q}")
    a("s_mov_b32 s34, s56")
    srd(a, 24, 62, 2048*1152)
    a.wait_all(vm=False)
    stamp_m(a, 6)
    a("s_barrier")
    for i in range(6):
        a(f"ds_read_b128 v[{4*i}:{4*i+3}], v147 offset:{1024*i}")
    R = 24
    a("s_mov_b32 s22, 0x8000")
    a.label("GG_P2")
    for i in range(3):
        for q in range(3):
            r = R + 4*(3*i + q)
            a(f"buffer_load_dwordx4 v[{r}:{r+3}], v{VT}, s[8:11], s{48+q} offen offset:{i*1024} sc1")
    a("s_waitcnt vmcnt(0)"); a.vm = []
    a(f"v_max3_u32 v60, v{R}, v{R+1}, v{R+2}")
    a(f"v_max3_u32 v61, v{R+3}, v{R+4}, v{R+5}")
    for r in range(R+6, R+36, 4):
        if r + 3 < R + 36:
            a(f"v_max3_u32 v60, v60, v{r}, v{r+1}"); a(f"v_max3_u32 v61, v61, v{r+2}, v{r+3}")
        else:
            a(f"v_max3_u32 v60, v60, v{r}, v{r+1}")
    a("v_max_u32 v60, v60, v61")
    a("v_cmp_eq_u32 vcc, -1, v60")
    a("s_sub_u32 s22, s22, 1")
    a("s_cbranch_scc1 GG_P2X")
    a("s_cbranch_vccnz GG_P2")
    a.label("GG_P2X"); a.hist = []
    a.wait_all(vm=False)
    for i in range(3):
        for b in range(2):
            r = 4*(2*i + b)
            for q in range(3):
                for e in range(2):
                    unpack(a, 60, 61, R + 4*(3*i+q) + 2*b + e)
                    a(f"v_add_f32 v{r+2*e}, v{r+2*e}, v60"); a(f"v_add_f32 v{r+2*e+1}, v{r+2*e+1}, v61")
            xr = 108 + 2*(2*i + b)
            for e in range(0, 4, 2):
                rnd2(a, r+e, r+e+1, 62)
                a(f"v_mul_f32 v{r+e}, v{r+e}, v{120+4*i+e}"); a(f"v_mul_f32 v{r+e+1}, v{r+e+1}, v{120+4*i+e+1}")
                rnd2(a, r+e, r+e+1, 62)
                unpack(a, 62, 63, xr+e//2)
                a(f"v_add_f32 v{r+e}, v{r+e}, v62"); a(f"v_add_f32 v{r+e+1}, v{r+e+1}, v63")
                a(f"v_cvt_pk_bf16_f32 v{xr+e//2}, v{r+e}, v{r+e+1}")
            a(f"buffer_store_dwordx2 v[{xr}:{xr+1}], v{144 if b == 0 else 146}, s[24:27], s34 offen offset:{32*i}")
    if STAMP:
        a.wait_all(); stamp(a, 7); stamp_store(a, 8, 4)
    a.label("GG_END")
    a("s_endpgm")
    return a.text(), dict(vgpr=256+DV2A+12, sgpr=64, accum=256), f"grid=(256,1,1) block=(256,1,1) lds={NSLOT*SLOT}"
def k5():
    a = Asm()
    SLOT = 36864; NSLOT = 4; PF = 12
    a("s_load_dwordx2 s[6:7], s[0:1], 136")
    a("s_load_dwordx2 s[12:13], s[0:1], 96")
    a("s_cmp_ge_u32 s2, 256")
    a("s_cbranch_scc1 K5_END")
    stamp(a, 0)
    M = 208
    a(f"v_and_b32 v{M}, 63, v0")
    a(f"v_lshrrev_b32 v{M+1}, 6, v0")
    a(f"v_readfirstlane_b32 s16, v{M+1}")
    a(f"v_mov_b32 v1, v{M}")
    a("s_and_b32 s17, s2, 7"); a("s_lshr_b32 s18, s2, 3")
    a("s_and_b32 s19, s18, 3")
    a("s_lshr_b32 s18, s18, 2")
    a("s_lshl_b32 s14, s19, 1"); a("s_add_u32 s14, s14, s18")
    a("s_sub_u32 s20, s14, 9"); a("s_cmp_ge_u32 s14, 9"); a("s_cselect_b32 s14, s20, s14")
    if EXP == "norot": a("s_mov_b32 s14, 0")
    a("s_and_b32 s20, s17, 1"); a("s_lshl_b32 s20, s20, 3"); a("s_add_u32 s18, s18, s20")
    a("s_lshr_b32 s17, s17, 1")
    DV = M+2
    dma_voffsets(a, DV, 1152)
    a(f"s_mul_i32 s28, s17, {1152*1152}"); a(f"s_mul_i32 s30, s16, {32*1152}"); a("s_add_u32 s28, s28, s30")
    a("s_mul_i32 s30, s19, 288"); a("s_add_u32 s28, s28, s30")
    a("s_mul_i32 s29, s16, 9216")
    VT = M+13
    a(f"v_lshlrev_b32 v{VT}, 4, v{M}")
    a("s_lshl_b32 s31, s18, 3"); a("s_lshl_b32 s30, s16, 1"); a("s_add_u32 s31, s31, s30")
    a("s_mul_i32 s31, s31, 147456"); a("s_mul_i32 s30, s17, 36864"); a("s_add_u32 s31, s31, s30")
    a(f"s_add_u32 s31, s31, {OFF_HM}")
    a("s_add_u32 s32, s31, 147456")
    SD, ST0, ST1 = 33, 42, 51
    rot_soffsets(a, 14, SD, ST0, ST1, 28, 31, 32, 128*1152, 22)
    a.wait_all()
    stamp_m(a, 1)
    srd(a, 8, 6, WS_REC)
    srd(a, 24, 12, 4608*1152)
    AF = 72; BR = 108
    VA = M+14; VS = M+18
    def dma(st, i):
        a(f"s_add_u32 m0, s29, {(st % NSLOT)*SLOT + i*1024}")
        a(f"buffer_load_dwordx4 v{DV+i}, s[24:27], s{SD+st} offen lds", tag=("d", st))
    def tok(ks, b):
        rb = BR + 8 * (ks % PF) + 4*b
        a(f"buffer_load_dwordx4 v[{rb}:{rb+3}], v{VT}, s[8:11], s{(ST0, ST1)[b] + ks//4} offen offset:{(ks % 4)*1024}", tag=("t", ks))
    def trd(ks, aa):
        st, kk = divmod(ks, 4); slot = st % NSLOT
        off = kk*9216 + aa*32
        a(f"ds_read_b64_tr_b16 v[{AF+4*aa}:{AF+4*aa+1}], v{VA+slot} offset:{off}", tag=("a", ks, aa))
        a(f"ds_read_b64_tr_b16 v[{AF+4*aa+2}:{AF+4*aa+3}], v{VA+slot} offset:{off+(16 if G16 else 8)*288}", tag=("a", ks, aa))
    def mfma(ks, aa, b):
        t = 2*aa + b; rb = BR + 8 * (ks % PF) + 4*b
        c = f"v[{4*t}:{4*t+3}]"
        a(f"v_mfma_f32_16x16x32_bf16 {c}, v[{AF+4*aa}:{AF+4*aa+3}], v[{rb}:{rb+3}], {c if ks else 0}")
    def between():
        stamp_m(a, 2)
        if G16:
            a(f"v_lshrrev_b32 v2, 2, v{M}")
        else:
            a(f"v_lshrrev_b32 v2, 5, v{M}"); a("v_lshlrev_b32 v2, 4, v2")
            a(f"v_bfe_u32 v3, v{M}, 4, 1"); a("v_lshl_add_u32 v2, v3, 2, v2")
            a(f"v_bfe_u32 v3, v{M}, 2, 2"); a("v_add_u32 v2, v2, v3")
        a(f"v_mul_u32_u24 v{VA}, 288, v2")
        a(f"v_and_b32 v2, 3, v{M}"); a(f"v_lshl_add_u32 v{VA}, v2, 3, v{VA}")
        a(f"v_add_u32 v{VA+1}, {SLOT}, v{VA}")
        a(f"v_add_u32 v{VA+2}, {2*SLOT}, v{VA}")
        a(f"v_add_u32 v{VA+3}, {3*SLOT}, v{VA}")
        a(f"v_and_b32 v2, 15, v{M}"); a(f"v_mul_u32_u24 v{VS}, 2304, v2")
        a(f"v_lshrrev_b32 v2, 4, v{M}"); a(f"v_lshl_add_u32 v{VS}, v2, 4, v{VS}")
        a("s_lshl_b32 s20, s17, 11"); a("s_lshl_b32 s21, s18, 7"); a("s_add_u32 s20, s20, s21")
        a("s_lshl_b32 s21, s16, 5"); a("s_add_u32 s20, s20, s21")
        a("s_mul_i32 s20, s20, 2304"); a("s_mul_i32 s21, s19, 576"); a("s_add_u32 s20, s20, s21")
        a(f"s_add_u32 s20, s20, {OFF_PART}")
        a(f"s_add_u32 s21, s20, {16*2304}")
    kloop(a, dma, tok, trd, mfma, PF, 4, (0, 1, 2, 3, 4, 5, 6, 7, 8), between)
    stamp_m(a, 5)
    for t in range(18):
        aa, b = divmod(t, 2)
        a(f"buffer_store_dwordx4 v[{4*t}:{4*t+3}], v{VS}, s[8:11], s{20+b} offen offset:{64*aa}")
    if STAMP:
        stamp_m(a, 6); a.wait_all(); stamp(a, 7); stamp_store(a, 8, 5)
    a.label("K5_END")
    a("s_endpgm")
    return a.text(), dict(vgpr=228, sgpr=60, accum=228), f"grid=(256,1,1) block=(256,1,1) lds={NSLOT*SLOT}"

def k6():
    a = Asm()
    a("s_load_dwordx2 s[6:7], s[0:1], 136")
    a("s_load_dwordx2 s[4:5], s[0:1], 120")
    a("s_cmp_ge_u32 s2, 576")
    a("s_cbranch_scc1 K6_END")
    stamp(a, 0)
    a("s_lshl_b32 s3, s2, 8"); a("v_add_u32 v1, s3, v0")
    a("v_lshlrev_b32 v2, 5, v1")
    a("v_lshlrev_b32 v3, 4, v1")
    a("s_mov_b32 s12, 0x38e38e4")
    a("v_mul_hi_u32 v4, s12, v1"); a("v_mul_u32_u24 v4, 72, v4"); a("v_sub_u32 v4, v1, v4")
    a("v_lshlrev_b32 v4, 5, v4")
    a.wait_all()
    srd(a, 8, 6, WS_REC)
    srd(a, 12, 4, 2048*1152)
    for s in range(4):
        a(f"s_mov_b32 s16, {OFF_PART + s*2048*2304}")
        a(f"buffer_load_dwordx4 v[{8+8*s}:{11+8*s}], v2, s[8:11], s16 offen")
        a(f"buffer_load_dwordx4 v[{12+8*s}:{15+8*s}], v2, s[8:11], s16 offen offset:16")
    a(f"s_mov_b32 s16, {OFF_X1R}")
    a("buffer_load_dwordx4 v[40:43], v3, s[8:11], s16 offen")
    a(f"s_mov_b32 s16, {OFF_MODF + 4608}")
    a("buffer_load_dwordx4 v[44:47], v4, s[8:11], s16 offen")
    a("buffer_load_dwordx4 v[48:51], v4, s[8:11], s16 offen offset:16")
    a.wait_all()
    stamp_m(a, 1)
    for e in range(8):
        a(f"v_add_f32 v{8+e}, v{8+e}, v{16+e}")
        a(f"v_add_f32 v{24+e}, v{24+e}, v{32+e}")
    for e in range(8):
        a(f"v_add_f32 v{8+e}, v{8+e}, v{24+e}")
    for e in range(0, 8, 2):
        rnd2(a, 8+e, 9+e, 5)
        a(f"v_mul_f32 v{8+e}, v{8+e}, v{44+e}"); a(f"v_mul_f32 v{9+e}, v{9+e}, v{45+e}")
        rnd2(a, 8+e, 9+e, 5)
        unpack(a, 5, 6, 40+e//2)
        a(f"v_add_f32 v{8+e}, v{8+e}, v5"); a(f"v_add_f32 v{9+e}, v{9+e}, v6")
        a(f"v_cvt_pk_bf16_f32 v{52+e//2}, v{8+e}, v{9+e}")
    a("buffer_store_dwordx4 v[52:55], v3, s[12:15], 0 offen")
    if STAMP:
        a.wait_all(); stamp_m(a, 2); stamp_store(a, 3, 6)
    a.label("K6_END")
    a("s_endpgm")
    return a.text(), dict(vgpr=56, sgpr=40, accum=56), "grid=(576,1,1) block=(256,1,1) lds=0"

HEADER = open("adaLN_cond__ssm_conv_s4__glu_gated_bilinear__prompt.s.ref").read().split("; Override launch")[0]

def build(kernels, path):
    out = HEADER
    bodies = []
    for name, fn in kernels:
        text, res, launch = fn()
        out += f"; @launch kernel={name} {launch}\n"
        bodies.append((name, text, res))
    out += '.amdgcn_target "amdgcn-amd-amdhsa--gfx950"\n.text\n'
    seen = set()
    for name, text, res in bodies:
        if name in seen: continue
        seen.add(name)
        out += kernel_header(name) + text
    out += '.section .rodata,"a"\n'
    seen = set()
    for name, text, res in bodies:
        if name in seen: continue
        seen.add(name)
        out += kernel_desc(name, res["vgpr"], 102 if STAMP else res["sgpr"], res["accum"])
    open(path, "w").write(out)

if __name__ == "__main__":
    if len(sys.argv) > 2 and sys.argv[2] == "stamp": STAMP = True
    if len(sys.argv) > 3: EXP = sys.argv[3]
    if EXP == "g32": G16 = False
    path = sys.argv[1] if len(sys.argv) > 1 else "adaLN_cond__ssm_conv_s4__glu_gated_bilinear__prompt.s"
    if EXP in ("sep", "g32", "norot", "notr", "stages"):
        build([("prep_kernel", k1), ("conv_kernel", k2), ("ln2_kernel", k3), ("gemm1_kernel", k4b if G16 else k4), ("gemm2_kernel", k5), ("fin_kernel", k6)], path)
    else:
        build([("prep_kernel", k1), ("conv_kernel", k2), ("gg_kernel", kgg)], path)
```

```python
import sys
from asmlib import *

import os
BASE = int(os.environ.get('WSBASE', '0'), 0)
OFF_NT   = BASE + 0x000000
OFF_XT   = BASE + 0x240000
OFF_KC   = BASE + 0x480000
OFF_X1T  = BASE + 0x6C0000
OFF_H2P  = BASE + 0x900000
OFF_X1R  = BASE + 0xB40000
OFF_MODP = BASE + 0xD80000
OFF_MODF = BASE + 0xD90000
OFF_FLG  = BASE + 0xDA0000
OFF_REP  = BASE + 0xDB0000
OFF_PF   = BASE + 0xDC0000
OFF_HM   = BASE + 0xE00000
OFF_PART = BASE + 0x2000000
WS_REC   = 0x10000000
LOG2E = 0x3fb8aa3b
INV2PI = 0x3e22f983
def f32(x):
    import struct
    return struct.unpack("<I", struct.pack("<f", x))[0]

OFF_STAMP = 0x6000000
STAMP = False
G16 = True
EXP = None
def stamp(a, i):
    if not STAMP: return
    if i == 0:
        a("v_lshrrev_b32 v1, 6, v0"); a("v_readfirstlane_b32 s99, v1")
    a(f"s_memtime s[{64+4*i}:{65+4*i}]")
    a(f"s_memrealtime s[{66+4*i}:{67+4*i}]")
    a("s_waitcnt lgkmcnt(0)"); a.lg = []
def stamp_n(a, i):
    if EXP != "stages": stamp(a, i)
def stamp_m(a, i):
    if EXP not in ("ln2st", "g2st"): stamp(a, i)
def stamp_g(a, i):
    if EXP == "g2st":
        lg = list(a.lg); stamp(a, i)
def stamp_x(a, i):
    if EXP == "ln2st": stamp(a, i)
def stamp_store(a, n, kid, tidreg="v0"):
    if not STAMP: return
    a(f"s_lshl_b32 s100, {'s98' if (kid == 1 and EXP == 'old3') else 's2'}, 11")
    a(f"s_lshl_b32 s101, s99, 7")
    a(f"s_add_u32 s100, s100, s101")
    a(f"s_add_u32 s100, s100, {OFF_STAMP + kid*0x200000}")
    a("s_mov_b64 exec, 1")
    a("v_mov_b32 v1, 0")
    for i in range(n):
        for q in range(4):
            a(f"v_mov_b32 v{4+q}, s{64+4*i+q}")
        a(f"buffer_store_dwordx4 v[4:7], v1, s[8:11], s100 offen offset:{16*i}")
        a("s_waitcnt vmcnt(0)")

def srd(a, d, lo, nrec):
    a(f"s_mov_b32 s{d}, s{lo}")
    a(f"s_and_b32 s{d+1}, s{lo+1}, 0xffff")
    a(f"s_mov_b32 s{d+2}, {nrec:#x}")
    a(f"s_mov_b32 s{d+3}, 0x00020000")

def unpack(a, dlo, dhi, src):
    a(f"v_lshlrev_b32 v{dlo}, 16, v{src}")
    a(f"v_and_b32 v{dhi}, 0xffff0000, v{src}")

def rnd1(a, r):
    a(f"v_cvt_pk_bf16_f32 v{r}, v{r}, v{r}")
    a(f"v_and_b32 v{r}, 0xffff0000, v{r}")

def rnd2(a, r0, r1, tmp):
    a(f"v_cvt_pk_bf16_f32 v{tmp}, v{r0}, v{r1}")
    unpack(a, r0, r1, tmp)

def row16_sum(a, r):
    for s in (8, 4, 2, 1):
        a(f"v_add_f32_dpp v{r}, v{r}, v{r} row_ror:{s} row_mask:0xf bank_mask:0xf")

N_LN1, N_MOD, N_KG, N_WARM = 128, 162, 576, 108
def k1():
    a = Asm()
    stamp(a, 0)
    a("s_load_dwordx2 s[6:7], s[0:1], 136")
    if STAMP: a("s_mov_b32 s98, s2")
    a(f"s_cmp_lt_u32 s2, {N_KG}")
    a("s_cbranch_scc1 K1_KGEN")
    a(f"s_cmp_ge_u32 s2, {N_LN1+N_MOD+N_KG}")
    a("s_cbranch_scc1 K1_WARM")
    a(f"s_sub_u32 s2, s2, {N_KG}")
    a(f"s_cmp_ge_u32 s2, {N_LN1}")
    a("s_cbranch_scc1 K1_MOD")
    PITCH = 1216; LN_N = 0; LN_X = 16 * PITCH
    a("s_load_dwordx2 s[4:5], s[0:1], 0")
    a("v_lshrrev_b32 v1, 4, v0")
    a("v_and_b32 v2, 15, v0")
    a("v_mul_u32_u24 v3, 1152, v1")
    a("v_lshl_add_u32 v3, v2, 3, v3")
    a("s_mul_i32 s3, s2, 18432")
    a.wait_all()
    srd(a, 12, 4, 2048*1152)
    srd(a, 8, 6, WS_REC)
    X = 10
    for k in range(9):
        a(f"buffer_load_dwordx2 v[{X+2*k}:{X+2*k+1}], v3, s[12:15], s3 offen offset:{128*k}", tag=("x", k))
    a(f"v_mul_u32_u24 v4, {PITCH}, v1")
    a("v_lshl_add_u32 v4, v2, 3, v4")
    F = 28
    for k in range(9):
        a.wait_vm(("x", k))
        for h in range(2):
            unpack(a, F+4*k+2*h, F+4*k+2*h+1, X+2*k+h)
        a(f"ds_write_b64 v4, v[{X+2*k}:{X+2*k+1}] offset:{LN_X+128*k}")
    stamp(a, 1)
    a(f"v_add_f32 v5, v{F}, v{F+1}")
    a(f"v_add_f32 v6, v{F+2}, v{F+3}")
    for i in range(4, 36, 2):
        a(f"v_add_f32 v5, v5, v{F+i}")
        a(f"v_add_f32 v6, v6, v{F+i+1}")
    a("v_add_f32 v5, v5, v6")
    row16_sum(a, 5)
    a(f"v_mul_f32 v5, {f32(1.0/576):#x}, v5")
    a("v_mov_b32 v6, 0"); a("v_mov_b32 v7, 0")
    for i in range(0, 36, 2):
        a(f"v_sub_f32 v8, v{F+i}, v5"); a(f"v_sub_f32 v9, v{F+i+1}, v5")
        a("v_fmac_f32 v6, v8, v8"); a("v_fmac_f32 v7, v9, v9")
    a("v_add_f32 v6, v6, v7")
    row16_sum(a, 6)
    a(f"v_mul_f32 v6, {f32(1.0/576):#x}, v6")
    rnd1(a, 6)
    a(f"v_add_f32 v6, {f32(1e-5):#x}, v6")
    rnd1(a, 6)
    a("v_sqrt_f32 v6, v6")
    rnd1(a, 6)
    a("v_rcp_f32 v7, v6")
    rnd1(a, 5)
    for k in range(9):
        for h in range(2):
            r0 = F+4*k+2*h; r1 = r0+1
            a(f"v_sub_f32 v{r0}, v{r0}, v5"); a(f"v_sub_f32 v{r1}, v{r1}, v5")
            rnd2(a, r0, r1, 8)
            a(f"v_mul_f32 v8, v{r0}, v7"); a(f"v_mul_f32 v9, v{r1}, v7")
            a(f"v_fma_f32 v{r0}, -v8, v6, v{r0}"); a(f"v_fma_f32 v{r1}, -v9, v6, v{r1}")
            a(f"v_fmac_f32 v8, v{r0}, v7"); a(f"v_fmac_f32 v9, v{r1}, v7")
            a(f"v_cvt_pk_bf16_f32 v{X+2*k+h}, v8, v9")
        a(f"ds_write_b64 v4, v[{X+2*k}:{X+2*k+1}] offset:{LN_N+128*k}")
    a("v_and_b32 v1, 63, v0")
    a("v_lshrrev_b32 v2, 6, v0")
    a("v_readfirstlane_b32 s16, v2")
    a("v_lshrrev_b32 v3, 4, v1")
    a("v_and_b32 v5, 1, v3")
    a("v_lshrrev_b32 v6, 1, v3")
    a("v_bfe_u32 v7, v1, 2, 2")
    a("v_and_b32 v8, 3, v1")
    a("v_lshl_add_u32 v7, v6, 3, v7")
    a(f"v_mul_u32_u24 v7, {PITCH}, v7")
    a("v_lshl_add_u32 v7, v5, 5, v7")
    a("v_lshl_add_u32 v7, v8, 3, v7")
    a("s_lshr_b32 s17, s16, 1")
    a("s_and_b32 s18, s16, 1")
    a(f"s_mul_i32 s19, s17, {LN_X}")
    a("s_mul_i32 s20, s18, 576")
    a("s_add_u32 s19, s19, s20")
    a("v_add_u32 v7, s19, v7")
    a("v_and_b32 v9, 15, v1")
    a("v_lshl_add_u32 v9, v5, 4, v9")
    a("v_lshlrev_b32 v9, 5, v9")
    a("v_lshl_add_u32 v9, v6, 4, v9")
    a(f"s_mul_i32 s21, s17, {OFF_XT - OFF_NT}")
    a("s_add_u32 s21, s21, s3")
    a("s_mul_i32 s22, s18, 9216")
    a("s_add_u32 s21, s21, s22")
    if OFF_NT: a(f"s_add_u32 s21, s21, {OFF_NT}")
    a("s_add_u32 s22, s21, 4096")
    a("s_add_u32 s23, s21, 8192")
    a.wait_all(vm=False)
    a("s_barrier")
    stamp(a, 2)
    for i in range(9):
        a(f"ds_read_b64_tr_b16 v[{F+4*i}:{F+4*i+1}], v7 offset:{64*i}", tag=("t", i))
        a(f"ds_read_b64_tr_b16 v[{F+4*i+2}:{F+4*i+3}], v7 offset:{64*i+4*PITCH}", tag=("t", i))
    for i in range(9):
        a.wait_lg(("t", i))
        a(f"buffer_store_dwordx4 v[{F+4*i}:{F+4*i+3}], v9, s[8:11], s{21+i//4} offen offset:{1024*(i%4)}")
    if STAMP:
        a.wait_all(); stamp(a, 3); stamp_store(a, 4, 1)
    a("s_endpgm")
    a.label("K1_MOD"); a.hist = []; a.vm = []; a.lg = []
    a("s_load_dwordx2 s[4:5], s[0:1], 112")
    a("s_load_dwordx2 s[16:17], s[0:1], 104")
    a(f"s_sub_u32 s3, s2, {N_LN1}")
    a("s_mov_b32 s20, 0")
    a("s_cmp_ge_u32 s3, 54"); a("s_cselect_b32 s20, 1, s20")
    a("s_cmp_ge_u32 s3, 108"); a("s_cselect_b32 s20, 2, s20")
    a("s_mul_i32 s21, s20, 54"); a("s_sub_u32 s21, s3, s21")
    a("v_lshrrev_b32 v1, 3, v0")
    a("v_and_b32 v2, 7, v0")
    a("v_mul_u32_u24 v3, 6912, v1")
    a("v_lshl_add_u32 v3, v2, 4, v3")
    a("v_lshlrev_b32 v4, 1, v1")
    a(f"s_mul_i32 s22, s20, {192*6912}")
    a("s_lshl_b32 s23, s21, 7")
    a("s_add_u32 s22, s22, s23")
    a("s_mul_i32 s23, s20, 384")
    a.wait_all()
    srd(a, 12, 4, 576*6912)
    srd(a, 24, 16, 1152)
    srd(a, 8, 6, WS_REC)
    for i in range(6):
        a(f"buffer_load_ushort v{10+i}, v4, s[24:27], s23 offen offset:{64*i}", tag="c")
    for i in range(6):
        a(f"buffer_load_dwordx4 v[{16+4*i}:{19+4*i}], v3, s[12:15], s22 offen", tag=("w", i))
        if i < 5: a(f"s_add_u32 s22, s22, {32*6912}")
    for j in range(8): a(f"v_mov_b32 v{40+j}, 0")
    a.wait_vm("c")
    for i in range(6):
        r = 10+i
        a(f"v_lshlrev_b32 v{r}, 16, v{r}")
        a(f"v_mul_f32 v5, {(LOG2E|0x80000000):#x}, v{r}")
        a("v_exp_f32 v5, v5")
        a("v_add_f32 v5, 1.0, v5")
        a("v_rcp_f32 v5, v5")
        a(f"v_mul_f32 v{r}, v{r}, v5")
        rnd1(a, r)
    for i in range(6):
        a.wait_vm(("w", i))
        for q in range(4):
            unpack(a, 5, 6, 16+4*i+q)
            a(f"v_fmac_f32 v{40+2*q}, v{10+i}, v5")
            a(f"v_fmac_f32 v{41+2*q}, v{10+i}, v6")
    stamp(a, 1)
    a("v_lshlrev_b32 v5, 8, v1")
    a("v_lshl_add_u32 v5, v2, 5, v5")
    a("ds_write_b128 v5, v[40:43]")
    a("ds_write_b128 v5, v[44:47] offset:16")
    a("v_lshlrev_b32 v6, 2, v0")
    a("v_lshrrev_b32 v7, 6, v0")
    a("v_readfirstlane_b32 s16, v7")
    a.wait_all(vm=False)
    a("s_barrier")
    stamp(a, 2)
    a("s_cmp_lg_u32 s16, 0")
    a("s_cbranch_scc1 K1_END")
    for i in range(32):
        a(f"ds_read_b32 v{10+i}, v6 offset:{256*i}", tag=("r", i))
    a.wait_all(vm=False)
    for st in (16, 8, 4, 2, 1):
        for i in range(st):
            a(f"v_add_f32 v{10+i}, v{10+i}, v{10+i+st}")
    a(f"s_mul_i32 s22, s20, {3456*4}")
    a("s_lshl_b32 s23, s21, 8")
    a("s_add_u32 s22, s22, s23")
    a(f"s_add_u32 s22, s22, {OFF_MODP}")
    a("buffer_store_dword v10, v6, s[8:11], s22 offen")
    if STAMP:
        a.wait_all(); stamp(a, 3); stamp_store(a, 4, 1)
    a("s_endpgm")
    a.label("K1_KGEN"); a.hist = []; a.vm = []; a.lg = []
    a("s_load_dwordx8 s[16:23], s[0:1], 8")
    a("s_load_dwordx4 s[24:27], s[0:1], 40")
    a("s_load_dwordx2 s[28:29], s[0:1], 56")
    a("s_mov_b32 s3, s2")
    a("v_and_b32 v1, 63, v0")
    a("v_lshrrev_b32 v2, 6, v0")
    a("v_lshrrev_b32 v3, 4, v1")
    a("v_and_b32 v4, 15, v0")
    a("v_and_b32 v5, 31, v0")
    a("v_lshl_add_u32 v5, v2, 5, v5")
    a("v_lshlrev_b32 v6, 4, v5")
    a("v_lshlrev_b32 v5, 1, v5")
    a("s_lshl_b32 s4, s3, 8")
    a("v_add_u32 v5, s4, v5")
    a("s_lshl_b32 s5, s3, 1")
    a("v_mov_b32 v15, s5")
    a.wait_all()
    a("global_load_ushort v7, v15, s[28:29]", tag="p")
    for q in range(6):
        a(f"global_load_ushort v{28+q}, v5, s[{16+2*q}:{17+2*q}]", tag="p")
    srd(a, 8, 6, WS_REC)
    a("v_and_b32 v12, 7, v4")
    a("v_lshrrev_b32 v13, 3, v4")
    a("v_lshl_add_u32 v8, v13, 7, v12")
    a("v_lshrrev_b32 v12, 2, v4"); a("v_lshlrev_b32 v12, 7, v12")
    a("v_and_b32 v13, 3, v4"); a("v_lshl_add_u32 v12, v13, 1, v12")
    a("v_add_u32 v12, 256, v12")
    a("v_subrev_u32 v13, 8, v4"); a("v_lshrrev_b32 v13, 1, v13"); a("v_lshlrev_b32 v13, 7, v13")
    a("v_and_b32 v14, 1, v4"); a("v_lshl_add_u32 v13, v14, 2, v13")
    a("v_add_u32 v13, 512, v13")
    a("v_cmp_gt_u32 vcc, 8, v4")
    a("v_cndmask_b32 v9, v13, v12, vcc")
    a("v_lshlrev_b32 v12, 7, v4"); a("v_add_u32 v12, 1024, v12")
    a("v_mov_b32 v13, 2048")
    a("v_cndmask_b32 v10, v13, v12, vcc")
    a("v_lshlrev_b32 v11, 3, v4")
    HT = 12288; T16 = 12544; PT = 16896
    a("v_lshlrev_b32 v12, 2, v4")
    for T in range(3):
        a(f"ds_write_b32 v12, v{8+T} offset:{HT+64*T}")
    for T in range(4):
        a(f"v_cvt_f32_u32 v{8+T}, v{8+T}")
    a("v_lshlrev_b32 v12, 9, v2"); a("v_lshl_add_u32 v12, v3, 6, v12")
    a("s_mov_b32 s30, 0x07060302")
    a.wait_vm("p")
    stamp(a, 1)
    a("v_lshlrev_b32 v7, 16, v7")
    a(f"v_mul_f32 v7, {LOG2E:#x}, v7")
    a("v_exp_f32 v7, v7")
    rnd1(a, 7)
    for q in range(6): a(f"v_lshlrev_b32 v{28+q}, 16, v{28+q}")
    for q in range(4): a(f"v_mul_f32 v{28+q}, v7, v{28+q}")
    a(f"v_mul_f32 v36, {LOG2E:#x}, v28")
    a(f"v_mul_f32 v37, {INV2PI:#x}, v29")
    a("v_mul_f32 v38, v32, v30"); a("v_mul_f32 v39, v32, v31")
    a("v_fma_f32 v38, -v33, v31, v38")
    a("v_fmac_f32 v39, v33, v30")
    a(f"ds_write_b128 v6, v[36:39] offset:{PT}")
    P = 64
    for st in range(8):
        a(f"ds_read_b128 v[{P+4*st}:{P+4*st+3}], v12 offset:{PT+256*(st >> 2)+16*(st & 3)}", tag=("pp", st))
    FR = 96
    def fr(kp, T, lo): return FR + 8*T + 4*lo
    def valu(st):
        kp, e2 = divmod(st, 4)
        pr = P + 4*st; E = 36; Er = 48
        L = []
        for T in (3, 0, 1, 2):
            L.append(f"v_mul_f32 v{E+3*T}, v{pr}, v{8+T}")
            L.append(f"v_mul_f32 v{E+3*T+1}, v{pr+1}, v{8+T}")
        for T in (3, 0, 1, 2):
            L.append(f"v_exp_f32 v{E+3*T}, v{E+3*T}")
            L.append(f"v_fract_f32 v{E+3*T+1}, v{E+3*T+1}")
        for T in (3, 0, 1, 2):
            L.append(f"v_cos_f32 v{E+3*T+2}, v{E+3*T+1}")
            L.append(f"v_sin_f32 v{E+3*T+1}, v{E+3*T+1}")
        for T in (3, 0, 1, 2):
            L.append(f"v_mul_f32 v{E+3*T+1}, v{E+3*T}, v{E+3*T+1}")
            L.append(f"v_mul_f32 v{E+3*T}, v{E+3*T}, v{E+3*T+2}")
        L.append(f"v_mul_f32 v{Er}, v{pr+2}, v{E+9}")
        L.append(f"v_mul_f32 v{Er+1}, v{pr+2}, v{E+10}")
        L.append(f"v_fma_f32 v{Er}, -v{pr+3}, v{E+10}, v{Er}")
        L.append(f"v_fma_f32 v{Er+1}, -v{pr+3}, v{E+9}, -v{Er+1}")
        for T in range(4):
            r = Er if T == 3 else E+3*T
            L.append(f"v_perm_b32 v{fr(kp,T,0)+e2}, v{r+1}, v{r}, s30")
            L.append(f"v_and_b32 v50, 0xffff0000, v{r}")
            L.append(f"v_and_b32 v51, 0xffff0000, v{r+1}")
            L.append(f"v_sub_f32 v50, v{r}, v50")
            L.append(f"v_sub_f32 v51, v{r+1}, v51")
            L.append(f"v_perm_b32 v{fr(kp,T,1)+e2}, v51, v50, s30")
        return L
    def mf(kp):
        L = []
        for pi, (al, bl) in enumerate(((1, 0), (0, 1), (0, 0))):
            for T in range(3):
                c = f"v[{16+4*T}:{19+4*T}]"
                A = fr(kp, T, al); B = fr(kp, 3, bl)
                L.append(f"v_mfma_f32_16x16x32_bf16 {c}, v[{A}:{A+3}], v[{B}:{B+3}], {c if (kp or pi) else 0}")
        return L
    for st in range(8):
        a.wait_lg(("pp", st))
        Mf = mf(0) if st == 4 else []
        for idx, ins in enumerate(valu(st)):
            if Mf and idx % 3 == 2: a(Mf.pop(0))
            a(ins)
    for ins in mf(1): a(ins)
    stamp(a, 2)
    a("v_mul_u32_u24 v12, 3072, v2")
    a("v_lshl_add_u32 v12, v1, 4, v12")
    for T in range(3):
        a(f"ds_write_b128 v12, v[{16+4*T}:{19+4*T}] offset:{1024*T}")
    a("v_readfirstlane_b32 s16, v2")
    a("v_lshlrev_b32 v13, 4, v0")
    a("v_lshlrev_b32 v14, 6, v2")
    a("v_lshl_add_u32 v14, v3, 4, v14")
    a.wait_all(vm=False)
    a("s_barrier")
    a("s_cmp_eq_u32 s16, 3")
    a("s_cbranch_scc1 K1_KG_C")
    for w in range(4):
        a(f"ds_read_b128 v[{16+4*w}:{19+4*w}], v13 offset:{3072*w}")
    a(f"ds_read_b128 v[32:35], v14 offset:{HT}")
    a.wait_all(vm=False)
    for r in range(4):
        a(f"v_add_f32 v{16+r}, v{16+r}, v{20+r}")
        a(f"v_add_f32 v{24+r}, v{24+r}, v{28+r}")
        a(f"v_lshl_add_u32 v{32+r}, v4, 3, v{32+r}")
    for r in range(4):
        a(f"v_add_f32 v{16+r}, v{16+r}, v{24+r}")
        a(f"v_lshlrev_b32 v{32+r}, 1, v{32+r}")
    for r in range(4):
        a(f"v_cvt_pk_bf16_f32 v{16+r}, v{16+r}, v{16+r}")
    for r in range(4):
        a(f"ds_write_b16 v{32+r}, v{16+r} offset:{T16}")
    a.label("K1_KG_C"); a.fence(4)
    a("v_lshlrev_b32 v12, 3, v0")
    for e in range(8):
        a(f"v_add_u32 v{16+e}, {e}, v12")
        a(f"v_cvt_f32_u32 v{16+e}, v{16+e}")
    for e in range(0, 8, 2):
        rnd2(a, 16+e, 17+e, 13)
    for e in range(8):
        a(f"v_cvt_u32_f32 v{16+e}, v{16+e}")
        a(f"v_lshlrev_b32 v{16+e}, 1, v{16+e}")
    a("v_lshlrev_b32 v12, 4, v0")
    a("s_lshl_b32 s4, s3, 12")
    a(f"s_add_u32 s4, s4, {OFF_KC}")
    a.wait_all(vm=False)
    a("s_barrier")
    for e in range(8):
        a(f"ds_read_u16 v{24+e}, v{16+e} offset:{T16}")
    a.wait_all(vm=False)
    for e in range(4):
        a(f"v_lshl_or_b32 v{32+e}, v{25+2*e}, 16, v{24+2*e}")
    a("buffer_store_dwordx4 v[32:35], v12, s[8:11], s4 offen")
    if STAMP:
        a.wait_all(); stamp(a, 3); stamp_store(a, 4, 1)
    a.label("K1_END")
    a("s_endpgm")
    a.label("K1_WARM"); a.hist = []; a.vm = []; a.lg = []
    a(f"s_cmp_ge_u32 s2, {N_LN1+N_MOD+N_KG+N_WARM}")
    a("s_cbranch_scc1 K1_END")
    a("s_load_dwordx4 s[12:15], s[0:1], 80")
    a("s_load_dwordx2 s[16:17], s[0:1], 96")
    a(f"s_sub_u32 s3, s2, {N_LN1+N_MOD+N_KG}")
    a("v_lshlrev_b32 v1, 4, v0")
    a.wait_all()
    a("s_cmp_ge_u32 s3, 36"); a("s_cselect_b32 s12, s14, s12"); a("s_cselect_b32 s13, s15, s13")
    a("s_cselect_b32 s18, 36, 0")
    a("s_cmp_ge_u32 s3, 72"); a("s_cselect_b32 s12, s16, s12"); a("s_cselect_b32 s13, s17, s13")
    a("s_cselect_b32 s18, 72, s18")
    a("s_sub_u32 s3, s3, s18"); a("s_mul_i32 s3, s3, 147456")
    srd(a, 8, 12, 576*9216)
    for i in range(36):
        a(f"buffer_load_dwordx4 v[{4+4*(i % 18)}:{7+4*(i % 18)}], v1, s[8:11], s3 offen")
        a("s_add_u32 s3, s3, 4096")
        if i % 6 == 5: a("s_waitcnt vmcnt(2)")
    a("s_endpgm")
    return a.text(), dict(vgpr=128, sgpr=100 if STAMP else 40, accum=128), f"grid=({N_LN1+N_MOD+N_KG+N_WARM},1,1) block=(256,1,1) lds=38912"

def k2():
    a = Asm()
    CS = 4160; KB = 4 * CS; HB0 = 4 * KB; HS = 4640
    a("s_load_dwordx2 s[6:7], s[0:1], 136")
    a("s_load_dwordx2 s[4:5], s[0:1], 64")
    a("s_cmp_gt_u32 s2, 144")
    a("s_cbranch_scc1 K2_END")
    a("s_cmp_eq_u32 s2, 144")
    a("s_cbranch_scc1 K2_MODF")
    stamp(a, 0)
    a("v_and_b32 v1, 63, v0")
    a("v_lshrrev_b32 v2, 6, v0")
    a("v_readfirstlane_b32 s16, v2")
    a("v_and_b32 v3, 7, v1")
    a("v_lshrrev_b32 v4, 3, v1")
    a("v_lshrrev_b32 v5, 1, v3")
    a("s_lshl_b32 s17, s2, 2")
    a("s_add_u32 s18, s17, s16")
    a.wait_all()
    srd(a, 8, 6, WS_REC)
    a("v_mul_u32_u24 v6, 18432, v4")
    a("v_lshl_add_u32 v6, v3, 4, v6")
    a(f"s_mul_i32 s19, s16, {32*18432}")
    a("s_lshl_b32 s20, s17, 5")
    a("s_add_u32 s19, s19, s20")
    if OFF_NT: a(f"s_add_u32 s19, s19, {OFF_NT}")
    NR = 64
    for i in range(4):
        a(f"buffer_load_dwordx4 v[{NR+4*i}:{NR+4*i+3}], v6, s[8:11], s19 offen", tag=("n", i))
        if i < 3: a(f"s_add_u32 s19, s19, {8*18432}")
    a("v_add_u32 v7, s17, v5"); a("v_lshlrev_b32 v7, 2, v7")
    a("s_lshl_b32 s20, s18, 2"); a("v_mov_b32 v8, s20")
    a(f"s_mov_b32 s21, {OFF_MODP}")
    for ks in range(3):
        a(f"buffer_load_dword v{80+ks}, v7, s[8:11], s21 offen", tag="m")
        a(f"buffer_load_dword v{83+ks}, v7, s[8:11], s21 offen offset:2304", tag="m")
        a(f"s_add_u32 s22, s21, 4608")
        a(f"buffer_load_dword v{86+ks}, v8, s[8:11], s22 offen", tag="m")
        if ks < 2: a(f"s_add_u32 s21, s21, {3456*4}")
    a("s_lshl_b32 s20, s18, 1"); a("v_mov_b32 v9, s20")
    a("global_load_ushort v89, v9, s[4:5]", tag="m")
    a("v_lshlrev_b32 v10, 4, v1")
    a("v_subrev_u32 v11, 4, v10")
    a("s_lshl_b32 s21, s18, 12")
    a(f"s_add_u32 s21, s21, {OFF_KC}")
    a("s_sub_u32 s22, s21, 4")
    KR = 96
    for i in range(4):
        a(f"buffer_load_dwordx4 v[{KR+4*i}:{KR+4*i+3}], v10, s[8:11], s21 offen offset:{1024*i}", tag=("k", i))
        a(f"buffer_load_dword v{KR+16+i}, v10, s[8:11], s22 offen offset:{1024*i}", tag=("k", i))
    a("v_and_b32 v12, 15, v1")
    a("v_lshrrev_b32 v13, 4, v1")
    a("v_mul_u32_u24 v14, 18432, v12")
    a("v_lshl_add_u32 v14, v13, 3, v14")
    a("s_lshl_b32 s23, s18, 5")
    a(f"s_add_u32 s24, s23, {OFF_XT}")
    XR = 200
    for jt in range(8):
        a(f"buffer_load_dwordx2 v[{XR+2*jt}:{XR+2*jt+1}], v14, s[8:11], s24 offen", tag="x")
        if jt < 7: a(f"s_add_u32 s24, s24, {16*18432}")
    a("v_mov_b32 v16, 0"); a("v_mov_b32 v17, 0")
    a(f"s_mul_i32 s25, s16, {HS}"); a(f"s_add_u32 s25, s25, {HB0}")
    a(f"s_mul_i32 s26, s16, {KB}")
    a("v_lshlrev_b32 v15, 3, v1"); a("v_add_u32 v15, s25, v15")
    a("ds_write_b64 v15, v[16:17]")
    a(f"v_mul_u32_u24 v15, {CS}, v13"); a("v_lshl_add_u32 v15, v12, 2, v15"); a("v_add_u32 v15, s26, v15")
    a("ds_write_b32 v15, v16")
    a.wait_vm("m")
    stamp(a, 1)
    for b in (80, 83, 86):
        a(f"v_add_f32 v{b}, v{b}, v{b+1}"); a(f"v_add_f32 v{b}, v{b}, v{b+2}")
        rnd1(a, b)
    a("v_add_f32 v83, 1.0, v83"); rnd1(a, 83)
    a("v_lshlrev_b32 v57, 16, v89")
    a("v_mov_b32 v56, v86")
    a(f"v_mul_u32_u24 v15, {HS}, v5")
    a("v_and_b32 v18, 1, v3")
    a("v_lshl_add_u32 v15, v18, 4, v15")
    a("v_lshl_add_u32 v15, v4, 5, v15")
    a("s_lshl_b32 s27, s16, 10"); a(f"s_add_u32 s27, s27, {HB0+512}")
    a("v_add_u32 v15, s27, v15")
    for i in range(4):
        for q in range(4):
            r = NR+4*i+q
            unpack(a, 18, 19, r)
            a("v_mul_f32 v18, v18, v83"); a("v_mul_f32 v19, v19, v83")
            rnd2(a, 18, 19, 20)
            a("v_add_f32 v18, v18, v80"); a("v_add_f32 v19, v19, v80")
            a(f"v_cvt_pk_bf16_f32 v{r}, v18, v19")
        a(f"ds_write_b128 v15, v[{NR+4*i}:{NR+4*i+3}] offset:{256*i}")
    a("v_add_u32 v15, s26, v10")
    a("v_add_u32 v21, 4, v15")
    a("v_cmp_eq_u32 vcc, 0, v1")
    for i in range(4):
        a.wait_vm(("k", i))
        d = KR+4*i; pv = KR+16+i
        if i == 0: a(f"v_cndmask_b32 v{pv}, v{pv}, v16, vcc")
        a(f"v_alignbit_b32 v24, v{d}, v{pv}, 16")
        for q in range(1, 4): a(f"v_alignbit_b32 v{24+q}, v{d+q}, v{d+q-1}, 16")
        o = 32 + 1024*i
        a(f"ds_write_b128 v15, v[{d}:{d+3}] offset:{o}")
        a(f"ds_write_b128 v15, v[24:27] offset:{o+CS}")
        a(f"v_add_u32 v22, {o+2*CS}, v21")
        a(f"v_add_u32 v23, {o+3*CS}, v21")
        a(f"ds_write2_b32 v22, v{d}, v{d+1} offset0:0 offset1:1")
        a(f"ds_write2_b32 v22, v{d+2}, v{d+3} offset0:2 offset1:3")
        a(f"ds_write2_b32 v23, v24, v25 offset0:0 offset1:1")
        a(f"ds_write2_b32 v23, v26, v27 offset0:2 offset1:3")
    a("v_lshlrev_b32 v18, 5, v12"); a("v_lshl_add_u32 v18, v13, 4, v18")
    a("s_add_u32 s27, s25, 32"); a("v_add_u32 v18, s27, v18")
    a("v_bfe_u32 v19, v1, 2, 2"); a(f"v_mul_u32_u24 v19, {CS}, v19")
    a("v_and_b32 v20, 3, v1"); a("v_lshl_add_u32 v19, v20, 3, v19")
    a("v_lshlrev_b32 v20, 4, v13"); a("v_sub_u32 v19, v19, v20")
    a("s_add_u32 s27, s26, 56"); a("v_add_u32 v19, s27, v19")
    a("v_lshlrev_b32 v20, 5, v12"); a("v_lshl_add_u32 v20, v13, 3, v20")
    a("s_add_u32 s27, s25, 512"); a("v_add_u32 v20, s27, v20")
    ACC = 24
    a.wait_all(vm=False)
    a("s_barrier")
    stamp(a, 2)
    for r in range(32): a(f"v_mov_b32 v{ACC+r}, 0")
    BUF = [(64, 96), (128, 160)]
    def loads(r):
        Bb, Ab = BUF[r & 1]
        L = []
        for u in range(8):
            q = 8*u - r
            L.append(f"ds_read_b128 v[{Bb+4*u}:{Bb+4*u+3}], v18 offset:{64*(q+7)}")
        for aa in range(8):
            m = r + 8*aa
            L.append(f"ds_read_b64_tr_b16 v[{Ab+4*aa}:{Ab+4*aa+1}], v19 offset:{64*m+8}")
            L.append(f"ds_read_b64_tr_b16 v[{Ab+4*aa+2}:{Ab+4*aa+3}], v19 offset:{64*m}")
        return L
    for s in loads(0): a(s)
    for r in range(8):
        a.wait_all(vm=False)
        Bb, Ab = BUF[r & 1]
        nxt = loads(r+1) if r < 7 else [f"ds_read_b64 v[{216+2*jt}:{217+2*jt}], v20 offset:{512*jt}" for jt in range(8)]
        for aa in range(8):
            for jt in range(aa, 8):
                u = jt - aa
                a(f"v_mfma_f32_16x16x32_bf16 v[{ACC+4*jt}:{ACC+4*jt+3}], v[{Ab+4*aa}:{Ab+4*aa+3}], v[{Bb+4*u}:{Bb+4*u+3}], v[{ACC+4*jt}:{ACC+4*jt+3}]")
                if nxt: a(nxt.pop(0))
    a.wait_all()
    stamp(a, 3)
    a(f"s_add_u32 s24, s23, {OFF_X1T}")
    for jt in range(8):
        for h in range(2):
            y0 = ACC+4*jt+2*h; y1 = y0+1
            rnd2(a, y0, y1, 64)
            unpack(a, 65, 66, 216+2*jt+h)
            a("v_mul_f32 v65, v65, v57"); a("v_mul_f32 v66, v66, v57")
            rnd2(a, 65, 66, 64)
            a(f"v_add_f32 v{y0}, v{y0}, v65"); a(f"v_add_f32 v{y1}, v{y1}, v66")
            rnd2(a, y0, y1, 64)
            a(f"v_mul_f32 v{y0}, v{y0}, v56"); a(f"v_mul_f32 v{y1}, v{y1}, v56")
            rnd2(a, y0, y1, 64)
            unpack(a, 65, 66, XR+2*jt+h)
            a(f"v_add_f32 v{y0}, v{y0}, v65"); a(f"v_add_f32 v{y1}, v{y1}, v66")
            a(f"v_cvt_pk_bf16_f32 v{XR+2*jt+h}, v{y0}, v{y1}")
        a(f"buffer_store_dwordx2 v[{XR+2*jt}:{XR+2*jt+1}], v14, s[8:11], s24 offen")
        if jt < 7: a(f"s_add_u32 s24, s24, {16*18432}")
    if STAMP:
        stamp(a, 4); a.wait_all(); stamp(a, 5); stamp_store(a, 6, 2)
    a("s_endpgm")
    a.label("K2_MODF"); a.hist = []; a.vm = []; a.lg = []
    a.wait_all()
    srd(a, 8, 6, WS_REC)
    a("v_lshlrev_b32 v1, 2, v0")
    a("v_lshlrev_b32 v2, 4, v0")
    for q in range(4): a(f"v_mov_b32 v{4+q}, 0")
    a(f"s_mov_b32 s20, {OFF_FLG}")
    a(f"s_mov_b32 s21, {OFF_FLG + 8192}")
    for q in range(4):
        a(f"buffer_store_dwordx4 v[4:7], v2, s[8:11], s{20 + q//2} offen" + (" offset:0" if q % 2 == 0 else ""))
        if q % 2 == 0: a("v_add_u32 v2, 4096, v2")
        else: a("v_subrev_u32 v2, 4096, v2")
    for i in range(7):
        for ks in range(3):
            a(f"s_mov_b32 s20, {OFF_MODP + ks*3456*4 + 1728*4 + 1024*i}")
            a(f"buffer_load_dword v{10+3*i+ks}, v1, s[8:11], s20 offen")
    a.wait_all()
    for i in range(7):
        b = 10+3*i
        a(f"v_add_f32 v{b}, v{b}, v{b+1}"); a(f"v_add_f32 v{b}, v{b}, v{b+2}")
        rnd1(a, b)
        a(f"v_add_f32 v{b+1}, 1.0, v{b}")
        rnd1(a, b+1)
        a(f"v_add_u32 v2, {256*i}, v0")
        a("v_subrev_u32 v3, 576, v2")
        a("v_cmp_gt_u32 vcc, 576, v3")
        a(f"v_cndmask_b32 v{b}, v{b}, v{b+1}, vcc")
        a(f"s_mov_b32 s20, {OFF_MODF + 1024*i}")
        if i == 6:
            a("v_cmp_gt_u32 vcc, 1728, v2")
            a("s_and_saveexec_b64 s[22:23], vcc")
            a("s_cbranch_execz K2_END")
        a(f"buffer_store_dword v{b}, v1, s[8:11], s20 offen")
    a.label("K2_END")
    a("s_endpgm")
    return a.text(), dict(vgpr=232, sgpr=40, accum=232), f"grid=(145,1,1) block=(256,1,1) lds={HB0+4*HS}"

def k3():
    a = Asm()
    RED = 18432
    a("s_load_dwordx2 s[6:7], s[0:1], 136")
    a("s_cmp_ge_u32 s2, 128")
    a("s_cbranch_scc1 K3_END")
    stamp(a, 0)
    a("v_and_b32 v1, 63, v0")
    a("v_lshrrev_b32 v2, 6, v0")
    a("v_readfirstlane_b32 s16, v2")
    a("v_lshlrev_b32 v3, 4, v1")
    a("v_and_b32 v4, 15, v1")
    a("v_lshrrev_b32 v5, 4, v1")
    a("s_mul_i32 s17, s16, 3072")
    a("s_mul_i32 s18, s2, 18432")
    a("s_add_u32 s18, s18, s17")
    a(f"s_add_u32 s18, s18, {OFF_X1T}")
    a.wait_all()
    srd(a, 8, 6, WS_REC)
    a("s_mov_b32 m0, s17")
    for i in range(3):
        a(f"buffer_load_dwordx4 v3, s[8:11], s18 offen offset:{1024*i} lds", tag="x")
    a("s_mul_i32 s19, s16, 384")
    a(f"s_add_u32 s19, s19, {OFF_MODF}")
    a("v_lshlrev_b32 v6, 5, v5")
    SB = 40; CB = 64
    for i in range(3):
        for h in range(2):
            a(f"buffer_load_dwordx4 v[{SB+8*i+4*h}:{SB+8*i+4*h+3}], v6, s[8:11], s19 offen offset:{128*i+16*h}", tag="m")
            a(f"buffer_load_dwordx4 v[{CB+8*i+4*h}:{CB+8*i+4*h+3}], v6, s[8:11], s19 offen offset:{2304+128*i+16*h}", tag="m")
    a("v_bfe_u32 v7, v1, 2, 2"); a("v_lshlrev_b32 v7, 5, v7")
    a("v_and_b32 v8, 3, v1"); a("v_lshl_add_u32 v7, v8, 3, v7")
    a("v_lshl_add_u32 v7, v5, 8, v7")
    a("v_add_u32 v7, s17, v7")
    a.wait_vm("x")
    stamp(a, 1)
    X = 10
    for i in range(3):
        a(f"ds_read_b64_tr_b16 v[{X+4*i}:{X+4*i+1}], v7 offset:{1024*i}", tag=("t", i))
        a(f"ds_read_b64_tr_b16 v[{X+4*i+2}:{X+4*i+3}], v7 offset:{1024*i+128}", tag=("t", i))
    a("v_mul_u32_u24 v8, 1152, v4"); a("v_lshl_add_u32 v8, v5, 4, v8")
    a("s_mul_i32 s20, s2, 18432"); a("s_mul_i32 s21, s16, 192"); a("s_add_u32 s20, s20, s21")
    a(f"s_add_u32 s20, s20, {OFF_X1R}")
    F = 88
    for i in range(3):
        a.wait_lg(("t", i))
        a(f"buffer_store_dwordx4 v[{X+4*i}:{X+4*i+3}], v8, s[8:11], s20 offen offset:{64*i}")
        for q in range(4): unpack(a, F+8*i+2*q, F+8*i+2*q+1, X+4*i+q)
    def xreduce(r, off):
        a(f"v_mov_b32 v24, v{r}")
        a(f"v_permlane32_swap_b32 v24, v{r}")
        a(f"v_add_f32 v{r}, v{r}, v24")
        a(f"v_mov_b32 v24, v{r}")
        a(f"v_permlane16_swap_b32 v24, v{r}")
        a(f"v_add_f32 v{r}, v{r}, v24")
        a(f"ds_write_b32 v22, v{r} offset:{off}")
        a.wait_all(vm=False)
        a("s_barrier")
        a(f"ds_read_b128 v[24:27], v23 offset:{off}")
        a(f"ds_read_b64 v[28:29], v23 offset:{off+16}")
        a.wait_all(vm=False)
        a("v_add_f32 v24, v24, v25"); a("v_add_f32 v26, v26, v27"); a("v_add_f32 v28, v28, v29")
        a("v_add_f32 v24, v24, v26"); a(f"v_add_f32 v{r}, v24, v28")
    a("v_lshlrev_b32 v23, 5, v4")
    a("v_lshl_add_u32 v22, v2, 2, v23")
    a(f"v_add_f32 v30, v{F}, v{F+1}"); a(f"v_add_f32 v31, v{F+2}, v{F+3}")
    for i in range(4, 24, 2):
        a(f"v_add_f32 v30, v30, v{F+i}"); a(f"v_add_f32 v31, v31, v{F+i+1}")
    a("v_add_f32 v30, v30, v31")
    xreduce(30, RED)
    a(f"v_mul_f32 v30, {f32(1.0/576):#x}, v30")
    a("v_mov_b32 v31, 0"); a("v_mov_b32 v32, 0")
    for i in range(0, 24, 2):
        a(f"v_sub_f32 v33, v{F+i}, v30"); a(f"v_sub_f32 v34, v{F+i+1}, v30")
        a("v_fmac_f32 v31, v33, v33"); a("v_fmac_f32 v32, v34, v34")
    a("v_add_f32 v31, v31, v32")
    xreduce(31, RED + 512)
    a(f"v_mul_f32 v31, {f32(1.0/576):#x}, v31")
    rnd1(a, 31)
    a(f"v_add_f32 v31, {f32(1e-5):#x}, v31")
    rnd1(a, 31)
    a("v_sqrt_f32 v31, v31")
    rnd1(a, 31)
    a("v_rcp_f32 v32, v31")
    rnd1(a, 30)
    if G16:
        a("v_lshlrev_b32 v9, 4, v1")
        a("s_mul_i32 s20, s2, 18432"); a("s_add_u32 s20, s20, s17")
    else:
        a("v_lshlrev_b32 v9, 9, v5"); a("v_lshl_add_u32 v9, v4, 4, v9")
        a("s_lshr_b32 s20, s2, 1"); a("s_mul_i32 s20, s20, 36864")
        a("s_and_b32 s21, s2, 1"); a("s_lshl_b32 s21, s21, 8"); a("s_add_u32 s20, s20, s21")
        a("s_mul_i32 s21, s16, 6144"); a("s_add_u32 s20, s20, s21")
    a(f"s_add_u32 s20, s20, {OFF_H2P}")
    a("s_add_u32 s21, s20, 4096")
    stamp(a, 2)
    a.wait_vm("m")
    for i in range(3):
        for q in range(4):
            r0 = F+8*i+2*q; r1 = r0+1
            a(f"v_sub_f32 v{r0}, v{r0}, v30"); a(f"v_sub_f32 v{r1}, v{r1}, v30")
            rnd2(a, r0, r1, 33)
            a(f"v_mul_f32 v33, v{r0}, v32"); a(f"v_mul_f32 v34, v{r1}, v32")
            a(f"v_fma_f32 v{r0}, -v33, v31, v{r0}"); a(f"v_fma_f32 v{r1}, -v34, v31, v{r1}")
            a(f"v_fmac_f32 v33, v{r0}, v32"); a(f"v_fmac_f32 v34, v{r1}, v32")
            rnd2(a, 33, 34, 35)
            a(f"v_mul_f32 v33, v33, v{CB+8*i+2*q}"); a(f"v_mul_f32 v34, v34, v{CB+8*i+2*q+1}")
            rnd2(a, 33, 34, 35)
            a(f"v_add_f32 v33, v33, v{SB+8*i+2*q}"); a(f"v_add_f32 v34, v34, v{SB+8*i+2*q+1}")
            a(f"v_cvt_pk_bf16_f32 v{112+4*i+q}, v33, v34")
        o = (1024 if G16 else 2048)*i
        a(f"buffer_store_dwordx4 v[{112+4*i}:{112+4*i+3}], v9, s[8:11], s{20 + o//4096} offen offset:{o%4096}")
    if STAMP:
        stamp(a, 3); a.wait_all(); stamp(a, 4); stamp_store(a, 5, 3)
    a.label("K3_END")
    a("s_endpgm")
    return a.text(), dict(vgpr=124, sgpr=40, accum=124), f"grid=(128,1,1) block=(384,1,1) lds={RED+1024}"

def dma_voffsets(a, base, pitch, swap23=False):
    t0, t1 = base+9, base+10
    for i in range(9):
        a(f"v_add_u32 v{t0}, {64*i}, v1")
        a(f"v_mul_u32_u24 v{t1}, 3641, v{t0}")
        a(f"v_lshrrev_b32 v{t1}, 16, v{t1}")
        a(f"v_mul_u32_u24 v{base+i}, 18, v{t1}")
        a(f"v_sub_u32 v{t0}, v{t0}, v{base+i}")
        if swap23:
            a(f"v_lshrrev_b32 v{base+i}, 1, v{t1}")
            a(f"v_xor_b32 v{base+i}, v{base+i}, v{t1}")
            a(f"v_and_b32 v{base+i}, 4, v{base+i}")
            a(f"v_mul_u32_u24 v{base+i}, 3, v{base+i}")
            a(f"v_xor_b32 v{t1}, v{t1}, v{base+i}")
        a(f"v_mul_u32_u24 v{base+i}, {pitch}, v{t1}")
        a(f"v_lshl_add_u32 v{base+i}, v{t0}, 4, v{base+i}")

def rot_soffsets(a, rho_s, sD, sT0, sT1, dbase, tb0, tb1, dstage, tmp):
    for j in range(9):
        a(f"s_add_u32 s{tmp}, s{rho_s}, {j}")
        a(f"s_sub_u32 s{tmp+1}, s{tmp}, 9")
        a(f"s_cmp_ge_u32 s{tmp}, 9")
        a(f"s_cselect_b32 s{tmp}, s{tmp+1}, s{tmp}")
        a(f"s_mul_i32 s{tmp+1}, s{tmp}, {dstage}")
        a(f"s_add_u32 s{sD+j}, s{dbase}, s{tmp+1}")
        a(f"s_lshl_b32 s{tmp+1}, s{tmp}, 12")
        a(f"s_add_u32 s{sT0+j}, s{tb0}, s{tmp+1}")
        a(f"s_add_u32 s{sT1+j}, s{tb1}, s{tmp+1}")

def kloop(a, dma, tok, trd, mfma, PF, pro_tok, slots, between=None):
    for i in range(9): dma(0, i)
    for ks in range(pro_tok):
        for b in range(2): tok(ks, b)
    if between: between()
    ops = []
    for st in range(1, 9):
        for i in range(9):
            avail = -1 if st <= 3 else 4*(st-3)+3
            ops.append((4*st-1-0.5, i, avail, dma, (st, i)))
    for ks in range(pro_tok, 36):
        for b in range(2):
            avail = -1 if ks < PF else ks-PF+1
            ops.append((ks, b, avail, tok, (ks, b)))
    ops.sort(key=lambda o: (o[0], o[1]))
    stamp(a, 3)
    a.wait_vm(("d", 0))
    a("s_barrier")
    stamp(a, 4)
    for aa in range(9): trd(0, aa)
    for ks in range(36):
        st, kk = divmod(ks, 4)
        if kk == 3 and st < 8:
            assert not any(o[3] is dma and o[4][0] == st+1 for o in ops), (ks,)
            a.wait_vm(("d", st+1))
            a("s_barrier")
        assert not any(o[3] is tok and o[4][0] == ks for o in ops), (ks,)
        a.wait_vm(("t", ks))
        for aa in range(9):
            a.wait_lg(("a", ks, aa))
            for b in range(2): mfma(ks, aa, b)
            if ks < 35: trd(ks+1, aa)
            if aa in slots:
                for o in ops:
                    if o[2] <= ks:
                        ops.remove(o); o[3](*o[4]); break
    assert not ops

def k4():
    a = Asm()
    SLOT = 37120; UPO = 18560; NSLOT = 4; PF = 8
    a("s_load_dwordx2 s[6:7], s[0:1], 136")
    a("s_load_dwordx4 s[12:15], s[0:1], 80")
    a("s_cmp_ge_u32 s2, 256")
    a("s_cbranch_scc1 K4_END")
    stamp(a, 0)
    M = 224
    a(f"v_and_b32 v{M}, 63, v0")
    a(f"v_lshrrev_b32 v{M+1}, 6, v0")
    a(f"v_readfirstlane_b32 s16, v{M+1}")
    a(f"v_mov_b32 v1, v{M}")
    a("s_and_b32 s17, s2, 7"); a("s_lshr_b32 s18, s2, 3")
    a("s_and_b32 s19, s18, 3"); a("s_lshl_b32 s17, s17, 2"); a("s_add_u32 s17, s17, s19")
    a("s_lshr_b32 s18, s18, 2")
    a("s_lshl_b32 s19, s19, 1"); a("s_add_u32 s19, s19, s18")
    a("s_sub_u32 s20, s19, 9"); a("s_cmp_ge_u32 s19, 9"); a("s_cselect_b32 s19, s20, s19")
    if EXP == "norot": a("s_mov_b32 s19, 0")
    DV = M+2
    dma_voffsets(a, DV, 9216)
    a("s_and_b32 s22, s16, 1"); a("s_lshr_b32 s23, s16, 1")
    a(f"s_mul_i32 s28, s22, {32*9216}"); a("s_mul_i32 s30, s17, 288"); a("s_add_u32 s28, s28, s30")
    a(f"s_mul_i32 s29, s23, {UPO}"); a("s_mul_i32 s30, s22, 9216"); a("s_add_u32 s29, s29, s30")
    VT = M+13
    a(f"v_lshlrev_b32 v{VT}, 4, v{M}")
    a("s_lshl_b32 s31, s18, 3"); a("s_lshl_b32 s30, s16, 1"); a("s_add_u32 s31, s31, s30")
    a("s_mul_i32 s31, s31, 36864"); a(f"s_add_u32 s31, s31, {OFF_H2P}")
    a("s_add_u32 s32, s31, 36864")
    SD, ST0, ST1 = 33, 42, 51
    rot_soffsets(a, 19, SD, ST0, ST1, 28, 31, 32, 64*9216, 22)
    a.wait_all()
    stamp(a, 1)
    srd(a, 8, 6, WS_REC)
    a("s_cmp_ge_u32 s16, 2")
    a("s_cselect_b32 s20, s14, s12"); a("s_cselect_b32 s21, s15, s13")
    srd(a, 24, 20, 576*9216)
    AF = 64; BR = 100
    VA = M+14; VS = M+16
    def dma(st, i):
        a(f"s_add_u32 m0, s29, {(st % NSLOT)*SLOT + i*1024}")
        a(f"buffer_load_dwordx4 v{DV+i}, s[24:27], s{SD+st} offen lds", tag=("d", st))
    def tok(ks, b):
        rb = BR + 8 * (ks % PF) + 4*b
        a(f"buffer_load_dwordx4 a[{rb}:{rb+3}], v{VT}, s[8:11], s{(ST0, ST1)[b] + ks//4} offen offset:{(ks % 4)*1024}", tag=("t", ks))
    def acc(t):
        return f"v[{16*t}:{16*t+15}]" if t < 14 else f"a[{16*(t-14)}:{16*(t-14)+15}]"
    def trd(ks, aa):
        if EXP == "notr" and ks > 1: return
        st, kk = divmod(ks, 4); slot = st % NSLOT
        off = (slot & 1)*SLOT + kk*4608 + aa*32
        va = VA + (slot >> 1)
        a(f"ds_read_b64_tr_b16 a[{AF+4*aa}:{AF+4*aa+1}], v{va} offset:{off}", tag=("a", ks, aa))
        a(f"ds_read_b64_tr_b16 a[{AF+4*aa+2}:{AF+4*aa+3}], v{va} offset:{off+1152}", tag=("a", ks, aa))
    def mfma(ks, aa, b):
        t = 2*aa + b; rb = BR + 8 * (ks % PF) + 4*b
        if EXP == "m16":
            for hh in range(2):
                o = 8*(ks & 1) + 4*hh
                c = f"v[{16*t+o}:{16*t+o+3}]" if t < 14 else f"a[{16*(t-14)+o}:{16*(t-14)+o+3}]"
                a(f"v_mfma_f32_16x16x32_bf16 {c}, a[{AF+4*aa}:{AF+4*aa+3}], a[{rb}:{rb+3}], {c if ks > 1 else 0}")
                if a.defer: a.defer.pop(0)()
            return
        a(f"v_mfma_f32_32x32x16_bf16 {acc(t)}, a[{AF+4*aa}:{AF+4*aa+3}], a[{rb}:{rb+3}], {acc(t) if ks else 0}")
    def between():
        stamp(a, 2)
        a(f"v_bfe_u32 v2, v{M}, 4, 1"); a(f"v_mul_u32_u24 v{VA}, {UPO}, v2")
        a(f"v_lshrrev_b32 v2, 5, v{M}"); a(f"v_bfe_u32 v3, v{M}, 2, 2"); a("v_lshl_add_u32 v2, v2, 3, v3")
        a("v_mul_u32_u24 v2, 288, v2"); a(f"v_add_u32 v{VA}, v{VA}, v2")
        a(f"v_and_b32 v2, 3, v{M}"); a(f"v_lshl_add_u32 v{VA}, v2, 3, v{VA}")
        a(f"v_add_u32 v{VA+1}, {2*SLOT}, v{VA}")
        a(f"v_bfe_u32 v2, v{M}, 4, 1"); a(f"v_mul_u32_u24 v{VS}, 147456, v2")
        a(f"v_lshrrev_b32 v2, 5, v{M}"); a(f"v_lshl_add_u32 v{VS}, v2, 8, v{VS}")
        a(f"v_and_b32 v2, 15, v{M}"); a(f"v_lshl_add_u32 v{VS}, v2, 4, v{VS}")
        a("s_lshl_b32 s20, s18, 4"); a("s_lshl_b32 s21, s16, 2"); a("s_add_u32 s20, s20, s21")
        a("s_mul_i32 s20, s20, 147456"); a("s_mul_i32 s21, s17, 4608"); a("s_add_u32 s20, s20, s21")
        a(f"s_add_u32 s20, s20, {OFF_HM}")
        a("s_add_u32 s21, s20, 4096")
        a(f"s_add_u32 s22, s20, {2*147456}")
        a("s_add_u32 s23, s22, 4096")
    kloop(a, dma, tok, trd, mfma, PF, 3, (0, 2, 3, 5, 6, 8), between)
    stamp(a, 5)
    T = M+18
    for t in range(18):
        aa, b = divmod(t, 2)
        if t < 14:
            g = 16*t
        else:
            g = 0
            for r in range(16): a(f"v_accvgpr_read_b32 v{g+r}, a{16*(t-14)+r}")
        o = T + 4*(t % 3)
        for q in range(4):
            a(f"v_pk_mul_f32 v[{g+2*q}:{g+2*q+1}], v[{g+2*q}:{g+2*q+1}], v[{g+8+2*q}:{g+8+2*q+1}]")
        for q in range(4):
            a(f"v_cvt_pk_bf16_f32 v{o+q}, v{g+2*q}, v{g+2*q+1}")
        so = 20 + 2*b + (1 if aa == 8 else 0)
        a(f"buffer_store_dwordx4 v[{o}:{o+3}], v{VS}, s[8:11], s{so} offen offset:{(aa*512) % 4096}")
    if STAMP:
        stamp(a, 6); a.wait_all(); stamp(a, 7); stamp_store(a, 8, 4)
    a.label("K4_END")
    a("s_endpgm")
    return a.text(), dict(vgpr=256+BR+8*PF, sgpr=60, accum=256), f"grid=(256,1,1) block=(256,1,1) lds={NSLOT*SLOT}"

def k4b():
    a = Asm()
    SLOT = 36864; UPO = 18432; NSLOT = 4; PF = 4; NA = 6
    a("s_load_dwordx2 s[6:7], s[0:1], 136")
    a("s_load_dwordx4 s[12:15], s[0:1], 80")
    a("s_cmp_ge_u32 s2, 256")
    a("s_cbranch_scc1 K4_END")
    stamp(a, 0)
    M = 224
    a(f"v_and_b32 v{M}, 63, v0")
    a(f"v_lshrrev_b32 v{M+1}, 6, v0")
    a(f"v_readfirstlane_b32 s16, v{M+1}")
    a(f"v_mov_b32 v1, v{M}")
    a("s_and_b32 s17, s2, 7"); a("s_lshr_b32 s18, s2, 3")
    a("s_and_b32 s19, s18, 3"); a("s_lshl_b32 s17, s17, 2"); a("s_add_u32 s17, s17, s19")
    a("s_lshr_b32 s18, s18, 2")
    a("s_lshl_b32 s19, s19, 1"); a("s_add_u32 s19, s19, s18")
    a("s_sub_u32 s20, s19, 9"); a("s_cmp_ge_u32 s19, 9"); a("s_cselect_b32 s19, s20, s19")
    if EXP == "norot": a("s_mov_b32 s19, 0")
    DV = M+2
    dma_voffsets(a, DV, 9216, swap23=True)
    a("s_and_b32 s22, s16, 1"); a("s_lshr_b32 s23, s16, 1")
    a(f"s_mul_i32 s28, s22, {32*9216}"); a("s_mul_i32 s30, s17, 288"); a("s_add_u32 s28, s28, s30")
    a(f"s_mul_i32 s29, s23, {UPO}"); a("s_mul_i32 s30, s22, 9216"); a("s_add_u32 s29, s29, s30")
    VT = M+13
    a(f"v_lshlrev_b32 v{VT}, 4, v{M}")
    for b in range(1, 4): a(f"v_add_u32 v{VT+b}, {18432*b}, v{VT}")
    a("s_lshl_b32 s31, s18, 4"); a("s_lshl_b32 s30, s16, 2"); a("s_add_u32 s31, s31, s30")
    a("s_mul_i32 s32, s31, 18432"); a(f"s_add_u32 s32, s32, {OFF_H2P}")
    SD, ST = 33, 42
    for j in range(9):
        a(f"s_add_u32 s22, s19, {j}"); a("s_sub_u32 s23, s22, 9"); a("s_cmp_ge_u32 s22, 9"); a("s_cselect_b32 s22, s23, s22")
        a(f"s_mul_i32 s23, s22, {64*9216}"); a(f"s_add_u32 s{SD+j}, s28, s23")
        a("s_lshl_b32 s23, s22, 11"); a(f"s_add_u32 s{ST+j}, s32, s23")
    a.wait_all()
    stamp_n(a, 1)
    srd(a, 8, 6, WS_REC)
    a("s_cmp_ge_u32 s16, 2")
    a("s_cselect_b32 s20, s14, s12"); a("s_cselect_b32 s21, s15, s13")
    srd(a, 24, 20, 576*9216)
    AF = 64; BR = AF + 4*NA
    VA = M+17
    def dma(st, i):
        a(f"s_add_u32 m0, s29, {(st % NSLOT)*SLOT + i*1024}")
        a(f"buffer_load_dwordx4 v{DV+i}, s[24:27], s{SD+st} offen lds", tag=("d", st))
    def tok(ks, b):
        rb = BR + 16 * (ks % PF) + 4*b
        a(f"buffer_load_dwordx4 a[{rb}:{rb+3}], v{VT+b}, s[8:11], s{ST + ks//2} offen offset:{(ks % 2)*1024}", tag=("t", ks))
    def accr(mat, aa, b):
        if aa < 7: return ("v", 32*aa + 16*mat + 4*b)
        return ("a", 32*(aa-7) + 16*mat + 4*b)
    def acc(mat, aa, b):
        k, r = accr(mat, aa, b); return f"{k}[{r}:{r+3}]"
    def trd(n, q):
        if EXP == "notr" and n > 40: return
        ks, fi = divmod(n, 18); aa, mat = divmod(fi, 2)
        st, kk = divmod(ks, 2); slot = st % NSLOT
        off = mat*UPO + kk*9216 + aa*32 + q*2304
        r = AF + 4*(n % NA) + 2*q
        a(f"ds_read_b64_tr_b16 a[{r}:{r+1}], v{VA+slot} offset:{off}", tag=("a", n))
    for i in range(9): dma(0, i)
    for b in range(4): tok(0, b)
    stamp_n(a, 2)
    a(f"v_lshrrev_b32 v2, 5, v{M}"); a("v_lshlrev_b32 v2, 4, v2")
    a(f"v_bfe_u32 v3, v{M}, 4, 1"); a("v_lshl_add_u32 v2, v3, 2, v2")
    a(f"v_bfe_u32 v3, v{M}, 2, 2"); a("v_add_u32 v2, v2, v3")
    a(f"v_mul_u32_u24 v{VA}, 288, v2")
    a(f"v_and_b32 v2, 3, v{M}"); a(f"v_lshl_add_u32 v{VA}, v2, 3, v{VA}")
    for sl in range(1, 4): a(f"v_add_u32 v{VA+sl}, {sl*SLOT}, v{VA}")
    a("s_mul_i32 s20, s31, 147456"); a("s_mul_i32 s21, s17, 9"); a("s_lshr_b32 s21, s21, 1"); a("s_lshl_b32 s21, s21, 10")
    a("s_add_u32 s20, s20, s21"); a(f"s_add_u32 s52, s20, {OFF_HM}")
    for b in range(1, 4): a(f"s_add_u32 s{52+b}, s52, {147456*b}")
    for b in range(4): a(f"s_add_u32 s{56+b}, s{52+b}, 4096")
    NF = 18*18
    D = NA - 1
    ops = []
    for st in range(1, 9):
        for i in range(9):
            ops.append((36*st - D - 0.5, i, -1 if st <= 3 else 36*(st-2) - D, dma, (st, i)))
    for ks in range(1, 18):
        for b in range(4):
            ops.append((18*ks, b, -1 if ks < PF else 18*(ks-PF+1), tok, (ks, b)))
    ops.sort(key=lambda o: (o[0], o[1]))
    stamp_n(a, 3)
    a.wait_vm(("d", 0))
    a("s_barrier")
    if EXP == "stages": stamp(a, 1)
    stamp_n(a, 4)
    for n in range(D):
        trd(n, 0); trd(n, 1)
    for n in range(NF):
        ks, fi = divmod(n, 18); aa, mat = divmod(fi, 2)
        if (n + D) % 36 == 0 and n + D < NF:
            st1 = (n + D)//36
            assert not any(o[3] is dma and o[4][0] == st1 for o in ops)
            a.wait_vm(("d", st1))
            a("s_barrier")
            if EXP == "stages" and st1 in (1, 2, 3, 5, 7): lg = list(a.lg); stamp(a, {1:2, 2:3, 3:4, 5:5, 7:6}[st1])
        if fi == 0:
            assert not any(o[3] is tok and o[4][0] == ks for o in ops)
            a.wait_vm(("t", ks))
        a.wait_lg(("a", n))
        ar = AF + 4*(n % NA)
        for b in range(4):
            rb = BR + 16 * (ks % PF) + 4*b
            c = acc(mat, aa, b)
            a(f"v_mfma_f32_16x16x32_bf16 {c}, a[{ar}:{ar+3}], a[{rb}:{rb+3}], {c if ks else 0}")
            if b < 2 and n + D < NF: trd(n + D, b)
            if b == 2 and (n % 3 != 2):
                for o in ops:
                    if o[2] <= n:
                        ops.remove(o); o[3](*o[4]); break
    assert not ops
    stamp_n(a, 5)
    T = M+21
    T = 246
    def prod(aa, b, o):
        (k, g), (_, u) = accr(0, aa, b), accr(1, aa, b)
        if k == "a":
            for r in range(4):
                a(f"v_accvgpr_read_b32 v{0+r}, a{g+r}"); a(f"v_accvgpr_read_b32 v{4+r}, a{u+r}")
            g, u = 0, 4
        for q in range(2):
            a(f"v_pk_mul_f32 v[{g+2*q}:{g+2*q+1}], v[{g+2*q}:{g+2*q+1}], v[{u+2*q}:{u+2*q+1}]")
        for q in range(2):
            a(f"v_cvt_pk_bf16_f32 v{o+q}, v{g+2*q}, v{g+2*q+1}")
    def epi(par):
        cnt = 0
        groups = [(0, 1), (2, 3), (4, 5), (6, 7), (8,)] if par == 0 else [(0,), (1, 2), (3, 4), (5, 6), (7, 8)]
        for gr in groups:
            for b in range(4):
                o = T + 4*(cnt % 2); cnt += 1
                L = gr[0] + par; kap = L >> 1
                so = (52 if kap < 4 else 56) + b; im = (kap % 4)*1024
                if len(gr) == 2:
                    prod(gr[0], b, o); prod(gr[1], b, o+2)
                    a(f"buffer_store_dwordx4 v[{o}:{o+3}], v{VT}, s[8:11], s{so} offen offset:{im}")
                else:
                    prod(gr[0], b, o)
                    a(f"buffer_store_dwordx2 v[{o}:{o+1}], v{VT}, s[8:11], s{so} offen offset:{im + 8*(L & 1)}")
    a("s_bitcmp1_b32 s17, 0")
    a("s_cbranch_scc1 K4_ODD")
    h = list(a.hist); vm = list(a.vm)
    epi(0)
    a("s_branch K4_FIN")
    a.label("K4_ODD"); a.hist = h; a.vm = vm
    epi(1)
    a.label("K4_FIN")
    if STAMP:
        stamp_n(a, 6); a.wait_all(); stamp(a, 7); stamp_store(a, 8, 4)
    a.label("K4_END")
    a("s_endpgm")
    return a.text(), dict(vgpr=256+BR+16*PF, sgpr=60, accum=256), f"grid=(256,1,1) block=(256,1,1) lds={NSLOT*SLOT}"

F_LN1, F_MOD, F_FIN, F_CH, F_WARM, F_END = 0, 128, 236, 240, 816, 924
def poll_dbg(a, label, vflag, vaddr, lo, hi, tmp_s, depth=2):
    msk = ((1 << hi) - 1) ^ ((1 << lo) - 1)
    a(f"s_mov_b32 s{tmp_s}, 0x8000")
    a(f"s_mov_b32 s{tmp_s+2}, {msk & 0xffffffff:#x}"); a(f"s_mov_b32 s{tmp_s+3}, {msk >> 32:#x}")
    a(f"s_mov_b32 s{tmp_s+1}, 0x01010101")
    a.label(label)
    a(f"buffer_load_dword v{vflag}, v{vaddr}, s[24:27], 0 offen sc1")
    a("s_waitcnt vmcnt(0)")
    a(f"v_cmp_eq_u32 vcc, s{tmp_s+1}, v{vflag}")
    a(f"s_and_b64 s[{tmp_s+4}:{tmp_s+5}], vcc, s[{tmp_s+2}:{tmp_s+3}]")
    a(f"s_cmp_eq_u64 s[{tmp_s+4}:{tmp_s+5}], s[{tmp_s+2}:{tmp_s+3}]")
    a(f"s_cbranch_scc1 {label}_X")
    a(f"s_sub_u32 s{tmp_s}, s{tmp_s}, 1")
    a(f"s_cbranch_scc0 {label}")
    a.label(label + "_X")
    a.vm = []

def kf():
    a = Asm()
    stamp(a, 0)
    a("s_load_dwordx2 s[6:7], s[0:1], 136")
    a("s_load_dwordx2 s[34:35], s[0:1], 128")
    a(f"s_cmp_ge_u32 s2, {F_CH}")
    a("s_cbranch_scc1 KF_CH")
    a(f"s_cmp_ge_u32 s2, {F_FIN}")
    a("s_cbranch_scc1 KF_FIN")
    a(f"s_cmp_ge_u32 s2, {F_MOD}")
    a("s_cbranch_scc1 KF_MOD")
    def signal():
        a("v_mov_b32 v1, s2"); a("v_mov_b32 v2, 1"); a("v_lshlrev_b32 v3, 6, v1")
        a(f"s_mov_b32 s20, {OFF_PF}")
        a("s_mov_b64 exec, 1")
        a("buffer_store_dword v2, v3, s[8:11], s20 offen sc1")
        a("buffer_store_byte v2, v1, s[24:27], 0 offen sc1")
    PITCH = 1216; LN_N = 0; LN_X = 16 * PITCH
    a("s_setprio 3")
    a("s_load_dwordx2 s[4:5], s[0:1], 0")
    a("v_lshrrev_b32 v1, 4, v0")
    a("v_and_b32 v2, 15, v0")
    a("v_mul_u32_u24 v3, 1152, v1")
    a("v_lshl_add_u32 v3, v2, 3, v3")
    a("s_mul_i32 s3, s2, 18432")
    a.wait_all()
    srd(a, 12, 4, 2048*1152)
    srd(a, 8, 6, WS_REC)
    srd(a, 24, 34, 256)
    X = 10
    for k in range(9):
        a(f"buffer_load_dwordx2 v[{X+2*k}:{X+2*k+1}], v3, s[12:15], s3 offen offset:{128*k}", tag=("x", k))
    if EXP == "touch":
        a("s_lshl_b32 s21, s3, 1"); a("v_lshlrev_b32 v64, 7, v0")
        a("buffer_load_dword v65, v64, s[8:11], s21 offen")
    a(f"v_mul_u32_u24 v4, {PITCH}, v1")
    a("v_lshl_add_u32 v4, v2, 3, v4")
    F = 28
    for k in range(9):
        a.wait_vm(("x", k))
        for h in range(2):
            unpack(a, F+4*k+2*h, F+4*k+2*h+1, X+2*k+h)
        a(f"ds_write_b64 v4, v[{X+2*k}:{X+2*k+1}] offset:{LN_X+128*k}")
    stamp(a, 1)
    a(f"v_add_f32 v5, v{F}, v{F+1}")
    a(f"v_add_f32 v6, v{F+2}, v{F+3}")
    for i in range(4, 36, 2):
        a(f"v_add_f32 v5, v5, v{F+i}")
        a(f"v_add_f32 v6, v6, v{F+i+1}")
    a("v_add_f32 v5, v5, v6")
    row16_sum(a, 5)
    a(f"v_mul_f32 v5, {f32(1.0/576):#x}, v5")
    a("v_mov_b32 v6, 0"); a("v_mov_b32 v7, 0")
    for i in range(0, 36, 2):
        a(f"v_sub_f32 v8, v{F+i}, v5"); a(f"v_sub_f32 v9, v{F+i+1}, v5")
        a("v_fmac_f32 v6, v8, v8"); a("v_fmac_f32 v7, v9, v9")
    a("v_add_f32 v6, v6, v7")
    row16_sum(a, 6)
    a(f"v_mul_f32 v6, {f32(1.0/576):#x}, v6")
    rnd1(a, 6)
    a(f"v_add_f32 v6, {f32(1e-5):#x}, v6")
    rnd1(a, 6)
    a("v_sqrt_f32 v6, v6")
    rnd1(a, 6)
    a("v_rcp_f32 v7, v6")
    rnd1(a, 5)
    for k in range(9):
        for h in range(2):
            r0 = F+4*k+2*h; r1 = r0+1
            a(f"v_sub_f32 v{r0}, v{r0}, v5"); a(f"v_sub_f32 v{r1}, v{r1}, v5")
            rnd2(a, r0, r1, 8)
            a(f"v_mul_f32 v8, v{r0}, v7"); a(f"v_mul_f32 v9, v{r1}, v7")
            a(f"v_fma_f32 v{r0}, -v8, v6, v{r0}"); a(f"v_fma_f32 v{r1}, -v9, v6, v{r1}")
            a(f"v_fmac_f32 v8, v{r0}, v7"); a(f"v_fmac_f32 v9, v{r1}, v7")
            a(f"v_cvt_pk_bf16_f32 v{X+2*k+h}, v8, v9")
        a(f"ds_write_b64 v4, v[{X+2*k}:{X+2*k+1}] offset:{LN_N+128*k}")
    a("v_and_b32 v1, 63, v0")
    a("v_lshrrev_b32 v2, 6, v0")
    a("v_readfirstlane_b32 s16, v2")
    a("v_bfe_u32 v5, v1, 4, 1")
    a("v_lshrrev_b32 v6, 5, v1")
    a("v_bfe_u32 v7, v1, 2, 2")
    a("v_and_b32 v8, 3, v1")
    a("v_lshl_add_u32 v7, v5, 3, v7")
    a("v_lshl_add_u32 v7, v6, 4, v7")
    a(f"v_mul_u32_u24 v7, {PITCH}, v7")
    a("v_lshl_add_u32 v7, v8, 3, v7")
    a("s_mul_i32 s19, s16, 288")
    a("v_add_u32 v7, s19, v7")
    a("v_and_b32 v9, 15, v1"); a("v_lshlrev_b32 v9, 6, v9")
    a("v_lshrrev_b32 v3, 4, v1"); a("v_lshl_add_u32 v9, v3, 4, v9")
    a("s_lshl_b32 s21, s3, 1"); a("s_mul_i32 s22, s16, 9216"); a("s_add_u32 s21, s21, s22")
    if OFF_NT: a(f"s_add_u32 s21, s21, {OFF_NT}")
    a("s_add_u32 s22, s21, 4096")
    a("s_add_u32 s23, s21, 8192")
    a.wait_all(vm=False)
    a("s_barrier")
    stamp(a, 2)
    for i in range(9):
        a(f"ds_read_b64_tr_b16 v[{F+4*i}:{F+4*i+1}], v7 offset:{32*i}", tag=("t", i))
        a(f"ds_read_b64_tr_b16 v[{F+4*i+2}:{F+4*i+3}], v7 offset:{32*i+4*PITCH}", tag=("t", i))
    for i in range(9):
        a.wait_lg(("t", i))
        a(f"buffer_store_dwordx4 v[{F+4*i}:{F+4*i+3}], v9, s[8:11], s{21+i//4} offen offset:{1024*(i%4)} sc1")
    a.wait_all()
    a("s_barrier")
    stamp(a, 3)
    a("s_cmp_lg_u32 s16, 0")
    a("s_cbranch_scc1 KF_LE")
    signal()
    a.label("KF_LE")
    stamp_store(a, 4, 1)
    a("s_endpgm")
    a.label("KF_MOD"); a.hist = []; a.vm = []; a.lg = []
    a("s_setprio 3")
    a("s_load_dwordx2 s[4:5], s[0:1], 112")
    a("s_load_dwordx2 s[16:17], s[0:1], 104")
    a(f"s_sub_u32 s3, s2, {F_MOD}")
    a("s_cmp_ge_u32 s3, 54"); a("s_cselect_b32 s20, 1, 0")
    a("s_mul_i32 s21, s20, 54"); a("s_sub_u32 s21, s3, s21")
    a("v_lshrrev_b32 v1, 3, v0")
    a("v_and_b32 v2, 7, v0")
    a("v_mul_u32_u24 v3, 6912, v1")
    a("v_lshl_add_u32 v3, v2, 4, v3")
    a("v_lshlrev_b32 v4, 1, v1")
    a(f"s_mul_i32 s22, s20, {288*6912}")
    a("s_lshl_b32 s23, s21, 7")
    a("s_add_u32 s22, s22, s23")
    a("s_mul_i32 s23, s20, 576")
    a.wait_all()
    srd(a, 12, 4, 576*6912)
    srd(a, 28, 16, 1152)
    srd(a, 8, 6, WS_REC)
    srd(a, 24, 34, 256)
    for i in range(9):
        a(f"buffer_load_ushort v{10+i}, v4, s[28:31], s23 offen offset:{64*i}", tag="c")
    for i in range(9):
        a(f"buffer_load_dwordx4 v[{20+4*i}:{23+4*i}], v3, s[12:15], s22 offen", tag=("w", i))
        if i < 8: a(f"s_add_u32 s22, s22, {32*6912}")
    for j in range(8): a(f"v_mov_b32 v{56+j}, 0")
    a.wait_vm("c")
    for i in range(9):
        r = 10+i
        a(f"v_lshlrev_b32 v{r}, 16, v{r}")
        a(f"v_mul_f32 v5, {(LOG2E|0x80000000):#x}, v{r}")
        a("v_exp_f32 v5, v5")
        a("v_add_f32 v5, 1.0, v5")
        a("v_rcp_f32 v5, v5")
        a(f"v_mul_f32 v{r}, v{r}, v5")
        rnd1(a, r)
    for i in range(9):
        a.wait_vm(("w", i))
        for q in range(4):
            unpack(a, 5, 6, 20+4*i+q)
            a(f"v_fmac_f32 v{56+2*q}, v{10+i}, v5")
            a(f"v_fmac_f32 v{57+2*q}, v{10+i}, v6")
    stamp(a, 1)
    a("v_lshlrev_b32 v5, 8, v1")
    a("v_lshl_add_u32 v5, v2, 5, v5")
    a("ds_write_b128 v5, v[56:59]")
    a("ds_write_b128 v5, v[60:63] offset:16")
    a("v_lshlrev_b32 v6, 2, v0")
    a("v_lshrrev_b32 v7, 6, v0")
    a("v_readfirstlane_b32 s16, v7")
    a.wait_all(vm=False)
    a("s_barrier")
    stamp(a, 2)
    a("s_cmp_lg_u32 s16, 0")
    a("s_cbranch_scc1 KF_END")
    for i in range(32):
        a(f"ds_read_b32 v{10+i}, v6 offset:{256*i}", tag=("r", i))
    a.wait_all(vm=False)
    for st in (16, 8, 4, 2, 1):
        for i in range(st):
            a(f"v_add_f32 v{10+i}, v{10+i}, v{10+i+st}")
    a(f"s_mul_i32 s22, s20, {3456*4}")
    a("s_lshl_b32 s23, s21, 8")
    a("s_add_u32 s22, s22, s23")
    a(f"s_add_u32 s22, s22, {OFF_MODP}")
    a("buffer_store_dword v10, v6, s[8:11], s22 offen sc1")
    a.wait_all()
    stamp(a, 3)
    signal()
    stamp_store(a, 4, 1)
    a("s_endpgm")
    a.label("KF_FIN"); a.hist = []; a.vm = []; a.lg = []
    a(f"s_cmp_lg_u32 s2, {F_FIN}")
    a("s_cbranch_scc1 KF_END")
    a("v_lshlrev_b32 v1, 2, v0")
    a("v_and_b32 v3, 63, v0"); a("v_lshlrev_b32 v3, 2, v3")
    a("v_lshlrev_b32 v2, 4, v0")
    for q in range(4): a(f"v_mov_b32 v{4+q}, 0")
    a.wait_all()
    srd(a, 8, 6, WS_REC)
    srd(a, 24, 34, 256)
    a("s_setprio 3")
    a("v_lshrrev_b32 v9, 6, v0"); a("v_readfirstlane_b32 s16, v9")
    a("s_cmp_lg_u32 s16, 0")
    a("s_cbranch_scc1 KF_FB")
    a("v_lshlrev_b32 v44, 4, v3")
    a(f"s_mov_b32 s20, {OFF_PF}")
    for q in range(4):
        a(f"s_mov_b32 s{44+q}, {OFF_PF + 4096*q}")
        a(f"buffer_store_dword v4, v44, s[8:11], s{44+q} offen sc1")
    a("s_mov_b32 s36, 0x8000")
    a(f"s_mov_b32 s38, {(1 << 32) - 1:#x}"); a(f"s_mov_b32 s39, {(1 << (F_FIN - 192 - 32)) - 1:#x}")
    a(f"s_mov_b32 s40, {(1 << 32) - 1:#x}"); a(f"s_mov_b32 s41, {(1 << 27) - 1:#x}")
    a("s_mov_b32 s37, 0x01010101")
    a.wait_all()
    a.label("KF_PF")
    for q in range(4): a(f"buffer_load_dword v{45+q}, v44, s[8:11], s{44+q} offen sc1")
    a("s_waitcnt vmcnt(0)")
    a("v_min_u32 v45, v45, v46"); a("v_min_u32 v45, v45, v47")
    a("v_cmp_eq_u32 vcc, 0, v48")
    a("s_and_b64 s[42:43], vcc, s[38:39]")
    a("v_cmp_eq_u32 vcc, 0, v45")
    a("s_or_b64 s[42:43], s[42:43], vcc")
    a("s_cbranch_scc0 KF_PF_X")
    a("s_sub_u32 s36, s36, 1")
    a("s_cbranch_scc1 KF_PF_X")
    a("s_and_b32 s42, s36, 15")
    a("s_cbranch_scc1 KF_PF")
    a("buffer_load_dword v45, v3, s[24:27], 0 offen sc1")
    a("s_waitcnt vmcnt(0)")
    a("v_cmp_ne_u32 vcc, s37, v45")
    a("s_and_b64 s[42:43], vcc, s[40:41]")
    a("s_cbranch_scc1 KF_PF")
    a.label("KF_PF_X"); a.hist = []; a.vm = []
    a("v_mov_b32 v8, 252"); a("v_mov_b32 v9, 1")
    a("s_mov_b64 exec, 1")
    a("buffer_store_dword v9, v8, s[24:27], 0 offen sc1")
    a("s_mov_b64 exec, -1")
    a.label("KF_FB"); a.hist = []
    a("s_barrier")
    a("v_mov_b32 v40, 1"); a("v_lshlrev_b32 v41, 6, v0")
    for q in range(2):
        a(f"s_mov_b32 s20, {OFF_REP + 16384*q}")
        a("buffer_store_dword v40, v41, s[8:11], s20 offen sc1")
    a(f"s_mov_b32 s20, {OFF_REP + 32768}")
    a("s_cmp_lg_u32 s16, 0")
    a("s_cbranch_scc1 KF_FC")
    a("buffer_store_dword v40, v41, s[8:11], s20 offen sc1")
    a.label("KF_FC")
    for q in range(4):
        a(f"s_mov_b32 s20, {OFF_FLG + 4096*q}")
        a("buffer_store_dwordx4 v[4:7], v2, s[8:11], s20 offen")
    for i in range(7):
        for ks in range(2):
            a(f"s_mov_b32 s20, {OFF_MODP + ks*3456*4 + 1728*4 + 1024*i}")
            a(f"buffer_load_dword v{10+2*i+ks}, v1, s[8:11], s20 offen sc1")
    a.wait_all()
    for i in range(7):
        b = 10+2*i
        a(f"v_add_f32 v{b}, v{b}, v{b+1}")
        rnd1(a, b)
        a(f"v_add_f32 v{b+1}, 1.0, v{b}")
        rnd1(a, b+1)
        a(f"v_add_u32 v2, {256*i}, v0")
        a("v_subrev_u32 v3, 576, v2")
        a("v_cmp_gt_u32 vcc, 576, v3")
        a(f"v_cndmask_b32 v{b}, v{b}, v{b+1}, vcc")
        a(f"s_mov_b32 s20, {OFF_MODF + 1024*i}")
        if i == 6:
            a("v_cmp_gt_u32 vcc, 1728, v2")
            a("s_and_saveexec_b64 s[22:23], vcc")
            a("s_cbranch_execz KF_END")
        a(f"buffer_store_dword v{b}, v1, s[8:11], s20 offen")
    a("s_endpgm")
    a.label("KF_CH"); a.hist = []; a.vm = []; a.lg = []
    a(f"s_cmp_ge_u32 s2, {F_WARM}")
    a("s_cbranch_scc1 KF_WARM")
    RB = 24576; HT = RB; T16 = RB + 256; PT = RB + 4608; RH = RB + 6656; CS = 4160
    a("s_load_dwordx8 s[16:23], s[0:1], 8")
    a("s_load_dwordx8 s[24:31], s[0:1], 40")
    a(f"s_sub_u32 s3, s2, {F_CH}")
    a("s_and_b32 s4, s3, 7"); a("s_lshr_b32 s3, s3, 3"); a("s_mul_i32 s4, s4, 72"); a("s_add_u32 s3, s3, s4")
    a("v_and_b32 v1, 63, v0")
    a("v_lshrrev_b32 v2, 6, v0")
    a("v_lshrrev_b32 v3, 4, v1")
    a("v_and_b32 v4, 15, v0")
    a("v_and_b32 v5, 31, v0")
    a("v_lshl_add_u32 v5, v2, 5, v5")
    a("v_lshlrev_b32 v6, 4, v5")
    a("v_lshlrev_b32 v5, 1, v5")
    a("s_lshl_b32 s4, s3, 8")
    a("v_add_u32 v5, s4, v5")
    a("s_lshl_b32 s5, s3, 1")
    a("v_mov_b32 v15, s5")
    a.wait_all()
    srd(a, 8, 6, WS_REC)
    a(f"s_sub_u32 s42, s2, {F_CH}"); a("s_lshl_b32 s42, s42, 6"); a(f"s_add_u32 s42, s42, {OFF_REP}")
    a("v_mov_b32 v62, 0")
    a("v_cmp_eq_u32 vcc, 192, v0")
    a("s_and_saveexec_b64 s[44:45], vcc")
    a("s_cbranch_execz KF_CH_R")
    a("buffer_store_dword v62, v62, s[8:11], s42 offen sc1", tag="p")
    a.label("KF_CH_R")
    a("s_mov_b64 exec, -1")
    a("global_load_ushort v7, v15, s[28:29]", tag="p")
    for q in range(6):
        a(f"global_load_ushort v{28+q}, v5, s[{16+2*q}:{17+2*q}]", tag="p")
    a("global_load_ushort v63, v15, s[30:31]", tag="dsk")
    a("v_and_b32 v12, 7, v4")
    a("v_lshrrev_b32 v13, 3, v4")
    a("v_lshl_add_u32 v8, v13, 7, v12")
    a("v_lshrrev_b32 v12, 2, v4"); a("v_lshlrev_b32 v12, 7, v12")
    a("v_and_b32 v13, 3, v4"); a("v_lshl_add_u32 v12, v13, 1, v12")
    a("v_add_u32 v12, 256, v12")
    a("v_subrev_u32 v13, 8, v4"); a("v_lshrrev_b32 v13, 1, v13"); a("v_lshlrev_b32 v13, 7, v13")
    a("v_and_b32 v14, 1, v4"); a("v_lshl_add_u32 v13, v14, 2, v13")
    a("v_add_u32 v13, 512, v13")
    a("v_cmp_gt_u32 vcc, 8, v4")
    a("v_cndmask_b32 v9, v13, v12, vcc")
    a("v_lshlrev_b32 v12, 7, v4"); a("v_add_u32 v12, 1024, v12")
    a("v_mov_b32 v13, 2048")
    a("v_cndmask_b32 v10, v13, v12, vcc")
    a("v_lshlrev_b32 v11, 3, v4")
    a("v_lshlrev_b32 v12, 2, v4")
    for T in range(3):
        a(f"ds_write_b32 v12, v{8+T} offset:{HT+64*T}")
    for T in range(4):
        a(f"v_cvt_f32_u32 v{8+T}, v{8+T}")
    a("v_lshlrev_b32 v12, 9, v2"); a("v_lshl_add_u32 v12, v3, 6, v12")
    a("s_mov_b32 s33, 0x07060302")
    a.wait_vm("p")
    stamp(a, 1)
    a("v_lshlrev_b32 v7, 16, v7")
    a(f"v_mul_f32 v7, {LOG2E:#x}, v7")
    a("v_exp_f32 v7, v7")
    rnd1(a, 7)
    for q in range(6): a(f"v_lshlrev_b32 v{28+q}, 16, v{28+q}")
    for q in range(4): a(f"v_mul_f32 v{28+q}, v7, v{28+q}")
    a(f"v_mul_f32 v36, {LOG2E:#x}, v28")
    a(f"v_mul_f32 v37, {INV2PI:#x}, v29")
    a("v_mul_f32 v38, v32, v30"); a("v_mul_f32 v39, v32, v31")
    a("v_fma_f32 v38, -v33, v31, v38")
    a("v_fmac_f32 v39, v33, v30")
    a(f"ds_write_b128 v6, v[36:39] offset:{PT}")
    P = 64
    for st in range(8):
        a(f"ds_read_b128 v[{P+4*st}:{P+4*st+3}], v12 offset:{PT+256*(st >> 2)+16*(st & 3)}", tag=("pp", st))
    srd(a, 24, 34, 256)
    FR = 96
    def fr(T, lo): return FR + 8*T + 4*lo
    def valu(st):
        kp, e2 = divmod(st, 4)
        pr = P + 4*st; E = 36; Er = 48
        L = []
        for T in (3, 0, 1, 2):
            L.append(f"v_mul_f32 v{E+3*T}, v{pr}, v{8+T}")
            L.append(f"v_mul_f32 v{E+3*T+1}, v{pr+1}, v{8+T}")
        for T in (3, 0, 1, 2):
            L.append(f"v_exp_f32 v{E+3*T}, v{E+3*T}")
            L.append(f"v_fract_f32 v{E+3*T+1}, v{E+3*T+1}")
        for T in (3, 0, 1, 2):
            L.append(f"v_cos_f32 v{E+3*T+2}, v{E+3*T+1}")
            L.append(f"v_sin_f32 v{E+3*T+1}, v{E+3*T+1}")
        for T in (3, 0, 1, 2):
            L.append(f"v_mul_f32 v{E+3*T+1}, v{E+3*T}, v{E+3*T+1}")
            L.append(f"v_mul_f32 v{E+3*T}, v{E+3*T}, v{E+3*T+2}")
        L.append(f"v_mul_f32 v{Er}, v{pr+2}, v{E+9}")
        L.append(f"v_mul_f32 v{Er+1}, v{pr+2}, v{E+10}")
        L.append(f"v_fma_f32 v{Er}, -v{pr+3}, v{E+10}, v{Er}")
        L.append(f"v_fma_f32 v{Er+1}, -v{pr+3}, v{E+9}, -v{Er+1}")
        for T in range(4):
            r = Er if T == 3 else E+3*T
            L.append(f"v_perm_b32 v{fr(T,0)+e2}, v{r+1}, v{r}, s33")
            L.append(f"v_and_b32 v50, 0xffff0000, v{r}")
            L.append(f"v_and_b32 v51, 0xffff0000, v{r+1}")
            L.append(f"v_sub_f32 v50, v{r}, v50")
            L.append(f"v_sub_f32 v51, v{r+1}, v51")
            L.append(f"v_perm_b32 v{fr(T,1)+e2}, v51, v50, s33")
        return L
    def mf(kp):
        L = []
        for pi, (al, bl) in enumerate(((1, 0), (0, 1), (0, 0))):
            for T in range(3):
                c = f"v[{16+4*T}:{19+4*T}]"
                A = fr(T, al); B = fr(3, bl)
                L.append(f"v_mfma_f32_16x16x32_bf16 {c}, v[{A}:{A+3}], v[{B}:{B+3}], {c if (kp or pi) else 0}")
        return L
    for st in range(8):
        a.wait_lg(("pp", st))
        Mf = mf(0) if st == 4 else []
        for idx, ins in enumerate(valu(st)):
            if Mf and idx % 3 == 2: a(Mf.pop(0))
            a(ins)
    for ins in mf(1): a(ins)
    stamp(a, 2)
    a("v_mul_u32_u24 v12, 3072, v2")
    a("v_lshl_add_u32 v12, v1, 4, v12")
    for T in range(3):
        a(f"ds_write_b128 v12, v[{16+4*T}:{19+4*T}] offset:{1024*T}")
    a("v_readfirstlane_b32 s16, v2")
    a("v_lshlrev_b32 v13, 4, v0")
    a("v_lshlrev_b32 v14, 6, v2")
    a("v_lshl_add_u32 v14, v3, 4, v14")
    a("v_lshlrev_b32 v12, 3, v0")
    G = 64
    a(f"v_subrev_u32 v{G}, 1, v12"); a(f"v_max_i32 v{G}, 0, v{G}")
    for e in range(8): a(f"v_add_u32 v{G+1+e}, {e}, v12")
    a(f"v_mov_b32 v{G+9}, 0")
    for e in range(10): a(f"v_cvt_f32_u32 v{G+e}, v{G+e}")
    for e in range(0, 10, 2): rnd2(a, G+e, G+e+1, 15)
    for e in range(9):
        a(f"v_cvt_u32_f32 v{G+e}, v{G+e}")
        a(f"v_lshlrev_b32 v{G+e}, 1, v{G+e}")
    a.wait_all(vm=False)
    a("s_barrier")
    a("s_cmp_eq_u32 s16, 3")
    a("s_cbranch_scc1 KF_CH_P")
    for w in range(4):
        a(f"ds_read_b128 v[{16+4*w}:{19+4*w}], v13 offset:{3072*w}")
    a(f"ds_read_b128 v[32:35], v14 offset:{HT}")
    a.wait_all(vm=False)
    for r in range(4):
        a(f"v_add_f32 v{16+r}, v{16+r}, v{20+r}")
        a(f"v_add_f32 v{24+r}, v{24+r}, v{28+r}")
        a(f"v_lshl_add_u32 v{32+r}, v4, 3, v{32+r}")
    for r in range(4):
        a(f"v_add_f32 v{16+r}, v{16+r}, v{24+r}")
        a(f"v_lshlrev_b32 v{32+r}, 1, v{32+r}")
    for r in range(4):
        a(f"v_cvt_pk_bf16_f32 v{16+r}, v{16+r}, v{16+r}")
    for r in range(4):
        a(f"ds_write_b16 v{32+r}, v{16+r} offset:{T16}")
    a("s_branch KF_CH_C")
    a.label("KF_CH_P"); a.hist = []
    a("v_mov_b32 v16, 252")
    a("s_mov_b32 s36, 0x8000")
    a.label("KF_PC")
    a("buffer_load_dword v17, v62, s[8:11], s42 offen sc1")
    a("s_waitcnt vmcnt(0)")
    a("v_cmp_ne_u32 vcc, 0, v17")
    a("s_sub_u32 s36, s36, 1")
    a("s_cbranch_scc1 KF_CH_C")
    a("s_cbranch_vccnz KF_CH_C")
    a("s_sleep 4")
    a("s_and_b32 s37, s36, 31")
    a("s_cbranch_scc1 KF_PC")
    a("buffer_load_dword v17, v16, s[24:27], 0 offen sc1")
    a("s_waitcnt vmcnt(0)")
    a("v_cmp_ne_u32 vcc, 0, v17")
    a("s_cbranch_vccz KF_PC")
    a.label("KF_CH_C"); a.hist = []; a.vm = ["dsk"]
    a("v_lshrrev_b32 v16, 1, v0"); a("v_mul_u32_u24 v16, 36864, v16")
    a("v_and_b32 v17, 1, v0"); a("v_lshl_add_u32 v16, v17, 4, v16")
    a("v_mul_u32_u24 v17, 36864, v4"); a("v_lshl_add_u32 v17, v3, 3, v17")
    a("s_lshl_b32 s17, s3, 6")
    if OFF_NT: a(f"s_add_u32 s17, s17, {OFF_NT}")
    a(f"s_mul_i32 s18, s16, {32*36864}"); a("s_add_u32 s18, s18, s17"); a(f"s_add_u32 s19, s18, {16*36864}")
    a("s_lshl_b32 s20, s3, 2"); a("v_mov_b32 v18, s20")
    a(f"s_mov_b32 s21, {OFF_MODP}"); a(f"s_mov_b32 s22, {OFF_MODP + 3456*4}")
    a(f"s_mov_b32 s23, {OFF_MODP + 4608}"); a(f"s_mov_b32 s32, {OFF_MODP + 3456*4 + 4608}")
    a.wait_all(vm=False)
    a("s_barrier")
    stamp(a, 3)
    a("buffer_load_dwordx4 v[20:23], v16, s[8:11], s17 offen sc1", tag="n")
    a("buffer_load_dword v24, v18, s[8:11], s21 offen sc1", tag="n")
    a("buffer_load_dword v25, v18, s[8:11], s22 offen sc1", tag="n")
    a("buffer_load_dword v26, v18, s[8:11], s21 offen offset:2304 sc1", tag="n")
    a("buffer_load_dword v27, v18, s[8:11], s22 offen offset:2304 sc1", tag="n")
    a("buffer_load_dword v60, v18, s[8:11], s23 offen sc1", tag="x")
    a("buffer_load_dword v61, v18, s[8:11], s32 offen sc1", tag="x")
    a("buffer_load_dwordx2 v[56:57], v17, s[8:11], s18 offen offset:32 sc1", tag="x")
    a("buffer_load_dwordx2 v[58:59], v17, s[8:11], s19 offen offset:32 sc1", tag="x")
    for e in range(9):
        a(f"ds_read_u16 v{80+e}, v{G+e} offset:{T16}")
    a("v_mov_b32 v28, 0"); a("v_mov_b32 v29, 0")
    a(f"v_mul_u32_u24 v30, {CS}, v3"); a("v_lshl_add_u32 v30, v4, 1, v30"); a("v_and_b32 v30, -4, v30")
    a("ds_write_b32 v30, v28")
    a("v_lshlrev_b32 v31, 3, v1")
    a(f"ds_write_b64 v31, v[28:29] offset:{RH}")
    a(f"v_add_u32 v31, {2*CS + 32}, v28"); a(f"ds_write_b32 v31, v28"); a(f"ds_write_b32 v31, v28 offset:{CS}")
    a("v_cmp_eq_u32 vcc, 0, v0")
    a.wait_all(vm=False)
    a("v_cndmask_b32 v80, v80, v28, vcc")
    for q in range(4):
        a(f"v_lshl_or_b32 v{32+q}, v{82+2*q}, 16, v{81+2*q}")
        a(f"v_lshl_or_b32 v{36+q}, v{81+2*q}, 16, v{80+2*q}")
    a(f"v_add_u32 v30, {32 + 2*CS + 4}, v13"); a(f"v_add_u32 v31, {32 + 3*CS + 4}, v13")
    a("ds_write_b128 v13, v[32:35] offset:32")
    a(f"ds_write_b128 v13, v[36:39] offset:{32 + CS}")
    a("ds_write2_b32 v30, v32, v33 offset0:0 offset1:1"); a("ds_write2_b32 v30, v34, v35 offset0:2 offset1:3")
    a("ds_write2_b32 v31, v36, v37 offset0:0 offset1:1"); a("ds_write2_b32 v31, v38, v39 offset0:2 offset1:3")
    a("s_lshl_b32 s20, s16, 7")
    a("v_lshlrev_b32 v18, 5, v4"); a("v_lshl_add_u32 v18, v3, 4, v18"); a(f"v_add_u32 v18, {RH + 32 - 64}, v18"); a("v_subrev_u32 v18, s20, v18")
    a("v_bfe_u32 v19, v1, 2, 2"); a(f"v_mul_u32_u24 v19, {CS}, v19")
    a("v_and_b32 v14, 3, v1"); a("v_lshl_add_u32 v19, v14, 3, v19")
    a("v_lshlrev_b32 v14, 4, v3"); a("v_sub_u32 v19, v19, v14"); a("v_add_u32 v19, 56, v19"); a("v_add_u32 v19, s20, v19")
    a("s_lshl_b32 s20, s16, 10")
    a("v_lshlrev_b32 v14, 5, v4"); a("v_lshl_add_u32 v14, v3, 3, v14"); a(f"v_add_u32 v14, {RH + 512}, v14"); a("v_add_u32 v14, s20, v14")
    a.wait_vm("n")
    a("v_add_f32 v24, v24, v25"); rnd1(a, 24)
    a("v_add_f32 v26, v26, v27"); rnd1(a, 26); a("v_add_f32 v26, 1.0, v26"); rnd1(a, 26)
    for q in range(4):
        unpack(a, 28, 29, 20+q)
        a("v_mul_f32 v28, v28, v26"); a("v_mul_f32 v29, v29, v26")
        rnd2(a, 28, 29, 30)
        a("v_add_f32 v28, v28, v24"); a("v_add_f32 v29, v29, v24")
        a(f"v_cvt_pk_bf16_f32 v{20+q}, v28, v29")
    a(f"ds_write_b128 v13, v[20:23] offset:{RH + 512}")
    a.wait_all(vm=False)
    a("s_barrier")
    stamp(a, 4)
    ACC = 20; Bb = 64; Ab = 96
    def ldB(rr, u): a(f"ds_read_b128 v[{Bb+4*u}:{Bb+4*u+3}], v18 offset:{64*(8*u+7) + 64 - 64*rr}", tag=("B", rr, u))
    def ldA(rr, aa):
        a(f"ds_read_b64_tr_b16 v[{Ab+4*aa}:{Ab+4*aa+1}], v19 offset:{64*rr + 512*aa + 8}", tag=("A", rr, aa))
        a(f"ds_read_b64_tr_b16 v[{Ab+4*aa+2}:{Ab+4*aa+3}], v19 offset:{64*rr + 512*aa}", tag=("A", rr, aa))
    ldA(0, 0)
    for u in range(8): ldB(0, u)
    for aa in range(1, 8): ldA(0, aa)
    for rr in range(2):
        for aa in range(8):
            a.wait_lg(("A", rr, aa))
            for jt in range(7, aa-1, -1) if rr else range(aa, 8):
                u = jt - aa
                a.wait_lg(("B", rr, u))
                c = f"v[{ACC+4*jt}:{ACC+4*jt+3}]"
                a(f"v_mfma_f32_16x16x32_bf16 {c}, v[{Ab+4*aa}:{Ab+4*aa+3}], v[{Bb+4*u}:{Bb+4*u+3}], {c if (rr or aa) else 0}")
            if rr == 0:
                ldB(1, 7-aa); ldA(1, aa)
    a("ds_read_b64 v[52:53], v14"); a("ds_read_b64 v[54:55], v14 offset:512")
    a("s_lshl_b32 s20, s16, 13"); a("v_lshlrev_b32 v15, 4, v1"); a("v_add_u32 v16, s20, v15")
    a("s_lshl_b32 s20, s16, 11"); a("v_add_u32 v15, s20, v15")
    a.wait_all(vm=False)
    stamp(a, 5)
    a("s_barrier")
    for jt in range(8):
        a(f"ds_write_b128 v16, v[{ACC+4*jt}:{ACC+4*jt+3}] offset:{1024*jt}")
    a.wait_vm("x")
    a("v_add_f32 v60, v60, v61"); rnd1(a, 60)
    a("v_lshlrev_b32 v63, 16, v63")
    for q in range(4):
        unpack(a, 64+2*q, 65+2*q, 52+q)
        a(f"v_mul_f32 v{64+2*q}, v{64+2*q}, v63"); a(f"v_mul_f32 v{65+2*q}, v{65+2*q}, v63")
        rnd2(a, 64+2*q, 65+2*q, 62)
    a("v_mul_u32_u24 v17, 18432, v4"); a("v_lshl_add_u32 v17, v3, 3, v17")
    a("s_lshl_b32 s17, s3, 5"); a(f"s_mul_i32 s18, s16, {32*18432}"); a("s_add_u32 s18, s18, s17"); a(f"s_add_u32 s18, s18, {OFF_X1T}")
    a(f"s_add_u32 s19, s18, {16*18432}")
    a.wait_all(vm=False)
    a("s_barrier")
    for q in range(2):
        for sw in range(4):
            a(f"ds_read_b128 v[{72+16*q+4*sw}:{75+16*q+4*sw}], v15 offset:{8192*sw + 1024*q}", tag=("r", q))
    for q in range(2):
        a.wait_lg(("r", q))
        y = 72 + 16*q
        for e in range(4):
            a(f"v_add_f32 v{y+e}, v{y+e}, v{y+4+e}"); a(f"v_add_f32 v{y+8+e}, v{y+8+e}, v{y+12+e}")
        for e in range(4): a(f"v_add_f32 v{y+e}, v{y+e}, v{y+8+e}")
        for h in range(2):
            y0 = y+2*h; y1 = y0+1
            rnd2(a, y0, y1, 62)
            a(f"v_add_f32 v{y0}, v{y0}, v{64+4*q+2*h}"); a(f"v_add_f32 v{y1}, v{y1}, v{65+4*q+2*h}")
            rnd2(a, y0, y1, 62)
            a(f"v_mul_f32 v{y0}, v{y0}, v60"); a(f"v_mul_f32 v{y1}, v{y1}, v60")
            rnd2(a, y0, y1, 62)
            unpack(a, 61, 62, 56+2*q+h)
            a(f"v_add_f32 v{y0}, v{y0}, v61"); a(f"v_add_f32 v{y1}, v{y1}, v62")
            a(f"v_cvt_pk_bf16_f32 v{56+2*q+h}, v{y0}, v{y1}")
        a(f"buffer_store_dwordx2 v[{56+2*q}:{57+2*q}], v17, s[8:11], s{18+q} offen")
    if STAMP:
        stamp(a, 6); a.wait_all(); stamp(a, 7); stamp_store(a, 8, 1)
    a.label("KF_END")
    a("s_endpgm")
    a.label("KF_WARM"); a.hist = []; a.vm = []; a.lg = []
    a(f"s_cmp_ge_u32 s2, {F_END}")
    a("s_cbranch_scc1 KF_END")
    a("s_load_dwordx4 s[12:15], s[0:1], 80")
    a("s_load_dwordx2 s[16:17], s[0:1], 96")
    a(f"s_sub_u32 s3, s2, {F_WARM}")
    a("v_lshlrev_b32 v1, 4, v0")
    a.wait_all()
    a("s_cmp_ge_u32 s3, 36"); a("s_cselect_b32 s12, s14, s12"); a("s_cselect_b32 s13, s15, s13")
    a("s_cselect_b32 s18, 36, 0")
    a("s_cmp_ge_u32 s3, 72"); a("s_cselect_b32 s12, s16, s12"); a("s_cselect_b32 s13, s17, s13")
    a("s_cselect_b32 s18, 72, s18")
    a("s_sub_u32 s3, s3, s18"); a("s_mul_i32 s3, s3, 147456")
    srd(a, 8, 12, 576*9216)
    for i in range(36):
        a(f"buffer_load_dwordx4 v[{4+4*(i % 18)}:{7+4*(i % 18)}], v1, s[8:11], s3 offen")
        a("s_add_u32 s3, s3, 4096")
        if i % 6 == 5: a("s_waitcnt vmcnt(2)")
    a("s_endpgm")
    return a.text(), dict(vgpr=128, sgpr=50, accum=128), f"grid=({F_WARM if EXP == 'nowarm' else F_END},1,1) block=(256,1,1) lds=38912"

def poll(a, label, vflag, vaddr, soff, nl, tmp_s, depth=4):
    msk = (1 << nl) - 1
    a(f"s_mov_b32 s{tmp_s}, 0x8000")
    for d in range(depth - 1):
        a(f"buffer_load_dword v{vflag+d}, v{vaddr}, s[8:11], s{soff} offen sc1")
    a.label(label)
    for d in range(depth):
        a(f"buffer_load_dword v{vflag+(d+depth-1) % depth}, v{vaddr}, s[8:11], s{soff} offen sc1")
        a(f"s_waitcnt vmcnt({depth-1})")
        a(f"v_cmp_ne_u32 vcc, 0, v{vflag+d}")
        a(f"s_and_b32 s{tmp_s+1}, vcc_lo, {msk:#x}")
        a(f"s_cmp_eq_u32 s{tmp_s+1}, {msk:#x}")
        a(f"s_cbranch_scc1 {label}_X")
    a(f"s_sub_u32 s{tmp_s}, s{tmp_s}, 1")
    a(f"s_cbranch_scc0 {label}")
    a.label(label + "_X")
    a.vm = [None] * (depth - 1)

def kgg():
    a = Asm()
    SLOT = 36864; UPO = 18432; NSLOT = 4; PF = 6; NA = 6
    L2B = 3*SLOT; RED = L2B + 18432
    HS = '' if EXP in ('local', 'localwb', 'localp') else ' sc1'
    a("s_load_dwordx2 s[6:7], s[0:1], 136")
    a("s_load_dwordx4 s[12:15], s[0:1], 80")
    a("s_load_dwordx2 s[4:5], s[0:1], 96")
    a("s_load_dwordx2 s[62:63], s[0:1], 120")
    a("s_cmp_ge_u32 s2, 256")
    a("s_cbranch_scc1 GG_END")
    stamp(a, 0)
    M = 224; DV = M+2; VT = M+13; VA = M+17
    a(f"v_and_b32 v{M}, 63, v0")
    a(f"v_lshrrev_b32 v{M+1}, 6, v0")
    a(f"v_readfirstlane_b32 s16, v{M+1}")
    a(f"v_lshlrev_b32 v{VT}, 4, v{M}")
    a(f"v_lshrrev_b32 v5, 4, v{M}")
    a("v_lshlrev_b32 v6, 5, v5")
    a("s_lshr_b32 s17, s2, 1"); a("s_mul_i32 s17, s17, 18432")
    a("s_and_b32 s18, s2, 1")
    a("s_mul_i32 s19, s16, 6144")
    a("s_add_u32 s20, s17, s19"); a(f"s_add_u32 s20, s20, {OFF_X1T}"); a("s_add_u32 s21, s20, 4096")
    a("s_mul_i32 s22, s16, 768"); a("s_mul_i32 s23, s18, 384"); a("s_add_u32 s22, s22, s23"); a(f"s_add_u32 s22, s22, {OFF_MODF}")
    a(f"s_add_u32 s19, s19, {L2B}")
    a("s_mul_i32 s3, s16, 384"); a("s_mul_i32 s23, s18, 192"); a("s_add_u32 s3, s3, s23"); a("s_add_u32 s3, s3, s17"); a(f"s_add_u32 s3, s3, {OFF_X1R}")
    a("s_mul_i32 s51, s18, 3072")
    a("s_mul_i32 s60, s16, 6144"); a("s_add_u32 s60, s60, s51"); a("s_add_u32 s60, s60, s17"); a(f"s_add_u32 s60, s60, {OFF_H2P}")
    a("s_mov_b32 s61, s19")
    a.wait_all()
    srd(a, 8, 6, WS_REC)
    a("s_cmp_eq_u32 s16, 3")
    a("s_cbranch_scc1 GG_S1")
    a("s_mov_b32 m0, s19")
    for i in range(4): a(f"buffer_load_dwordx4 v{VT}, s[8:11], s20 offen offset:{1024*i} lds", tag="x")
    a("s_add_u32 m0, s19, 4096")
    for i in range(2): a(f"buffer_load_dwordx4 v{VT}, s[8:11], s21 offen offset:{1024*i} lds", tag="x")
    SB = 100; CB = 124
    for i in range(3):
        for h in range(2):
            a(f"buffer_load_dwordx4 v[{SB+8*i+4*h}:{SB+8*i+4*h+3}], v6, s[8:11], s22 offen offset:{128*i+16*h}", tag="m")
            a(f"buffer_load_dwordx4 v[{CB+8*i+4*h}:{CB+8*i+4*h+3}], v6, s[8:11], s22 offen offset:{2304+128*i+16*h}", tag="m")
    a.label("GG_S1")
    a(f"v_mov_b32 v1, v{M}")
    a("s_and_b32 s17, s2, 7"); a("s_lshr_b32 s18, s2, 3")
    a("s_and_b32 s19, s18, 3"); a("s_lshl_b32 s17, s17, 2"); a("s_add_u32 s17, s17, s19")
    a("s_lshr_b32 s18, s18, 2")
    a("s_lshl_b32 s19, s19, 1"); a("s_add_u32 s19, s19, s18")
    a("s_sub_u32 s20, s19, 9"); a("s_cmp_ge_u32 s19, 9"); a("s_cselect_b32 s19, s20, s19")
    dma_voffsets(a, DV, 9216, swap23=True)
    a("s_and_b32 s22, s16, 1"); a("s_lshr_b32 s23, s16, 1")
    a(f"s_mul_i32 s28, s22, {32*9216}"); a("s_mul_i32 s30, s17, 288"); a("s_add_u32 s28, s28, s30")
    a(f"s_mul_i32 s29, s23, {UPO}"); a("s_mul_i32 s30, s22, 9216"); a("s_add_u32 s29, s29, s30")
    a("s_lshl_b32 s31, s18, 4"); a("s_lshl_b32 s30, s16, 2"); a("s_add_u32 s31, s31, s30")
    a("s_mul_i32 s32, s31, 18432"); a(f"s_add_u32 s32, s32, {OFF_H2P}")
    SD, ST = 33, 42
    for j in range(9):
        a(f"s_add_u32 s22, s19, {j}"); a("s_sub_u32 s23, s22, 9"); a("s_cmp_ge_u32 s22, 9"); a("s_cselect_b32 s22, s23, s22")
        a(f"s_mul_i32 s23, s22, {64*9216}"); a(f"s_add_u32 s{SD+j}, s28, s23")
        a("s_lshl_b32 s23, s22, 11"); a(f"s_add_u32 s{ST+j}, s32, s23")
    a("s_cmp_ge_u32 s16, 2")
    a("s_cselect_b32 s20, s14, s12"); a("s_cselect_b32 s21, s15, s13")
    srd(a, 24, 20, 576*9216)
    srd(a, 12, 4, 4608*1152)
    AF = 64; BR = AF + 4*NA; DV2A = BR + 16*PF
    def dma(st, i):
        a(f"s_add_u32 m0, s29, {(st % NSLOT)*SLOT + i*1024}")
        a(f"buffer_load_dwordx4 v{DV+i}, s[24:27], s{SD+st} offen lds", tag=("d", st))
    def tok(ks, b):
        rb = BR + 16 * (ks % PF) + 4*b
        a(f"buffer_load_dwordx4 a[{rb}:{rb+3}], v{VT+b}, s[8:11], s{ST + ks//2} offen offset:{(ks % 2)*1024} sc1", tag=("t", ks))
    def accr(mat, aa, b):
        if aa < 7: return ("v", 32*aa + 16*mat + 4*b)
        return ("a", 32*(aa-7) + 16*mat + 4*b)
    def acc(mat, aa, b):
        k, r = accr(mat, aa, b); return f"{k}[{r}:{r+3}]"
    def trd(n, q, seq):
        ks, aa, mat = seq[n]
        st, kk = divmod(ks, 2); slot = st % NSLOT
        off = mat*UPO + kk*9216 + aa*32 + q*2304
        r = AF + 4*(n % NA) + 2*q
        a(f"ds_read_b64_tr_b16 a[{r}:{r+1}], v{VA+slot} offset:{off}", tag=("a", n))
    for i in range(9): dma(0, i)
    def late_setup():
        for b in range(1, 4): a(f"v_add_u32 v{VT+b}, {18432*b}, v{VT}")
        a(f"v_lshrrev_b32 v2, 5, v{M}"); a("v_lshlrev_b32 v2, 4, v2")
        a(f"v_bfe_u32 v3, v{M}, 4, 1"); a("v_lshl_add_u32 v2, v3, 2, v2")
        a(f"v_bfe_u32 v3, v{M}, 2, 2"); a("v_add_u32 v2, v2, v3")
        a(f"v_mul_u32_u24 v{VA}, 288, v2")
        a(f"v_and_b32 v2, 3, v{M}"); a(f"v_lshl_add_u32 v{VA}, v2, 3, v{VA}")
        for sl in range(1, 4): a(f"v_add_u32 v{VA+sl}, {sl*SLOT}, v{VA}")
        a("s_mul_i32 s20, s31, 147456"); a("s_mul_i32 s21, s17, 9"); a("s_lshr_b32 s21, s21, 1"); a("s_lshl_b32 s21, s21, 10")
        a("s_add_u32 s20, s20, s21"); a(f"s_add_u32 s52, s20, {OFF_HM}")
        for b in range(1, 4): a(f"s_add_u32 s{52+b}, s52, {147456*b}")
        for b in range(4): a(f"s_add_u32 s{56+b}, s{52+b}, 4096")
        dma_voffsets(a, 10, 1152)
        for i in range(9): a(f"v_accvgpr_write_b32 a{DV2A+i}, v{10+i}")
        a("s_and_b32 s20, s2, 7"); a("s_lshr_b32 s21, s2, 3")
        a("s_and_b32 s5, s21, 3"); a("s_lshr_b32 s4, s21, 2")
        a("s_and_b32 s22, s20, 1"); a("s_lshl_b32 s22, s22, 3"); a("s_add_u32 s4, s4, s22")
        a("s_lshr_b32 s3, s20, 1")
        a(f"s_mul_i32 s60, s3, {1152*1152}"); a(f"s_mul_i32 s20, s16, {32*1152}"); a("s_add_u32 s60, s60, s20")
        a("s_mul_i32 s20, s5, 288"); a("s_add_u32 s60, s60, s20")
        a(f"s_add_u32 s61, s60, {128*1152}")
        a("s_mul_i32 s51, s16, 9216")
        a("s_lshl_b32 s30, s18, 5"); a("s_add_u32 s30, s30, s17"); a("s_mul_i32 s30, s30, 36864"); a("s_add_u32 s30, s30, s51")
        a(f"s_add_u32 s30, s30, {OFF_PART}"); a("s_add_u32 s32, s30, 4096"); a("s_add_u32 s28, s30, 8192")
        for q in range(4): a(f"v_mov_b32 v{246+q}, -1")
        a("s_lshr_b32 s20, s2, 3"); a("s_lshl_b32 s20, s20, 2"); a("s_add_u32 s20, s20, s16"); a("s_mul_i32 s20, s20, 162")
        a(f"s_mul_i32 s21, s3, {1152*1152//64}"); a("s_add_u32 s20, s20, s21")
        for i in range(3):
            a(f"v_add_u32 v2, {64*i}, v{M}"); a("v_min_u32 v2, 161, v2"); a("v_add_u32 v2, s20, v2"); a("v_lshlrev_b32 v2, 6, v2")
            a(f"v_accvgpr_write_b32 a{DV2A+9+i}, v2")
    def pfw(i):
        if EXP == "nopf": return
        a(f"v_accvgpr_read_b32 v254, a{DV2A+9+i}")
        a(f"buffer_load_dword v255, v254, s[12:15], 0 offen", tag="pf")
    a("s_cmp_eq_u32 s16, 3")
    a("s_cbranch_scc1 GG_W3")
    vm_w3 = [t for t in a.vm if t not in ("x", "m")]
    a(f"v_and_b32 v4, 15, v{M}")
    a(f"v_bfe_u32 v7, v{M}, 2, 2"); a("v_lshlrev_b32 v7, 5, v7")
    a(f"v_and_b32 v8, 3, v{M}"); a("v_lshl_add_u32 v7, v8, 3, v7")
    a("v_lshl_add_u32 v7, v5, 8, v7")
    a("v_add_u32 v7, s61, v7")
    a("v_subrev_u32 v8, s51, v7")
    a("v_add_u32 v7, s51, v7")
    a("v_mul_u32_u24 v9, 1152, v4"); a("v_lshl_add_u32 v9, v5, 4, v9")
    a("v_lshlrev_b32 v23, 4, v4"); a(f"v_add_u32 v23, {RED}, v23")
    a(f"v_lshl_add_u32 v22, v{M+1}, 2, v23")
    stamp_x(a, 1)
    a.wait_vm("x")
    stamp_x(a, 2)
    X = 24; F = 48
    for i in range(6):
        va = 7 if i < 3 else 8
        a(f"ds_read_b64_tr_b16 v[{X+4*i}:{X+4*i+1}], v{va} offset:{1024*i}", tag=("t", i))
        a(f"ds_read_b64_tr_b16 v[{X+4*i+2}:{X+4*i+3}], v{va} offset:{1024*i+128}", tag=("t", i))
    for i in range(6):
        a.wait_lg(("t", i))
        if i < 3: a(f"buffer_store_dwordx4 v[{X+4*i}:{X+4*i+3}], v9, s[8:11], s3 offen offset:{64*i} sc1", tag="st")
        for q in range(4): unpack(a, F+8*i+2*q, F+8*i+2*q+1, X+4*i+q)
    def xreduce(r, off):
        a(f"v_mov_b32 v10, v{r}")
        a(f"v_permlane32_swap_b32 v10, v{r}")
        a(f"v_add_f32 v{r}, v{r}, v10")
        a(f"v_mov_b32 v10, v{r}")
        a(f"v_permlane16_swap_b32 v10, v{r}")
        a(f"v_add_f32 v{r}, v{r}, v10")
        a(f"ds_write_b32 v22, v{r} offset:{off}")
        a.wait_all(vm=False)
        a("s_barrier")
        a(f"ds_read_b96 v[10:12], v23 offset:{off}")
        a.wait_all(vm=False)
        a("v_add_f32 v10, v10, v11"); a(f"v_add_f32 v{r}, v10, v12")
    for c in range(4): a(f"v_add_f32 v{14+c}, v{F+c}, v{F+4+c}")
    for i in range(8, 48, 4):
        for c in range(4): a(f"v_add_f32 v{14+c}, v{14+c}, v{F+i+c}")
    a("v_add_f32 v14, v14, v15"); a("v_add_f32 v16, v16, v17"); a("v_add_f32 v14, v14, v16")
    xreduce(14, 0)
    a(f"v_mul_f32 v14, {f32(1.0/576):#x}, v14")
    for i in range(0, 48, 2):
        a(f"v_sub_f32 v18, v{F+i}, v14"); a(f"v_sub_f32 v19, v{F+i+1}, v14")
        if i == 0: a("v_mul_f32 v15, v18, v18"); a("v_mul_f32 v16, v19, v19")
        else: a("v_fmac_f32 v15, v18, v18"); a("v_fmac_f32 v16, v19, v19")
    a("v_add_f32 v15, v15, v16")
    xreduce(15, 256)
    a(f"v_mul_f32 v15, {f32(1.0/576):#x}, v15")
    rnd1(a, 15)
    a(f"v_add_f32 v15, {f32(1e-5):#x}, v15")
    rnd1(a, 15)
    a("v_sqrt_f32 v15, v15")
    rnd1(a, 15)
    a("v_rcp_f32 v16, v15")
    rnd1(a, 14)
    stamp_x(a, 3)
    a.wait_vm("m")
    for i in range(3):
        for q in range(4):
            r0 = F+8*i+2*q; r1 = r0+1
            a(f"v_sub_f32 v{r0}, v{r0}, v14"); a(f"v_sub_f32 v{r1}, v{r1}, v14")
            rnd2(a, r0, r1, 17)
            a(f"v_mul_f32 v18, v{r0}, v16"); a(f"v_mul_f32 v19, v{r1}, v16")
            a(f"v_fma_f32 v{r0}, -v18, v15, v{r0}"); a(f"v_fma_f32 v{r1}, -v19, v15, v{r1}")
            a(f"v_fmac_f32 v18, v{r0}, v16"); a(f"v_fmac_f32 v19, v{r1}, v16")
            rnd2(a, 18, 19, 17)
            a(f"v_mul_f32 v18, v18, v{CB+8*i+2*q}"); a(f"v_mul_f32 v19, v19, v{CB+8*i+2*q+1}")
            rnd2(a, 18, 19, 17)
            a(f"v_add_f32 v18, v18, v{SB+8*i+2*q}"); a(f"v_add_f32 v19, v19, v{SB+8*i+2*q+1}")
            a(f"v_cvt_pk_bf16_f32 v{X+12+4*i+q}, v18, v19")
        a(f"buffer_store_dwordx4 v[{X+12+4*i}:{X+12+4*i+3}], v{VT}, s[8:11], s60 offen offset:{1024*i} sc1", tag="st")
    stamp_x(a, 4)
    a.wait_vm("st")
    a("s_barrier")
    stamp_x(a, 5)
    late_setup()
    for i in range(9): dma(1, i)
    vm_main = list(a.vm)
    a("s_branch GG_R4")
    a.label("GG_W3"); a.hist = []; a.vm = vm_w3; a.lg = []
    late_setup()
    for i in range(9): dma(1, i)
    a("s_lshr_b32 s20, s2, 5"); a("s_lshl_b32 s20, s20, 7"); a("s_and_b32 s21, s2, 31"); a("s_lshl_b32 s21, s21, 2")
    a("s_add_u32 s20, s20, s21"); a(f"s_add_u32 s20, s20, {OFF_FLG + 12288}")
    a("s_lshl_b32 s21, s18, 7"); a(f"s_add_u32 s21, s21, {OFF_FLG + 12288}")
    a(f"v_lshlrev_b32 v3, 2, v{M}"); a("v_mov_b32 v4, 1")
    a("s_barrier"); a("s_barrier")
    a.wait_all()
    a("s_barrier")
    a("s_mov_b64 exec, 1")
    a("buffer_store_dword v4, v3, s[8:11], s20 offen sc1")
    a("s_mov_b64 exec, -1")
    poll(a, "GG_P0", 6, 3, 21, 32, 22)
    a.label("GG_R4"); a.hist = []; a.vm = vm_main; a.lg = []
    a("s_barrier")
    stamp_x(a, 6)
    stamp_m(a, 1)
    for b in range(4): tok(0, b)
    def slot2(st): return (st + 1) % NSLOT
    def dma2(st, i, so=None):
        a(f"s_add_u32 m0, s51, {slot2(st)*SLOT + i*1024}")
        a(f"buffer_load_dwordx4 v{DV+i}, s[12:15], s{so if so is not None else SD+st} offen lds", tag=("d2", st))
    def swapdv():
        for i in range(9): a(f"v_accvgpr_read_b32 v{DV+i}, a{DV2A+i}")
    NF = 18*18
    D = NA - 1
    TM = 4
    KM = 18 - TM
    base = [(ks, aa, mat) for ks in range(KM) for aa in range(9) for mat in range(2)]
    def barrier_at(st1): return min(36*st1, 18*KM) - D
    ops = []
    for st in range(2, 9):
        for i in range(9):
            ops.append((barrier_at(st) - 0.5 + 0.01*st, i, -1 if st <= 3 else 36*(st-2) - D, dma, (st, i)))
    for ks in range(1, 18):
        for b in range(4):
            ops.append((min(18*ks, 18*KM + 2*(ks - KM)), b, -1 if ks < PF else 18*(ks-PF+1), tok, (ks, b)))
    def poison(i):
        a(f"buffer_store_dwordx4 v[246:249], v{VT}, s[8:11], s{(30, 32, 28)[i//4]} offen offset:{(i % 4)*1024} sc1", tag="po")
    for i in range(9): ops.append((NF-1, i, 40 + 22*i, poison, (i,)))
    ops.append((NF+1, 0, 18*KM - D, swapdv, ()))
    for st in range(2):
        for i in range(9):
            ops.append((NF+2+st, i, (18*KM - D) if st == 0 else (18*KM + 2), dma2, (st, i, 60+st)))
    ops.sort(key=lambda o: (o[0], o[1]))
    T = 246
    def prod(aa, b, o):
        L = []
        (k_, g), (_, u) = accr(0, aa, b), accr(1, aa, b)
        if k_ == "a":
            for r in range(4):
                L.append(f"v_accvgpr_read_b32 v{32+r}, a{g+r}"); L.append(f"v_accvgpr_read_b32 v{36+r}, a{u+r}")
            g, u = 32, 36
        for q in range(2):
            L.append(f"v_pk_mul_f32 v[{g+2*q}:{g+2*q+1}], v[{g+2*q}:{g+2*q+1}], v[{u+2*q}:{u+2*q+1}]")
        for q in range(2):
            L.append(f"v_cvt_pk_bf16_f32 v{o+q}, v{g+2*q}, v{g+2*q+1}")
        return L
    def epi_group(gr, par, cnt0):
        L = []
        for b in range(4):
            o = T + 4*((cnt0 + b) % 2)
            Lf = gr[0] + par; kap = Lf >> 1
            so = (52 if kap < 4 else 56) + b; im = (kap % 4)*1024
            if len(gr) == 2:
                L += prod(gr[0], b, o) + prod(gr[1], b, o+2)
                L.append(f"buffer_store_dwordx4 v[{o}:{o+3}], v{VT}, s[8:11], s{so} offen offset:{im}" + HS)
            else:
                L += prod(gr[0], b, o)
                L.append(f"buffer_store_dwordx2 v[{o}:{o+1}], v{VT}, s[8:11], s{so} offen offset:{im + 8*(Lf & 1)}" + HS)
        return L
    def run(seq, n0, n1, ops, done_at=None):
        epq = []
        seen_t = set()
        for n in range(n0, n1):
            ks, aa, mat = seq[n]
            for st1 in range(1, 9):
                if barrier_at(st1) == n:
                    assert not any(o[3] is dma and o[4][0] == st1 for o in ops)
                    a.wait_vm(("d", st1))
            if any(barrier_at(st1) == n for st1 in range(1, 9)) or n == 18*KM + 2: a("s_barrier")
            assert not any(o[3] is tok and o[4][0] == ks for o in ops)
            a.wait_vm(("t", ks))
            a.wait_lg(("a", n))
            ar = AF + 4*(n % NA)
            for b in range(4):
                rb = BR + 16 * (ks % PF) + 4*b
                c = acc(mat, aa, b)
                a(f"v_mfma_f32_16x16x32_bf16 {c}, a[{ar}:{ar+3}], a[{rb}:{rb+3}], {c if ks else 0}")
                if b < 2 and n + D < NF: trd(n + D, b, seq)
                issued = False
                if b == 2 and (n % 3 != 2 or n >= 18*KM):
                    for o in ops:
                        if o[2] <= n:
                            if o[3] is swapdv: assert not any(p[3] is dma for p in ops)
                            if o[3] is poison: assert not epq
                            ops.remove(o); o[3](*o[4]); issued = True; break
                for _ in range(1 if b < 2 else (0 if issued else 2)):
                    if epq: a(epq.pop(0), tag="hm")
            if done_at and n in done_at: epq += done_at[n]
        for ins in epq: a(ins, tag="hm")
        assert n1 < NF or not ops
    for n in range(D):
        trd(n, 0, base); trd(n, 1, base)
    NC = 18*KM - D - D
    run(base + [None]*NF, 0, NC, ops)
    a("s_bitcmp1_b32 s17, 0")
    a("s_cbranch_scc1 GG_ODD")
    h = list(a.hist); vm = list(a.vm); lg = list(a.lg)
    for par in range(2):
        groups = [(0, 1), (2, 3), (4, 5), (6, 7), (8,)] if par == 0 else [(1, 2), (3, 4), (5, 6), (7, 8), (0,)]
        seq = list(base); done = {}; cnt = 0
        for gr in groups:
            for aa in gr:
                seq += [(ks, aa, mat) for ks in range(KM, 18) for mat in range(2)]
            done[min(len(seq) + 1, NF - 1)] = done.get(min(len(seq) + 1, NF - 1), []) + epi_group(gr, par, cnt); cnt += 4
        if par == 1:
            a.label("GG_ODD"); a.hist = h; a.vm = vm; a.lg = lg
        run(seq, NC, NF, list(ops), done)
        if par == 0: a("s_branch GG_FIN")
    a.label("GG_FIN"); a.hist = []
    stamp_m(a, 2)
    a("s_lshl_b32 s20, s18, 2"); a("s_lshr_b32 s21, s17, 3"); a("s_add_u32 s20, s20, s21"); a("s_lshl_b32 s20, s20, 7")
    a("s_and_b32 s21, s17, 7"); a("s_lshl_b32 s21, s21, 2"); a("s_add_u32 s20, s20, s21"); a(f"s_add_u32 s20, s20, {OFF_FLG}")
    a("s_lshr_b32 s21, s4, 1"); a("s_lshl_b32 s21, s21, 2"); a("s_add_u32 s21, s21, s3"); a("s_lshl_b32 s21, s21, 7"); a(f"s_add_u32 s21, s21, {OFF_FLG}")
    ST0, ST1 = 42, 52
    a("s_lshl_b32 s31, s4, 3"); a("s_lshl_b32 s30, s16, 1"); a("s_add_u32 s31, s31, s30")
    a("s_mul_i32 s31, s31, 147456"); a("s_mul_i32 s30, s3, 36864"); a("s_add_u32 s31, s31, s30")
    a(f"s_add_u32 s31, s31, {OFF_HM}")
    for j in range(9):
        a(f"s_add_u32 s{SD+j}, s60, {j*128*1152}")
    for j in range(9):
        a(f"s_add_u32 s{ST0+j}, s31, {j*4096}")
    a(f"v_add_u32 v{VT+1}, 147456, v{VT}")
    a(f"v_lshrrev_b32 v2, 2, v{M}")
    a(f"v_mul_u32_u24 v{VA}, 288, v2")
    a(f"v_and_b32 v2, 3, v{M}"); a(f"v_lshl_add_u32 v{VA}, v2, 3, v{VA}")
    for sl in range(1, 4): a(f"v_add_u32 v{VA+sl}, {sl*SLOT}, v{VA}")
    a(f"v_lshlrev_b32 v{VT+2}, 2, v{M}")
    a(f"v_mov_b32 v{VT+3}, 1")
    a.wait_all()
    stamp_m(a, 3)
    a("s_barrier")
    a("s_cmp_lg_u32 s16, 0")
    a("s_cbranch_scc1 GG_W1")
    a("s_mov_b64 exec, 1")
    a(f"buffer_store_dword v{VT+3}, v{VT+2}, s[8:11], s20 offen sc1")
    a("s_mov_b64 exec, -1")
    poll(a, "GG_P1", 2, VT+2, 21, 8, 22)
    a.label("GG_W1"); a.hist = []; a.vm = []
    for st in (2, 3):
        for i in range(9): dma2(st, i)
    a("s_barrier")
    stamp_m(a, 4)
    a("s_and_b32 s22, s4, 1"); a("s_lshl_b32 s22, s22, 2"); a("s_add_u32 s22, s22, s5"); a("s_lshl_b32 s22, s22, 2")
    a("s_lshr_b32 s23, s4, 1"); a("s_lshl_b32 s23, s23, 7"); a("s_add_u32 s23, s23, s22")
    a("s_lshl_b32 s28, s3, 5"); a("s_add_u32 s28, s28, s23"); a("s_add_u32 s28, s28, s16")
    a("s_mul_i32 s28, s28, 9216"); a(f"s_add_u32 s28, s28, {OFF_PART}")
    for q in range(1, 3): a(f"s_add_u32 s{28+q}, s28, {4096*q}")
    a("s_add_u32 s23, s23, s3")
    a("s_lshl_b32 s17, s16, 11"); a(f"s_add_u32 s17, s17, {OFF_PART}")
    for i in range(1, 4):
        a(f"s_add_u32 s18, s3, {i}"); a("s_and_b32 s18, s18, 3"); a("s_lshl_b32 s18, s18, 5"); a("s_add_u32 s18, s18, s23")
        a("s_mul_i32 s18, s18, 9216"); a(f"s_add_u32 s{52+i}, s18, s17")
    a("s_lshl_b32 s56, s4, 7"); a("s_lshl_b32 s18, s3, 5"); a("s_add_u32 s56, s56, s18"); a("s_mul_i32 s56, s56, 1152")
    a("s_mul_i32 s18, s5, 288"); a("s_add_u32 s56, s56, s18"); a("s_lshl_b32 s18, s16, 6"); a("s_add_u32 s56, s56, s18")
    a("s_mul_i32 s57, s5, 576"); a("s_lshl_b32 s18, s16, 7"); a("s_add_u32 s57, s57, s18"); a(f"s_add_u32 s57, s57, {OFF_MODF + 4608}")
    a(f"s_add_u32 s58, s56, {OFF_X1R}")
    a("s_lshl_b32 s59, s16, 12"); a(f"s_add_u32 s59, s59, {2*SLOT}")
    if EXP == "localwb": a("buffer_wbl2 sc1")
    stamp_g(a, 1)
    PF2 = 12; AF2 = 72; BR2 = 108
    def tok2(ks, b):
        if EXP == "g2not" and ks >= 12: return
        rb = BR2 + 8 * (ks % PF2) + 4*b
        a(f"buffer_load_dwordx4 v[{rb}:{rb+3}], v{VT+b}, s[8:11], s{ST0 + ks//4} offen offset:{(ks % 4)*1024}" + ("" if EXP in ("g2plain", "localp") else " sc1"), tag=("t2", ks))
    def trd2(n, q):
        ks, aa = divmod(n, 9); st, kk = divmod(ks, 4)
        off = kk*9216 + aa*32 + q*16*288
        a(f"ds_read_b64_tr_b16 v[{AF2+4*aa+2*q}:{AF2+4*aa+2*q+1}], v{VA+slot2(st)} offset:{off}", tag=("a2", n))
    def dm0(st, i): a(f"s_add_u32 m0, s51, {slot2(st)*SLOT + i*1024}")
    def dld(st, i):
        if EXP == "g2now": return
        a(f"buffer_load_dwordx4 v{DV+i}, s[12:15], s{SD+st} offen lds", tag=("d2", st))
    PRO2 = 4
    for ks in range(PRO2):
        for b in range(2): tok2(ks, b)
    N2 = 36*9; D2 = 8
    ops = []
    for st in range(4, 9):
        for i in range(9): ops.append((36*st - D2 - 0.5, i, 36*(st-2) - D2, dld, (st, i)))
    for ks in range(PRO2, 36):
        for b in range(2): ops.append((9*ks, b, -1 if ks < PF2 else 9*(ks-PF2+1), tok2, (ks, b)))
    ops.sort(key=lambda o: (o[0], o[1]))
    for n in range(D2):
        trd2(n, 0); trd2(n, 1)
    armed = None
    for n in range(N2):
        ks, aa = divmod(n, 9)
        if (n + D2) % 36 == 0 and n + D2 < N2:
            st1 = (n + D2)//36
            assert not any(o[3] is dld and o[4][0] == st1 for o in ops) and not (armed and armed[0] == st1)
            a.wait_vm(("d2", st1))
            a("s_barrier")
        if aa == 0:
            assert not any(o[3] is tok2 and o[4][0] == ks for o in ops)
            a.wait_vm(("t2", ks))
            if ks in (0, 6, 12, 24): stamp_g(a, {0: 2, 6: 3, 12: 4, 24: 5}[ks])
        if n % 2 == 0: a.wait_lg(("a2", min(n+1, N2-1)))
        for b in range(2):
            t = 2*aa + b; rb = BR2 + 8 * (ks % PF2) + 4*b
            c = f"v[{4*t}:{4*t+3}]"
            a(f"v_mfma_f32_16x16x32_bf16 {c}, v[{AF2+4*aa}:{AF2+4*aa+3}], v[{rb}:{rb+3}], {c if ks else 0}")
            if n + D2 < N2: trd2(n + D2, b)
            if b == 0 or n % 2 == 1:
                if armed:
                    dld(*armed); armed = None
                else:
                    for o in ops:
                        if o[2] <= n:
                            ops.remove(o)
                            if o[3] is dld: dm0(*o[4]); armed = o[4]
                            else: o[3](*o[4])
                            break
    assert not ops and not armed
    stamp_m(a, 5)
    a(f"v_add_u32 v{VA}, {2*SLOT}, v{VT}")
    stamp_g(a, 6)
    OWN = 2 * SLOT
    a("s_cmp_eq_u32 s16, s3")
    a("s_cbranch_scc1 GG_OWN")
    h = list(a.hist)
    for aa in range(9):
        o = 72 + 4*(aa % 3)
        for q in range(4): a(f"v_cvt_pk_bf16_f32 v{o+q}, v{8*aa+2*q}, v{8*aa+2*q+1}")
        a(f"buffer_store_dwordx4 v[{o}:{o+3}], v{VT}, s[8:11], s{28 + aa//4} offen offset:{(aa % 4)*1024} sc1")
    a("s_branch GG_PUB")
    a.label("GG_OWN"); a.hist = h
    for t in range(18):
        a(f"ds_write_b128 v{VA}, v[{4*t}:{4*t+3}] offset:{1024*t}")
    a.label("GG_PUB"); a.hist = []
    a(f"v_and_b32 v140, 15, v{M}"); a("v_mul_u32_u24 v144, 1152, v140")
    a(f"v_lshrrev_b32 v140, 4, v{M}"); a("v_lshl_add_u32 v144, v140, 3, v144")
    a("v_lshlrev_b32 v145, 4, v140")
    a(f"v_add_u32 v146, {16*1152}, v144")
    a(f"v_add_u32 v147, s59, v{VT}")
    for i in range(3):
        for b in range(2):
            a(f"buffer_load_dwordx2 v[{108+2*(2*i+b)}:{109+2*(2*i+b)}], v{144 if b == 0 else 146}, s[8:11], s58 offen offset:{32*i} sc1")
        a(f"buffer_load_dwordx4 v[{120+4*i}:{123+4*i}], v145, s[8:11], s57 offen offset:{64*i}")
    for q in range(3): a(f"s_mov_b32 s{48+q}, s{53+q}")
    a("s_mov_b32 s34, s56")
    srd(a, 24, 62, 2048*1152)
    a.wait_all(vm=False)
    stamp_m(a, 6)
    a("s_barrier")
    for i in range(6):
        a(f"ds_read_b128 v[{4*i}:{4*i+3}], v147 offset:{1024*i}")
    R = 24
    a("s_mov_b32 s22, 0x8000")
    a.label("GG_P2")
    for i in range(3):
        for q in range(3):
            r = R + 4*(3*i + q)
            a(f"buffer_load_dwordx4 v[{r}:{r+3}], v{VT}, s[8:11], s{48+q} offen offset:{i*1024} sc1")
    a("s_waitcnt vmcnt(0)"); a.vm = []
    a(f"v_max3_u32 v60, v{R}, v{R+1}, v{R+2}")
    a(f"v_max3_u32 v61, v{R+3}, v{R+4}, v{R+5}")
    for r in range(R+6, R+36, 4):
        if r + 3 < R + 36:
            a(f"v_max3_u32 v60, v60, v{r}, v{r+1}"); a(f"v_max3_u32 v61, v61, v{r+2}, v{r+3}")
        else:
            a(f"v_max3_u32 v60, v60, v{r}, v{r+1}")
    a("v_max_u32 v60, v60, v61")
    a("v_cmp_eq_u32 vcc, -1, v60")
    a("s_sub_u32 s22, s22, 1")
    a("s_cbranch_scc1 GG_P2X")
    a("s_cbranch_vccnz GG_P2")
    a.label("GG_P2X"); a.hist = []
    a.wait_all(vm=False)
    for i in range(3):
        for b in range(2):
            r = 4*(2*i + b)
            for q in range(3):
                for e in range(2):
                    unpack(a, 60, 61, R + 4*(3*i+q) + 2*b + e)
                    a(f"v_add_f32 v{r+2*e}, v{r+2*e}, v60"); a(f"v_add_f32 v{r+2*e+1}, v{r+2*e+1}, v61")
            xr = 108 + 2*(2*i + b)
            for e in range(0, 4, 2):
                rnd2(a, r+e, r+e+1, 62)
                a(f"v_mul_f32 v{r+e}, v{r+e}, v{120+4*i+e}"); a(f"v_mul_f32 v{r+e+1}, v{r+e+1}, v{120+4*i+e+1}")
                rnd2(a, r+e, r+e+1, 62)
                unpack(a, 62, 63, xr+e//2)
                a(f"v_add_f32 v{r+e}, v{r+e}, v62"); a(f"v_add_f32 v{r+e+1}, v{r+e+1}, v63")
                a(f"v_cvt_pk_bf16_f32 v{xr+e//2}, v{r+e}, v{r+e+1}")
            a(f"buffer_store_dwordx2 v[{xr}:{xr+1}], v{144 if b == 0 else 146}, s[24:27], s34 offen offset:{32*i}")
    if STAMP:
        a.wait_all(); stamp(a, 7); stamp_store(a, 8, 4)
    a.label("GG_END")
    a("s_endpgm")
    return a.text(), dict(vgpr=256+DV2A+12, sgpr=64, accum=256), f"grid=(256,1,1) block=(256,1,1) lds={NSLOT*SLOT}"
def k5():
    a = Asm()
    SLOT = 36864; NSLOT = 4; PF = 12
    a("s_load_dwordx2 s[6:7], s[0:1], 136")
    a("s_load_dwordx2 s[12:13], s[0:1], 96")
    a("s_cmp_ge_u32 s2, 256")
    a("s_cbranch_scc1 K5_END")
    stamp(a, 0)
    M = 208
    a(f"v_and_b32 v{M}, 63, v0")
    a(f"v_lshrrev_b32 v{M+1}, 6, v0")
    a(f"v_readfirstlane_b32 s16, v{M+1}")
    a(f"v_mov_b32 v1, v{M}")
    a("s_and_b32 s17, s2, 7"); a("s_lshr_b32 s18, s2, 3")
    a("s_and_b32 s19, s18, 3")
    a("s_lshr_b32 s18, s18, 2")
    a("s_lshl_b32 s14, s19, 1"); a("s_add_u32 s14, s14, s18")
    a("s_sub_u32 s20, s14, 9"); a("s_cmp_ge_u32 s14, 9"); a("s_cselect_b32 s14, s20, s14")
    if EXP == "norot": a("s_mov_b32 s14, 0")
    a("s_and_b32 s20, s17, 1"); a("s_lshl_b32 s20, s20, 3"); a("s_add_u32 s18, s18, s20")
    a("s_lshr_b32 s17, s17, 1")
    DV = M+2
    dma_voffsets(a, DV, 1152)
    a(f"s_mul_i32 s28, s17, {1152*1152}"); a(f"s_mul_i32 s30, s16, {32*1152}"); a("s_add_u32 s28, s28, s30")
    a("s_mul_i32 s30, s19, 288"); a("s_add_u32 s28, s28, s30")
    a("s_mul_i32 s29, s16, 9216")
    VT = M+13
    a(f"v_lshlrev_b32 v{VT}, 4, v{M}")
    a("s_lshl_b32 s31, s18, 3"); a("s_lshl_b32 s30, s16, 1"); a("s_add_u32 s31, s31, s30")
    a("s_mul_i32 s31, s31, 147456"); a("s_mul_i32 s30, s17, 36864"); a("s_add_u32 s31, s31, s30")
    a(f"s_add_u32 s31, s31, {OFF_HM}")
    a("s_add_u32 s32, s31, 147456")
    SD, ST0, ST1 = 33, 42, 51
    rot_soffsets(a, 14, SD, ST0, ST1, 28, 31, 32, 128*1152, 22)
    a.wait_all()
    stamp_m(a, 1)
    srd(a, 8, 6, WS_REC)
    srd(a, 24, 12, 4608*1152)
    AF = 72; BR = 108
    VA = M+14; VS = M+18
    def dma(st, i):
        a(f"s_add_u32 m0, s29, {(st % NSLOT)*SLOT + i*1024}")
        a(f"buffer_load_dwordx4 v{DV+i}, s[24:27], s{SD+st} offen lds", tag=("d", st))
    def tok(ks, b):
        rb = BR + 8 * (ks % PF) + 4*b
        a(f"buffer_load_dwordx4 v[{rb}:{rb+3}], v{VT}, s[8:11], s{(ST0, ST1)[b] + ks//4} offen offset:{(ks % 4)*1024}", tag=("t", ks))
    def trd(ks, aa):
        st, kk = divmod(ks, 4); slot = st % NSLOT
        off = kk*9216 + aa*32
        a(f"ds_read_b64_tr_b16 v[{AF+4*aa}:{AF+4*aa+1}], v{VA+slot} offset:{off}", tag=("a", ks, aa))
        a(f"ds_read_b64_tr_b16 v[{AF+4*aa+2}:{AF+4*aa+3}], v{VA+slot} offset:{off+(16 if G16 else 8)*288}", tag=("a", ks, aa))
    def mfma(ks, aa, b):
        t = 2*aa + b; rb = BR + 8 * (ks % PF) + 4*b
        c = f"v[{4*t}:{4*t+3}]"
        a(f"v_mfma_f32_16x16x32_bf16 {c}, v[{AF+4*aa}:{AF+4*aa+3}], v[{rb}:{rb+3}], {c if ks else 0}")
    def between():
        stamp_m(a, 2)
        if G16:
            a(f"v_lshrrev_b32 v2, 2, v{M}")
        else:
            a(f"v_lshrrev_b32 v2, 5, v{M}"); a("v_lshlrev_b32 v2, 4, v2")
            a(f"v_bfe_u32 v3, v{M}, 4, 1"); a("v_lshl_add_u32 v2, v3, 2, v2")
            a(f"v_bfe_u32 v3, v{M}, 2, 2"); a("v_add_u32 v2, v2, v3")
        a(f"v_mul_u32_u24 v{VA}, 288, v2")
        a(f"v_and_b32 v2, 3, v{M}"); a(f"v_lshl_add_u32 v{VA}, v2, 3, v{VA}")
        a(f"v_add_u32 v{VA+1}, {SLOT}, v{VA}")
        a(f"v_add_u32 v{VA+2}, {2*SLOT}, v{VA}")
        a(f"v_add_u32 v{VA+3}, {3*SLOT}, v{VA}")
        a(f"v_and_b32 v2, 15, v{M}"); a(f"v_mul_u32_u24 v{VS}, 2304, v2")
        a(f"v_lshrrev_b32 v2, 4, v{M}"); a(f"v_lshl_add_u32 v{VS}, v2, 4, v{VS}")
        a("s_lshl_b32 s20, s17, 11"); a("s_lshl_b32 s21, s18, 7"); a("s_add_u32 s20, s20, s21")
        a("s_lshl_b32 s21, s16, 5"); a("s_add_u32 s20, s20, s21")
        a("s_mul_i32 s20, s20, 2304"); a("s_mul_i32 s21, s19, 576"); a("s_add_u32 s20, s20, s21")
        a(f"s_add_u32 s20, s20, {OFF_PART}")
        a(f"s_add_u32 s21, s20, {16*2304}")
    kloop(a, dma, tok, trd, mfma, PF, 4, (0, 1, 2, 3, 4, 5, 6, 7, 8), between)
    stamp_m(a, 5)
    for t in range(18):
        aa, b = divmod(t, 2)
        a(f"buffer_store_dwordx4 v[{4*t}:{4*t+3}], v{VS}, s[8:11], s{20+b} offen offset:{64*aa}")
    if STAMP:
        stamp_m(a, 6); a.wait_all(); stamp(a, 7); stamp_store(a, 8, 5)
    a.label("K5_END")
    a("s_endpgm")
    return a.text(), dict(vgpr=228, sgpr=60, accum=228), f"grid=(256,1,1) block=(256,1,1) lds={NSLOT*SLOT}"

def k6():
    a = Asm()
    a("s_load_dwordx2 s[6:7], s[0:1], 136")
    a("s_load_dwordx2 s[4:5], s[0:1], 120")
    a("s_cmp_ge_u32 s2, 576")
    a("s_cbranch_scc1 K6_END")
    stamp(a, 0)
    a("s_lshl_b32 s3, s2, 8"); a("v_add_u32 v1, s3, v0")
    a("v_lshlrev_b32 v2, 5, v1")
    a("v_lshlrev_b32 v3, 4, v1")
    a("s_mov_b32 s12, 0x38e38e4")
    a("v_mul_hi_u32 v4, s12, v1"); a("v_mul_u32_u24 v4, 72, v4"); a("v_sub_u32 v4, v1, v4")
    a("v_lshlrev_b32 v4, 5, v4")
    a.wait_all()
    srd(a, 8, 6, WS_REC)
    srd(a, 12, 4, 2048*1152)
    for s in range(4):
        a(f"s_mov_b32 s16, {OFF_PART + s*2048*2304}")
        a(f"buffer_load_dwordx4 v[{8+8*s}:{11+8*s}], v2, s[8:11], s16 offen")
        a(f"buffer_load_dwordx4 v[{12+8*s}:{15+8*s}], v2, s[8:11], s16 offen offset:16")
    a(f"s_mov_b32 s16, {OFF_X1R}")
    a("buffer_load_dwordx4 v[40:43], v3, s[8:11], s16 offen")
    a(f"s_mov_b32 s16, {OFF_MODF + 4608}")
    a("buffer_load_dwordx4 v[44:47], v4, s[8:11], s16 offen")
    a("buffer_load_dwordx4 v[48:51], v4, s[8:11], s16 offen offset:16")
    a.wait_all()
    stamp_m(a, 1)
    for e in range(8):
        a(f"v_add_f32 v{8+e}, v{8+e}, v{16+e}")
        a(f"v_add_f32 v{24+e}, v{24+e}, v{32+e}")
    for e in range(8):
        a(f"v_add_f32 v{8+e}, v{8+e}, v{24+e}")
    for e in range(0, 8, 2):
        rnd2(a, 8+e, 9+e, 5)
        a(f"v_mul_f32 v{8+e}, v{8+e}, v{44+e}"); a(f"v_mul_f32 v{9+e}, v{9+e}, v{45+e}")
        rnd2(a, 8+e, 9+e, 5)
        unpack(a, 5, 6, 40+e//2)
        a(f"v_add_f32 v{8+e}, v{8+e}, v5"); a(f"v_add_f32 v{9+e}, v{9+e}, v6")
        a(f"v_cvt_pk_bf16_f32 v{52+e//2}, v{8+e}, v{9+e}")
    a("buffer_store_dwordx4 v[52:55], v3, s[12:15], 0 offen")
    if STAMP:
        a.wait_all(); stamp_m(a, 2); stamp_store(a, 3, 6)
    a.label("K6_END")
    a("s_endpgm")
    return a.text(), dict(vgpr=56, sgpr=40, accum=56), "grid=(576,1,1) block=(256,1,1) lds=0"

HEADER = open("adaLN_cond__ssm_conv_s4__glu_gated_bilinear__prompt.s.ref").read().split("; Override launch")[0]

def build(kernels, path):
    out = HEADER
    bodies = []
    for name, fn in kernels:
        text, res, launch = fn()
        out += f"; @launch kernel={name} {launch}\n"
        bodies.append((name, text, res))
    out += '.amdgcn_target "amdgcn-amd-amdhsa--gfx950"\n.text\n'
    seen = set()
    for name, text, res in bodies:
        if name in seen: continue
        seen.add(name)
        out += kernel_header(name) + text
    out += '.section .rodata,"a"\n'
    seen = set()
    for name, text, res in bodies:
        if name in seen: continue
        seen.add(name)
        out += kernel_desc(name, res["vgpr"], 102 if STAMP else res["sgpr"], res["accum"])
    open(path, "w").write(out)

if __name__ == "__main__":
    if len(sys.argv) > 2 and sys.argv[2] == "stamp": STAMP = True
    if len(sys.argv) > 3: EXP = sys.argv[3]
    if EXP == "g32": G16 = False
    path = sys.argv[1] if len(sys.argv) > 1 else "adaLN_cond__ssm_conv_s4__glu_gated_bilinear__prompt.s"
    if EXP in ("sep", "g32", "norot", "notr", "stages"):
        build([("prep_kernel", k1), ("conv_kernel", k2), ("ln2_kernel", k3), ("gemm1_kernel", k4b if G16 else k4), ("gemm2_kernel", k5), ("fin_kernel", k6)], path)
    else:
        if EXP == "old3": build([("prep_kernel", k1), ("conv_kernel", k2), ("gg_kernel", kgg)], path)
        else: build([("front_kernel", kf), ("gg_kernel", kgg)], path)
```

```python
import sys
from asmlib import *

import os
BASE = int(os.environ.get('WSBASE', '0'), 0)
OFF_NT   = BASE + 0x000000
OFF_XT   = BASE + 0x240000
OFF_KC   = BASE + 0x480000
OFF_X1T  = BASE + 0x6C0000
OFF_H2P  = BASE + 0x900000
OFF_X1R  = BASE + 0xB40000
OFF_MODP = BASE + 0xD80000
OFF_MODF = BASE + 0xD90000
OFF_FLG  = BASE + 0xDA0000
OFF_REP  = BASE + 0xDB0000
OFF_PF   = BASE + 0xDC0000
OFF_HM   = BASE + 0xE00000
OFF_PART = BASE + 0x2000000
WS_REC   = 0x10000000
LOG2E = 0x3fb8aa3b
INV2PI = 0x3e22f983
def f32(x):
    import struct
    return struct.unpack("<I", struct.pack("<f", x))[0]

OFF_STAMP = 0x6000000
STAMP = False
G16 = True
EXP = None
def stamp(a, i):
    if not STAMP: return
    if i == 0:
        a("v_lshrrev_b32 v1, 6, v0"); a("v_readfirstlane_b32 s99, v1")
    a(f"s_memtime s[{64+4*i}:{65+4*i}]")
    a(f"s_memrealtime s[{66+4*i}:{67+4*i}]")
    a("s_waitcnt lgkmcnt(0)"); a.lg = []
def stamp_n(a, i):
    if EXP != "stages": stamp(a, i)
def stamp_m(a, i):
    if EXP not in ("ln2st", "g2st", "g1st") or (EXP == "g1st" and i == 1): stamp(a, i)
def stamp_g(a, i):
    if EXP == "g2st":
        lg = list(a.lg); stamp(a, i)
def stamp_x(a, i):
    if EXP == "ln2st": stamp(a, i)
def stamp_store(a, n, kid, tidreg="v0"):
    if not STAMP: return
    a(f"s_lshl_b32 s100, {'s98' if (kid == 1 and EXP == 'old3') else 's2'}, 11")
    a(f"s_lshl_b32 s101, s99, 7")
    a(f"s_add_u32 s100, s100, s101")
    a(f"s_add_u32 s100, s100, {OFF_STAMP + kid*0x200000}")
    a("s_mov_b64 exec, 1")
    a("v_mov_b32 v1, 0")
    for i in range(n):
        for q in range(4):
            a(f"v_mov_b32 v{4+q}, s{64+4*i+q}")
        a(f"buffer_store_dwordx4 v[4:7], v1, s[8:11], s100 offen offset:{16*i}")
        a("s_waitcnt vmcnt(0)")

def srd(a, d, lo, nrec):
    a(f"s_mov_b32 s{d}, s{lo}")
    a(f"s_and_b32 s{d+1}, s{lo+1}, 0xffff")
    a(f"s_mov_b32 s{d+2}, {nrec:#x}")
    a(f"s_mov_b32 s{d+3}, 0x00020000")

def unpack(a, dlo, dhi, src):
    a(f"v_lshlrev_b32 v{dlo}, 16, v{src}")
    a(f"v_and_b32 v{dhi}, 0xffff0000, v{src}")

def rnd1(a, r):
    a(f"v_cvt_pk_bf16_f32 v{r}, v{r}, v{r}")
    a(f"v_and_b32 v{r}, 0xffff0000, v{r}")

def rnd2(a, r0, r1, tmp):
    a(f"v_cvt_pk_bf16_f32 v{tmp}, v{r0}, v{r1}")
    unpack(a, r0, r1, tmp)

def row16_sum(a, r):
    for s in (8, 4, 2, 1):
        a(f"v_add_f32_dpp v{r}, v{r}, v{r} row_ror:{s} row_mask:0xf bank_mask:0xf")

N_LN1, N_MOD, N_KG, N_WARM = 128, 162, 576, 108
def k1():
    a = Asm()
    stamp(a, 0)
    a("s_load_dwordx2 s[6:7], s[0:1], 136")
    if STAMP: a("s_mov_b32 s98, s2")
    a(f"s_cmp_lt_u32 s2, {N_KG}")
    a("s_cbranch_scc1 K1_KGEN")
    a(f"s_cmp_ge_u32 s2, {N_LN1+N_MOD+N_KG}")
    a("s_cbranch_scc1 K1_WARM")
    a(f"s_sub_u32 s2, s2, {N_KG}")
    a(f"s_cmp_ge_u32 s2, {N_LN1}")
    a("s_cbranch_scc1 K1_MOD")
    PITCH = 1216; LN_N = 0; LN_X = 16 * PITCH
    a("s_load_dwordx2 s[4:5], s[0:1], 0")
    a("v_lshrrev_b32 v1, 4, v0")
    a("v_and_b32 v2, 15, v0")
    a("v_mul_u32_u24 v3, 1152, v1")
    a("v_lshl_add_u32 v3, v2, 3, v3")
    a("s_mul_i32 s3, s2, 18432")
    a.wait_all()
    srd(a, 12, 4, 2048*1152)
    srd(a, 8, 6, WS_REC)
    X = 10
    for k in range(9):
        a(f"buffer_load_dwordx2 v[{X+2*k}:{X+2*k+1}], v3, s[12:15], s3 offen offset:{128*k}", tag=("x", k))
    a(f"v_mul_u32_u24 v4, {PITCH}, v1")
    a("v_lshl_add_u32 v4, v2, 3, v4")
    F = 28
    for k in range(9):
        a.wait_vm(("x", k))
        for h in range(2):
            unpack(a, F+4*k+2*h, F+4*k+2*h+1, X+2*k+h)
        a(f"ds_write_b64 v4, v[{X+2*k}:{X+2*k+1}] offset:{LN_X+128*k}")
    stamp(a, 1)
    a(f"v_add_f32 v5, v{F}, v{F+1}")
    a(f"v_add_f32 v6, v{F+2}, v{F+3}")
    for i in range(4, 36, 2):
        a(f"v_add_f32 v5, v5, v{F+i}")
        a(f"v_add_f32 v6, v6, v{F+i+1}")
    a("v_add_f32 v5, v5, v6")
    row16_sum(a, 5)
    a(f"v_mul_f32 v5, {f32(1.0/576):#x}, v5")
    a("v_mov_b32 v6, 0"); a("v_mov_b32 v7, 0")
    for i in range(0, 36, 2):
        a(f"v_sub_f32 v8, v{F+i}, v5"); a(f"v_sub_f32 v9, v{F+i+1}, v5")
        a("v_fmac_f32 v6, v8, v8"); a("v_fmac_f32 v7, v9, v9")
    a("v_add_f32 v6, v6, v7")
    row16_sum(a, 6)
    a(f"v_mul_f32 v6, {f32(1.0/576):#x}, v6")
    rnd1(a, 6)
    a(f"v_add_f32 v6, {f32(1e-5):#x}, v6")
    rnd1(a, 6)
    a("v_sqrt_f32 v6, v6")
    rnd1(a, 6)
    a("v_rcp_f32 v7, v6")
    rnd1(a, 5)
    for k in range(9):
        for h in range(2):
            r0 = F+4*k+2*h; r1 = r0+1
            a(f"v_sub_f32 v{r0}, v{r0}, v5"); a(f"v_sub_f32 v{r1}, v{r1}, v5")
            rnd2(a, r0, r1, 8)
            a(f"v_mul_f32 v8, v{r0}, v7"); a(f"v_mul_f32 v9, v{r1}, v7")
            a(f"v_fma_f32 v{r0}, -v8, v6, v{r0}"); a(f"v_fma_f32 v{r1}, -v9, v6, v{r1}")
            a(f"v_fmac_f32 v8, v{r0}, v7"); a(f"v_fmac_f32 v9, v{r1}, v7")
            a(f"v_cvt_pk_bf16_f32 v{X+2*k+h}, v8, v9")
        a(f"ds_write_b64 v4, v[{X+2*k}:{X+2*k+1}] offset:{LN_N+128*k}")
    a("v_and_b32 v1, 63, v0")
    a("v_lshrrev_b32 v2, 6, v0")
    a("v_readfirstlane_b32 s16, v2")
    a("v_lshrrev_b32 v3, 4, v1")
    a("v_and_b32 v5, 1, v3")
    a("v_lshrrev_b32 v6, 1, v3")
    a("v_bfe_u32 v7, v1, 2, 2")
    a("v_and_b32 v8, 3, v1")
    a("v_lshl_add_u32 v7, v6, 3, v7")
    a(f"v_mul_u32_u24 v7, {PITCH}, v7")
    a("v_lshl_add_u32 v7, v5, 5, v7")
    a("v_lshl_add_u32 v7, v8, 3, v7")
    a("s_lshr_b32 s17, s16, 1")
    a("s_and_b32 s18, s16, 1")
    a(f"s_mul_i32 s19, s17, {LN_X}")
    a("s_mul_i32 s20, s18, 576")
    a("s_add_u32 s19, s19, s20")
    a("v_add_u32 v7, s19, v7")
    a("v_and_b32 v9, 15, v1")
    a("v_lshl_add_u32 v9, v5, 4, v9")
    a("v_lshlrev_b32 v9, 5, v9")
    a("v_lshl_add_u32 v9, v6, 4, v9")
    a(f"s_mul_i32 s21, s17, {OFF_XT - OFF_NT}")
    a("s_add_u32 s21, s21, s3")
    a("s_mul_i32 s22, s18, 9216")
    a("s_add_u32 s21, s21, s22")
    if OFF_NT: a(f"s_add_u32 s21, s21, {OFF_NT}")
    a("s_add_u32 s22, s21, 4096")
    a("s_add_u32 s23, s21, 8192")
    a.wait_all(vm=False)
    a("s_barrier")
    stamp(a, 2)
    for i in range(9):
        a(f"ds_read_b64_tr_b16 v[{F+4*i}:{F+4*i+1}], v7 offset:{64*i}", tag=("t", i))
        a(f"ds_read_b64_tr_b16 v[{F+4*i+2}:{F+4*i+3}], v7 offset:{64*i+4*PITCH}", tag=("t", i))
    for i in range(9):
        a.wait_lg(("t", i))
        a(f"buffer_store_dwordx4 v[{F+4*i}:{F+4*i+3}], v9, s[8:11], s{21+i//4} offen offset:{1024*(i%4)}")
    if STAMP:
        a.wait_all(); stamp(a, 3); stamp_store(a, 4, 1)
    a("s_endpgm")
    a.label("K1_MOD"); a.hist = []; a.vm = []; a.lg = []
    a("s_load_dwordx2 s[4:5], s[0:1], 112")
    a("s_load_dwordx2 s[16:17], s[0:1], 104")
    a(f"s_sub_u32 s3, s2, {N_LN1}")
    a("s_mov_b32 s20, 0")
    a("s_cmp_ge_u32 s3, 54"); a("s_cselect_b32 s20, 1, s20")
    a("s_cmp_ge_u32 s3, 108"); a("s_cselect_b32 s20, 2, s20")
    a("s_mul_i32 s21, s20, 54"); a("s_sub_u32 s21, s3, s21")
    a("v_lshrrev_b32 v1, 3, v0")
    a("v_and_b32 v2, 7, v0")
    a("v_mul_u32_u24 v3, 6912, v1")
    a("v_lshl_add_u32 v3, v2, 4, v3")
    a("v_lshlrev_b32 v4, 1, v1")
    a(f"s_mul_i32 s22, s20, {192*6912}")
    a("s_lshl_b32 s23, s21, 7")
    a("s_add_u32 s22, s22, s23")
    a("s_mul_i32 s23, s20, 384")
    a.wait_all()
    srd(a, 12, 4, 576*6912)
    srd(a, 24, 16, 1152)
    srd(a, 8, 6, WS_REC)
    for i in range(6):
        a(f"buffer_load_ushort v{10+i}, v4, s[24:27], s23 offen offset:{64*i}", tag="c")
    for i in range(6):
        a(f"buffer_load_dwordx4 v[{16+4*i}:{19+4*i}], v3, s[12:15], s22 offen", tag=("w", i))
        if i < 5: a(f"s_add_u32 s22, s22, {32*6912}")
    for j in range(8): a(f"v_mov_b32 v{40+j}, 0")
    a.wait_vm("c")
    for i in range(6):
        r = 10+i
        a(f"v_lshlrev_b32 v{r}, 16, v{r}")
        a(f"v_mul_f32 v5, {(LOG2E|0x80000000):#x}, v{r}")
        a("v_exp_f32 v5, v5")
        a("v_add_f32 v5, 1.0, v5")
        a("v_rcp_f32 v5, v5")
        a(f"v_mul_f32 v{r}, v{r}, v5")
        rnd1(a, r)
    for i in range(6):
        a.wait_vm(("w", i))
        for q in range(4):
            unpack(a, 5, 6, 16+4*i+q)
            a(f"v_fmac_f32 v{40+2*q}, v{10+i}, v5")
            a(f"v_fmac_f32 v{41+2*q}, v{10+i}, v6")
    stamp(a, 1)
    a("v_lshlrev_b32 v5, 8, v1")
    a("v_lshl_add_u32 v5, v2, 5, v5")
    a("ds_write_b128 v5, v[40:43]")
    a("ds_write_b128 v5, v[44:47] offset:16")
    a("v_lshlrev_b32 v6, 2, v0")
    a("v_lshrrev_b32 v7, 6, v0")
    a("v_readfirstlane_b32 s16, v7")
    a.wait_all(vm=False)
    a("s_barrier")
    stamp(a, 2)
    a("s_cmp_lg_u32 s16, 0")
    a("s_cbranch_scc1 K1_END")
    for i in range(32):
        a(f"ds_read_b32 v{10+i}, v6 offset:{256*i}", tag=("r", i))
    a.wait_all(vm=False)
    for st in (16, 8, 4, 2, 1):
        for i in range(st):
            a(f"v_add_f32 v{10+i}, v{10+i}, v{10+i+st}")
    a(f"s_mul_i32 s22, s20, {3456*4}")
    a("s_lshl_b32 s23, s21, 8")
    a("s_add_u32 s22, s22, s23")
    a(f"s_add_u32 s22, s22, {OFF_MODP}")
    a("buffer_store_dword v10, v6, s[8:11], s22 offen")
    if STAMP:
        a.wait_all(); stamp(a, 3); stamp_store(a, 4, 1)
    a("s_endpgm")
    a.label("K1_KGEN"); a.hist = []; a.vm = []; a.lg = []
    a("s_load_dwordx8 s[16:23], s[0:1], 8")
    a("s_load_dwordx4 s[24:27], s[0:1], 40")
    a("s_load_dwordx2 s[28:29], s[0:1], 56")
    a("s_mov_b32 s3, s2")
    a("v_and_b32 v1, 63, v0")
    a("v_lshrrev_b32 v2, 6, v0")
    a("v_lshrrev_b32 v3, 4, v1")
    a("v_and_b32 v4, 15, v0")
    a("v_and_b32 v5, 31, v0")
    a("v_lshl_add_u32 v5, v2, 5, v5")
    a("v_lshlrev_b32 v6, 4, v5")
    a("v_lshlrev_b32 v5, 1, v5")
    a("s_lshl_b32 s4, s3, 8")
    a("v_add_u32 v5, s4, v5")
    a("s_lshl_b32 s5, s3, 1")
    a("v_mov_b32 v15, s5")
    a.wait_all()
    a("global_load_ushort v7, v15, s[28:29]", tag="p")
    for q in range(6):
        a(f"global_load_ushort v{28+q}, v5, s[{16+2*q}:{17+2*q}]", tag="p")
    srd(a, 8, 6, WS_REC)
    a("v_and_b32 v12, 7, v4")
    a("v_lshrrev_b32 v13, 3, v4")
    a("v_lshl_add_u32 v8, v13, 7, v12")
    a("v_lshrrev_b32 v12, 2, v4"); a("v_lshlrev_b32 v12, 7, v12")
    a("v_and_b32 v13, 3, v4"); a("v_lshl_add_u32 v12, v13, 1, v12")
    a("v_add_u32 v12, 256, v12")
    a("v_subrev_u32 v13, 8, v4"); a("v_lshrrev_b32 v13, 1, v13"); a("v_lshlrev_b32 v13, 7, v13")
    a("v_and_b32 v14, 1, v4"); a("v_lshl_add_u32 v13, v14, 2, v13")
    a("v_add_u32 v13, 512, v13")
    a("v_cmp_gt_u32 vcc, 8, v4")
    a("v_cndmask_b32 v9, v13, v12, vcc")
    a("v_lshlrev_b32 v12, 7, v4"); a("v_add_u32 v12, 1024, v12")
    a("v_mov_b32 v13, 2048")
    a("v_cndmask_b32 v10, v13, v12, vcc")
    a("v_lshlrev_b32 v11, 3, v4")
    HT = 12288; T16 = 12544; PT = 16896
    a("v_lshlrev_b32 v12, 2, v4")
    for T in range(3):
        a(f"ds_write_b32 v12, v{8+T} offset:{HT+64*T}")
    for T in range(4):
        a(f"v_cvt_f32_u32 v{8+T}, v{8+T}")
    a("v_lshlrev_b32 v12, 9, v2"); a("v_lshl_add_u32 v12, v3, 6, v12")
    a("s_mov_b32 s30, 0x07060302")
    a.wait_vm("p")
    stamp(a, 1)
    a("v_lshlrev_b32 v7, 16, v7")
    a(f"v_mul_f32 v7, {LOG2E:#x}, v7")
    a("v_exp_f32 v7, v7")
    rnd1(a, 7)
    for q in range(6): a(f"v_lshlrev_b32 v{28+q}, 16, v{28+q}")
    for q in range(4): a(f"v_mul_f32 v{28+q}, v7, v{28+q}")
    a(f"v_mul_f32 v36, {LOG2E:#x}, v28")
    a(f"v_mul_f32 v37, {INV2PI:#x}, v29")
    a("v_mul_f32 v38, v32, v30"); a("v_mul_f32 v39, v32, v31")
    a("v_fma_f32 v38, -v33, v31, v38")
    a("v_fmac_f32 v39, v33, v30")
    a(f"ds_write_b128 v6, v[36:39] offset:{PT}")
    P = 64
    for st in range(8):
        a(f"ds_read_b128 v[{P+4*st}:{P+4*st+3}], v12 offset:{PT+256*(st >> 2)+16*(st & 3)}", tag=("pp", st))
    FR = 96
    def fr(kp, T, lo): return FR + 8*T + 4*lo
    def valu(st):
        kp, e2 = divmod(st, 4)
        pr = P + 4*st; E = 36; Er = 48
        L = []
        for T in (3, 0, 1, 2):
            L.append(f"v_mul_f32 v{E+3*T}, v{pr}, v{8+T}")
            L.append(f"v_mul_f32 v{E+3*T+1}, v{pr+1}, v{8+T}")
        for T in (3, 0, 1, 2):
            L.append(f"v_exp_f32 v{E+3*T}, v{E+3*T}")
            L.append(f"v_fract_f32 v{E+3*T+1}, v{E+3*T+1}")
        for T in (3, 0, 1, 2):
            L.append(f"v_cos_f32 v{E+3*T+2}, v{E+3*T+1}")
            L.append(f"v_sin_f32 v{E+3*T+1}, v{E+3*T+1}")
        for T in (3, 0, 1, 2):
            L.append(f"v_mul_f32 v{E+3*T+1}, v{E+3*T}, v{E+3*T+1}")
            L.append(f"v_mul_f32 v{E+3*T}, v{E+3*T}, v{E+3*T+2}")
        L.append(f"v_mul_f32 v{Er}, v{pr+2}, v{E+9}")
        L.append(f"v_mul_f32 v{Er+1}, v{pr+2}, v{E+10}")
        L.append(f"v_fma_f32 v{Er}, -v{pr+3}, v{E+10}, v{Er}")
        L.append(f"v_fma_f32 v{Er+1}, -v{pr+3}, v{E+9}, -v{Er+1}")
        for T in range(4):
            r = Er if T == 3 else E+3*T
            L.append(f"v_perm_b32 v{fr(kp,T,0)+e2}, v{r+1}, v{r}, s30")
            L.append(f"v_and_b32 v50, 0xffff0000, v{r}")
            L.append(f"v_and_b32 v51, 0xffff0000, v{r+1}")
            L.append(f"v_sub_f32 v50, v{r}, v50")
            L.append(f"v_sub_f32 v51, v{r+1}, v51")
            L.append(f"v_perm_b32 v{fr(kp,T,1)+e2}, v51, v50, s30")
        return L
    def mf(kp):
        L = []
        for pi, (al, bl) in enumerate(((1, 0), (0, 1), (0, 0))):
            for T in range(3):
                c = f"v[{16+4*T}:{19+4*T}]"
                A = fr(kp, T, al); B = fr(kp, 3, bl)
                L.append(f"v_mfma_f32_16x16x32_bf16 {c}, v[{A}:{A+3}], v[{B}:{B+3}], {c if (kp or pi) else 0}")
        return L
    for st in range(8):
        a.wait_lg(("pp", st))
        Mf = mf(0) if st == 4 else []
        for idx, ins in enumerate(valu(st)):
            if Mf and idx % 3 == 2: a(Mf.pop(0))
            a(ins)
    for ins in mf(1): a(ins)
    stamp(a, 2)
    a("v_mul_u32_u24 v12, 3072, v2")
    a("v_lshl_add_u32 v12, v1, 4, v12")
    for T in range(3):
        a(f"ds_write_b128 v12, v[{16+4*T}:{19+4*T}] offset:{1024*T}")
    a("v_readfirstlane_b32 s16, v2")
    a("v_lshlrev_b32 v13, 4, v0")
    a("v_lshlrev_b32 v14, 6, v2")
    a("v_lshl_add_u32 v14, v3, 4, v14")
    a.wait_all(vm=False)
    a("s_barrier")
    a("s_cmp_eq_u32 s16, 3")
    a("s_cbranch_scc1 K1_KG_C")
    for w in range(4):
        a(f"ds_read_b128 v[{16+4*w}:{19+4*w}], v13 offset:{3072*w}")
    a(f"ds_read_b128 v[32:35], v14 offset:{HT}")
    a.wait_all(vm=False)
    for r in range(4):
        a(f"v_add_f32 v{16+r}, v{16+r}, v{20+r}")
        a(f"v_add_f32 v{24+r}, v{24+r}, v{28+r}")
        a(f"v_lshl_add_u32 v{32+r}, v4, 3, v{32+r}")
    for r in range(4):
        a(f"v_add_f32 v{16+r}, v{16+r}, v{24+r}")
        a(f"v_lshlrev_b32 v{32+r}, 1, v{32+r}")
    for r in range(4):
        a(f"v_cvt_pk_bf16_f32 v{16+r}, v{16+r}, v{16+r}")
    for r in range(4):
        a(f"ds_write_b16 v{32+r}, v{16+r} offset:{T16}")
    a.label("K1_KG_C"); a.fence(4)
    a("v_lshlrev_b32 v12, 3, v0")
    for e in range(8):
        a(f"v_add_u32 v{16+e}, {e}, v12")
        a(f"v_cvt_f32_u32 v{16+e}, v{16+e}")
    for e in range(0, 8, 2):
        rnd2(a, 16+e, 17+e, 13)
    for e in range(8):
        a(f"v_cvt_u32_f32 v{16+e}, v{16+e}")
        a(f"v_lshlrev_b32 v{16+e}, 1, v{16+e}")
    a("v_lshlrev_b32 v12, 4, v0")
    a("s_lshl_b32 s4, s3, 12")
    a(f"s_add_u32 s4, s4, {OFF_KC}")
    a.wait_all(vm=False)
    a("s_barrier")
    for e in range(8):
        a(f"ds_read_u16 v{24+e}, v{16+e} offset:{T16}")
    a.wait_all(vm=False)
    for e in range(4):
        a(f"v_lshl_or_b32 v{32+e}, v{25+2*e}, 16, v{24+2*e}")
    a("buffer_store_dwordx4 v[32:35], v12, s[8:11], s4 offen")
    if STAMP:
        a.wait_all(); stamp(a, 3); stamp_store(a, 4, 1)
    a.label("K1_END")
    a("s_endpgm")
    a.label("K1_WARM"); a.hist = []; a.vm = []; a.lg = []
    a(f"s_cmp_ge_u32 s2, {N_LN1+N_MOD+N_KG+N_WARM}")
    a("s_cbranch_scc1 K1_END")
    a("s_load_dwordx4 s[12:15], s[0:1], 80")
    a("s_load_dwordx2 s[16:17], s[0:1], 96")
    a(f"s_sub_u32 s3, s2, {N_LN1+N_MOD+N_KG}")
    a("v_lshlrev_b32 v1, 4, v0")
    a.wait_all()
    a("s_cmp_ge_u32 s3, 36"); a("s_cselect_b32 s12, s14, s12"); a("s_cselect_b32 s13, s15, s13")
    a("s_cselect_b32 s18, 36, 0")
    a("s_cmp_ge_u32 s3, 72"); a("s_cselect_b32 s12, s16, s12"); a("s_cselect_b32 s13, s17, s13")
    a("s_cselect_b32 s18, 72, s18")
    a("s_sub_u32 s3, s3, s18"); a("s_mul_i32 s3, s3, 147456")
    srd(a, 8, 12, 576*9216)
    for i in range(36):
        a(f"buffer_load_dwordx4 v[{4+4*(i % 18)}:{7+4*(i % 18)}], v1, s[8:11], s3 offen")
        a("s_add_u32 s3, s3, 4096")
        if i % 6 == 5: a("s_waitcnt vmcnt(2)")
    a("s_endpgm")
    return a.text(), dict(vgpr=128, sgpr=100 if STAMP else 40, accum=128), f"grid=({N_LN1+N_MOD+N_KG+N_WARM},1,1) block=(256,1,1) lds=38912"

def k2():
    a = Asm()
    CS = 4160; KB = 4 * CS; HB0 = 4 * KB; HS = 4640
    a("s_load_dwordx2 s[6:7], s[0:1], 136")
    a("s_load_dwordx2 s[4:5], s[0:1], 64")
    a("s_cmp_gt_u32 s2, 144")
    a("s_cbranch_scc1 K2_END")
    a("s_cmp_eq_u32 s2, 144")
    a("s_cbranch_scc1 K2_MODF")
    stamp(a, 0)
    a("v_and_b32 v1, 63, v0")
    a("v_lshrrev_b32 v2, 6, v0")
    a("v_readfirstlane_b32 s16, v2")
    a("v_and_b32 v3, 7, v1")
    a("v_lshrrev_b32 v4, 3, v1")
    a("v_lshrrev_b32 v5, 1, v3")
    a("s_lshl_b32 s17, s2, 2")
    a("s_add_u32 s18, s17, s16")
    a.wait_all()
    srd(a, 8, 6, WS_REC)
    a("v_mul_u32_u24 v6, 18432, v4")
    a("v_lshl_add_u32 v6, v3, 4, v6")
    a(f"s_mul_i32 s19, s16, {32*18432}")
    a("s_lshl_b32 s20, s17, 5")
    a("s_add_u32 s19, s19, s20")
    if OFF_NT: a(f"s_add_u32 s19, s19, {OFF_NT}")
    NR = 64
    for i in range(4):
        a(f"buffer_load_dwordx4 v[{NR+4*i}:{NR+4*i+3}], v6, s[8:11], s19 offen", tag=("n", i))
        if i < 3: a(f"s_add_u32 s19, s19, {8*18432}")
    a("v_add_u32 v7, s17, v5"); a("v_lshlrev_b32 v7, 2, v7")
    a("s_lshl_b32 s20, s18, 2"); a("v_mov_b32 v8, s20")
    a(f"s_mov_b32 s21, {OFF_MODP}")
    for ks in range(3):
        a(f"buffer_load_dword v{80+ks}, v7, s[8:11], s21 offen", tag="m")
        a(f"buffer_load_dword v{83+ks}, v7, s[8:11], s21 offen offset:2304", tag="m")
        a(f"s_add_u32 s22, s21, 4608")
        a(f"buffer_load_dword v{86+ks}, v8, s[8:11], s22 offen", tag="m")
        if ks < 2: a(f"s_add_u32 s21, s21, {3456*4}")
    a("s_lshl_b32 s20, s18, 1"); a("v_mov_b32 v9, s20")
    a("global_load_ushort v89, v9, s[4:5]", tag="m")
    a("v_lshlrev_b32 v10, 4, v1")
    a("v_subrev_u32 v11, 4, v10")
    a("s_lshl_b32 s21, s18, 12")
    a(f"s_add_u32 s21, s21, {OFF_KC}")
    a("s_sub_u32 s22, s21, 4")
    KR = 96
    for i in range(4):
        a(f"buffer_load_dwordx4 v[{KR+4*i}:{KR+4*i+3}], v10, s[8:11], s21 offen offset:{1024*i}", tag=("k", i))
        a(f"buffer_load_dword v{KR+16+i}, v10, s[8:11], s22 offen offset:{1024*i}", tag=("k", i))
    a("v_and_b32 v12, 15, v1")
    a("v_lshrrev_b32 v13, 4, v1")
    a("v_mul_u32_u24 v14, 18432, v12")
    a("v_lshl_add_u32 v14, v13, 3, v14")
    a("s_lshl_b32 s23, s18, 5")
    a(f"s_add_u32 s24, s23, {OFF_XT}")
    XR = 200
    for jt in range(8):
        a(f"buffer_load_dwordx2 v[{XR+2*jt}:{XR+2*jt+1}], v14, s[8:11], s24 offen", tag="x")
        if jt < 7: a(f"s_add_u32 s24, s24, {16*18432}")
    a("v_mov_b32 v16, 0"); a("v_mov_b32 v17, 0")
    a(f"s_mul_i32 s25, s16, {HS}"); a(f"s_add_u32 s25, s25, {HB0}")
    a(f"s_mul_i32 s26, s16, {KB}")
    a("v_lshlrev_b32 v15, 3, v1"); a("v_add_u32 v15, s25, v15")
    a("ds_write_b64 v15, v[16:17]")
    a(f"v_mul_u32_u24 v15, {CS}, v13"); a("v_lshl_add_u32 v15, v12, 2, v15"); a("v_add_u32 v15, s26, v15")
    a("ds_write_b32 v15, v16")
    a.wait_vm("m")
    stamp(a, 1)
    for b in (80, 83, 86):
        a(f"v_add_f32 v{b}, v{b}, v{b+1}"); a(f"v_add_f32 v{b}, v{b}, v{b+2}")
        rnd1(a, b)
    a("v_add_f32 v83, 1.0, v83"); rnd1(a, 83)
    a("v_lshlrev_b32 v57, 16, v89")
    a("v_mov_b32 v56, v86")
    a(f"v_mul_u32_u24 v15, {HS}, v5")
    a("v_and_b32 v18, 1, v3")
    a("v_lshl_add_u32 v15, v18, 4, v15")
    a("v_lshl_add_u32 v15, v4, 5, v15")
    a("s_lshl_b32 s27, s16, 10"); a(f"s_add_u32 s27, s27, {HB0+512}")
    a("v_add_u32 v15, s27, v15")
    for i in range(4):
        for q in range(4):
            r = NR+4*i+q
            unpack(a, 18, 19, r)
            a("v_mul_f32 v18, v18, v83"); a("v_mul_f32 v19, v19, v83")
            rnd2(a, 18, 19, 20)
            a("v_add_f32 v18, v18, v80"); a("v_add_f32 v19, v19, v80")
            a(f"v_cvt_pk_bf16_f32 v{r}, v18, v19")
        a(f"ds_write_b128 v15, v[{NR+4*i}:{NR+4*i+3}] offset:{256*i}")
    a("v_add_u32 v15, s26, v10")
    a("v_add_u32 v21, 4, v15")
    a("v_cmp_eq_u32 vcc, 0, v1")
    for i in range(4):
        a.wait_vm(("k", i))
        d = KR+4*i; pv = KR+16+i
        if i == 0: a(f"v_cndmask_b32 v{pv}, v{pv}, v16, vcc")
        a(f"v_alignbit_b32 v24, v{d}, v{pv}, 16")
        for q in range(1, 4): a(f"v_alignbit_b32 v{24+q}, v{d+q}, v{d+q-1}, 16")
        o = 32 + 1024*i
        a(f"ds_write_b128 v15, v[{d}:{d+3}] offset:{o}")
        a(f"ds_write_b128 v15, v[24:27] offset:{o+CS}")
        a(f"v_add_u32 v22, {o+2*CS}, v21")
        a(f"v_add_u32 v23, {o+3*CS}, v21")
        a(f"ds_write2_b32 v22, v{d}, v{d+1} offset0:0 offset1:1")
        a(f"ds_write2_b32 v22, v{d+2}, v{d+3} offset0:2 offset1:3")
        a(f"ds_write2_b32 v23, v24, v25 offset0:0 offset1:1")
        a(f"ds_write2_b32 v23, v26, v27 offset0:2 offset1:3")
    a("v_lshlrev_b32 v18, 5, v12"); a("v_lshl_add_u32 v18, v13, 4, v18")
    a("s_add_u32 s27, s25, 32"); a("v_add_u32 v18, s27, v18")
    a("v_bfe_u32 v19, v1, 2, 2"); a(f"v_mul_u32_u24 v19, {CS}, v19")
    a("v_and_b32 v20, 3, v1"); a("v_lshl_add_u32 v19, v20, 3, v19")
    a("v_lshlrev_b32 v20, 4, v13"); a("v_sub_u32 v19, v19, v20")
    a("s_add_u32 s27, s26, 56"); a("v_add_u32 v19, s27, v19")
    a("v_lshlrev_b32 v20, 5, v12"); a("v_lshl_add_u32 v20, v13, 3, v20")
    a("s_add_u32 s27, s25, 512"); a("v_add_u32 v20, s27, v20")
    ACC = 24
    a.wait_all(vm=False)
    a("s_barrier")
    stamp(a, 2)
    for r in range(32): a(f"v_mov_b32 v{ACC+r}, 0")
    BUF = [(64, 96), (128, 160)]
    def loads(r):
        Bb, Ab = BUF[r & 1]
        L = []
        for u in range(8):
            q = 8*u - r
            L.append(f"ds_read_b128 v[{Bb+4*u}:{Bb+4*u+3}], v18 offset:{64*(q+7)}")
        for aa in range(8):
            m = r + 8*aa
            L.append(f"ds_read_b64_tr_b16 v[{Ab+4*aa}:{Ab+4*aa+1}], v19 offset:{64*m+8}")
            L.append(f"ds_read_b64_tr_b16 v[{Ab+4*aa+2}:{Ab+4*aa+3}], v19 offset:{64*m}")
        return L
    for s in loads(0): a(s)
    for r in range(8):
        a.wait_all(vm=False)
        Bb, Ab = BUF[r & 1]
        nxt = loads(r+1) if r < 7 else [f"ds_read_b64 v[{216+2*jt}:{217+2*jt}], v20 offset:{512*jt}" for jt in range(8)]
        for aa in range(8):
            for jt in range(aa, 8):
                u = jt - aa
                a(f"v_mfma_f32_16x16x32_bf16 v[{ACC+4*jt}:{ACC+4*jt+3}], v[{Ab+4*aa}:{Ab+4*aa+3}], v[{Bb+4*u}:{Bb+4*u+3}], v[{ACC+4*jt}:{ACC+4*jt+3}]")
                if nxt: a(nxt.pop(0))
    a.wait_all()
    stamp(a, 3)
    a(f"s_add_u32 s24, s23, {OFF_X1T}")
    for jt in range(8):
        for h in range(2):
            y0 = ACC+4*jt+2*h; y1 = y0+1
            rnd2(a, y0, y1, 64)
            unpack(a, 65, 66, 216+2*jt+h)
            a("v_mul_f32 v65, v65, v57"); a("v_mul_f32 v66, v66, v57")
            rnd2(a, 65, 66, 64)
            a(f"v_add_f32 v{y0}, v{y0}, v65"); a(f"v_add_f32 v{y1}, v{y1}, v66")
            rnd2(a, y0, y1, 64)
            a(f"v_mul_f32 v{y0}, v{y0}, v56"); a(f"v_mul_f32 v{y1}, v{y1}, v56")
            rnd2(a, y0, y1, 64)
            unpack(a, 65, 66, XR+2*jt+h)
            a(f"v_add_f32 v{y0}, v{y0}, v65"); a(f"v_add_f32 v{y1}, v{y1}, v66")
            a(f"v_cvt_pk_bf16_f32 v{XR+2*jt+h}, v{y0}, v{y1}")
        a(f"buffer_store_dwordx2 v[{XR+2*jt}:{XR+2*jt+1}], v14, s[8:11], s24 offen")
        if jt < 7: a(f"s_add_u32 s24, s24, {16*18432}")
    if STAMP:
        stamp(a, 4); a.wait_all(); stamp(a, 5); stamp_store(a, 6, 2)
    a("s_endpgm")
    a.label("K2_MODF"); a.hist = []; a.vm = []; a.lg = []
    a.wait_all()
    srd(a, 8, 6, WS_REC)
    a("v_lshlrev_b32 v1, 2, v0")
    a("v_lshlrev_b32 v2, 4, v0")
    for q in range(4): a(f"v_mov_b32 v{4+q}, 0")
    a(f"s_mov_b32 s20, {OFF_FLG}")
    a(f"s_mov_b32 s21, {OFF_FLG + 8192}")
    for q in range(4):
        a(f"buffer_store_dwordx4 v[4:7], v2, s[8:11], s{20 + q//2} offen" + (" offset:0" if q % 2 == 0 else ""))
        if q % 2 == 0: a("v_add_u32 v2, 4096, v2")
        else: a("v_subrev_u32 v2, 4096, v2")
    for i in range(7):
        for ks in range(3):
            a(f"s_mov_b32 s20, {OFF_MODP + ks*3456*4 + 1728*4 + 1024*i}")
            a(f"buffer_load_dword v{10+3*i+ks}, v1, s[8:11], s20 offen")
    a.wait_all()
    for i in range(7):
        b = 10+3*i
        a(f"v_add_f32 v{b}, v{b}, v{b+1}"); a(f"v_add_f32 v{b}, v{b}, v{b+2}")
        rnd1(a, b)
        a(f"v_add_f32 v{b+1}, 1.0, v{b}")
        rnd1(a, b+1)
        a(f"v_add_u32 v2, {256*i}, v0")
        a("v_subrev_u32 v3, 576, v2")
        a("v_cmp_gt_u32 vcc, 576, v3")
        a(f"v_cndmask_b32 v{b}, v{b}, v{b+1}, vcc")
        a(f"s_mov_b32 s20, {OFF_MODF + 1024*i}")
        if i == 6:
            a("v_cmp_gt_u32 vcc, 1728, v2")
            a("s_and_saveexec_b64 s[22:23], vcc")
            a("s_cbranch_execz K2_END")
        a(f"buffer_store_dword v{b}, v1, s[8:11], s20 offen")
    a.label("K2_END")
    a("s_endpgm")
    return a.text(), dict(vgpr=232, sgpr=40, accum=232), f"grid=(145,1,1) block=(256,1,1) lds={HB0+4*HS}"

def k3():
    a = Asm()
    RED = 18432
    a("s_load_dwordx2 s[6:7], s[0:1], 136")
    a("s_cmp_ge_u32 s2, 128")
    a("s_cbranch_scc1 K3_END")
    stamp(a, 0)
    a("v_and_b32 v1, 63, v0")
    a("v_lshrrev_b32 v2, 6, v0")
    a("v_readfirstlane_b32 s16, v2")
    a("v_lshlrev_b32 v3, 4, v1")
    a("v_and_b32 v4, 15, v1")
    a("v_lshrrev_b32 v5, 4, v1")
    a("s_mul_i32 s17, s16, 3072")
    a("s_mul_i32 s18, s2, 18432")
    a("s_add_u32 s18, s18, s17")
    a(f"s_add_u32 s18, s18, {OFF_X1T}")
    a.wait_all()
    srd(a, 8, 6, WS_REC)
    a("s_mov_b32 m0, s17")
    for i in range(3):
        a(f"buffer_load_dwordx4 v3, s[8:11], s18 offen offset:{1024*i} lds", tag="x")
    a("s_mul_i32 s19, s16, 384")
    a(f"s_add_u32 s19, s19, {OFF_MODF}")
    a("v_lshlrev_b32 v6, 5, v5")
    SB = 40; CB = 64
    for i in range(3):
        for h in range(2):
            a(f"buffer_load_dwordx4 v[{SB+8*i+4*h}:{SB+8*i+4*h+3}], v6, s[8:11], s19 offen offset:{128*i+16*h}", tag="m")
            a(f"buffer_load_dwordx4 v[{CB+8*i+4*h}:{CB+8*i+4*h+3}], v6, s[8:11], s19 offen offset:{2304+128*i+16*h}", tag="m")
    a("v_bfe_u32 v7, v1, 2, 2"); a("v_lshlrev_b32 v7, 5, v7")
    a("v_and_b32 v8, 3, v1"); a("v_lshl_add_u32 v7, v8, 3, v7")
    a("v_lshl_add_u32 v7, v5, 8, v7")
    a("v_add_u32 v7, s17, v7")
    a.wait_vm("x")
    stamp(a, 1)
    X = 10
    for i in range(3):
        a(f"ds_read_b64_tr_b16 v[{X+4*i}:{X+4*i+1}], v7 offset:{1024*i}", tag=("t", i))
        a(f"ds_read_b64_tr_b16 v[{X+4*i+2}:{X+4*i+3}], v7 offset:{1024*i+128}", tag=("t", i))
    a("v_mul_u32_u24 v8, 1152, v4"); a("v_lshl_add_u32 v8, v5, 4, v8")
    a("s_mul_i32 s20, s2, 18432"); a("s_mul_i32 s21, s16, 192"); a("s_add_u32 s20, s20, s21")
    a(f"s_add_u32 s20, s20, {OFF_X1R}")
    F = 88
    for i in range(3):
        a.wait_lg(("t", i))
        a(f"buffer_store_dwordx4 v[{X+4*i}:{X+4*i+3}], v8, s[8:11], s20 offen offset:{64*i}")
        for q in range(4): unpack(a, F+8*i+2*q, F+8*i+2*q+1, X+4*i+q)
    def xreduce(r, off):
        a(f"v_mov_b32 v24, v{r}")
        a(f"v_permlane32_swap_b32 v24, v{r}")
        a(f"v_add_f32 v{r}, v{r}, v24")
        a(f"v_mov_b32 v24, v{r}")
        a(f"v_permlane16_swap_b32 v24, v{r}")
        a(f"v_add_f32 v{r}, v{r}, v24")
        a(f"ds_write_b32 v22, v{r} offset:{off}")
        a.wait_all(vm=False)
        a("s_barrier")
        a(f"ds_read_b128 v[24:27], v23 offset:{off}")
        a(f"ds_read_b64 v[28:29], v23 offset:{off+16}")
        a.wait_all(vm=False)
        a("v_add_f32 v24, v24, v25"); a("v_add_f32 v26, v26, v27"); a("v_add_f32 v28, v28, v29")
        a("v_add_f32 v24, v24, v26"); a(f"v_add_f32 v{r}, v24, v28")
    a("v_lshlrev_b32 v23, 5, v4")
    a("v_lshl_add_u32 v22, v2, 2, v23")
    a(f"v_add_f32 v30, v{F}, v{F+1}"); a(f"v_add_f32 v31, v{F+2}, v{F+3}")
    for i in range(4, 24, 2):
        a(f"v_add_f32 v30, v30, v{F+i}"); a(f"v_add_f32 v31, v31, v{F+i+1}")
    a("v_add_f32 v30, v30, v31")
    xreduce(30, RED)
    a(f"v_mul_f32 v30, {f32(1.0/576):#x}, v30")
    a("v_mov_b32 v31, 0"); a("v_mov_b32 v32, 0")
    for i in range(0, 24, 2):
        a(f"v_sub_f32 v33, v{F+i}, v30"); a(f"v_sub_f32 v34, v{F+i+1}, v30")
        a("v_fmac_f32 v31, v33, v33"); a("v_fmac_f32 v32, v34, v34")
    a("v_add_f32 v31, v31, v32")
    xreduce(31, RED + 512)
    a(f"v_mul_f32 v31, {f32(1.0/576):#x}, v31")
    rnd1(a, 31)
    a(f"v_add_f32 v31, {f32(1e-5):#x}, v31")
    rnd1(a, 31)
    a("v_sqrt_f32 v31, v31")
    rnd1(a, 31)
    a("v_rcp_f32 v32, v31")
    rnd1(a, 30)
    if G16:
        a("v_lshlrev_b32 v9, 4, v1")
        a("s_mul_i32 s20, s2, 18432"); a("s_add_u32 s20, s20, s17")
    else:
        a("v_lshlrev_b32 v9, 9, v5"); a("v_lshl_add_u32 v9, v4, 4, v9")
        a("s_lshr_b32 s20, s2, 1"); a("s_mul_i32 s20, s20, 36864")
        a("s_and_b32 s21, s2, 1"); a("s_lshl_b32 s21, s21, 8"); a("s_add_u32 s20, s20, s21")
        a("s_mul_i32 s21, s16, 6144"); a("s_add_u32 s20, s20, s21")
    a(f"s_add_u32 s20, s20, {OFF_H2P}")
    a("s_add_u32 s21, s20, 4096")
    stamp(a, 2)
    a.wait_vm("m")
    for i in range(3):
        for q in range(4):
            r0 = F+8*i+2*q; r1 = r0+1
            a(f"v_sub_f32 v{r0}, v{r0}, v30"); a(f"v_sub_f32 v{r1}, v{r1}, v30")
            rnd2(a, r0, r1, 33)
            a(f"v_mul_f32 v33, v{r0}, v32"); a(f"v_mul_f32 v34, v{r1}, v32")
            a(f"v_fma_f32 v{r0}, -v33, v31, v{r0}"); a(f"v_fma_f32 v{r1}, -v34, v31, v{r1}")
            a(f"v_fmac_f32 v33, v{r0}, v32"); a(f"v_fmac_f32 v34, v{r1}, v32")
            rnd2(a, 33, 34, 35)
            a(f"v_mul_f32 v33, v33, v{CB+8*i+2*q}"); a(f"v_mul_f32 v34, v34, v{CB+8*i+2*q+1}")
            rnd2(a, 33, 34, 35)
            a(f"v_add_f32 v33, v33, v{SB+8*i+2*q}"); a(f"v_add_f32 v34, v34, v{SB+8*i+2*q+1}")
            a(f"v_cvt_pk_bf16_f32 v{112+4*i+q}, v33, v34")
        o = (1024 if G16 else 2048)*i
        a(f"buffer_store_dwordx4 v[{112+4*i}:{112+4*i+3}], v9, s[8:11], s{20 + o//4096} offen offset:{o%4096}")
    if STAMP:
        stamp(a, 3); a.wait_all(); stamp(a, 4); stamp_store(a, 5, 3)
    a.label("K3_END")
    a("s_endpgm")
    return a.text(), dict(vgpr=124, sgpr=40, accum=124), f"grid=(128,1,1) block=(384,1,1) lds={RED+1024}"

def dma_voffsets(a, base, pitch, swap23=False):
    t0, t1 = base+9, base+10
    for i in range(9):
        a(f"v_add_u32 v{t0}, {64*i}, v1")
        a(f"v_mul_u32_u24 v{t1}, 3641, v{t0}")
        a(f"v_lshrrev_b32 v{t1}, 16, v{t1}")
        a(f"v_mul_u32_u24 v{base+i}, 18, v{t1}")
        a(f"v_sub_u32 v{t0}, v{t0}, v{base+i}")
        if swap23:
            a(f"v_lshrrev_b32 v{base+i}, 1, v{t1}")
            a(f"v_xor_b32 v{base+i}, v{base+i}, v{t1}")
            a(f"v_and_b32 v{base+i}, 4, v{base+i}")
            a(f"v_mul_u32_u24 v{base+i}, 3, v{base+i}")
            a(f"v_xor_b32 v{t1}, v{t1}, v{base+i}")
        a(f"v_mul_u32_u24 v{base+i}, {pitch}, v{t1}")
        a(f"v_lshl_add_u32 v{base+i}, v{t0}, 4, v{base+i}")

def rot_soffsets(a, rho_s, sD, sT0, sT1, dbase, tb0, tb1, dstage, tmp):
    for j in range(9):
        a(f"s_add_u32 s{tmp}, s{rho_s}, {j}")
        a(f"s_sub_u32 s{tmp+1}, s{tmp}, 9")
        a(f"s_cmp_ge_u32 s{tmp}, 9")
        a(f"s_cselect_b32 s{tmp}, s{tmp+1}, s{tmp}")
        a(f"s_mul_i32 s{tmp+1}, s{tmp}, {dstage}")
        a(f"s_add_u32 s{sD+j}, s{dbase}, s{tmp+1}")
        a(f"s_lshl_b32 s{tmp+1}, s{tmp}, 12")
        a(f"s_add_u32 s{sT0+j}, s{tb0}, s{tmp+1}")
        a(f"s_add_u32 s{sT1+j}, s{tb1}, s{tmp+1}")

def kloop(a, dma, tok, trd, mfma, PF, pro_tok, slots, between=None):
    for i in range(9): dma(0, i)
    for ks in range(pro_tok):
        for b in range(2): tok(ks, b)
    if between: between()
    ops = []
    for st in range(1, 9):
        for i in range(9):
            avail = -1 if st <= 3 else 4*(st-3)+3
            ops.append((4*st-1-0.5, i, avail, dma, (st, i)))
    for ks in range(pro_tok, 36):
        for b in range(2):
            avail = -1 if ks < PF else ks-PF+1
            ops.append((ks, b, avail, tok, (ks, b)))
    ops.sort(key=lambda o: (o[0], o[1]))
    stamp(a, 3)
    a.wait_vm(("d", 0))
    a("s_barrier")
    stamp(a, 4)
    for aa in range(9): trd(0, aa)
    for ks in range(36):
        st, kk = divmod(ks, 4)
        if kk == 3 and st < 8:
            assert not any(o[3] is dma and o[4][0] == st+1 for o in ops), (ks,)
            a.wait_vm(("d", st+1))
            a("s_barrier")
        assert not any(o[3] is tok and o[4][0] == ks for o in ops), (ks,)
        a.wait_vm(("t", ks))
        for aa in range(9):
            a.wait_lg(("a", ks, aa))
            for b in range(2): mfma(ks, aa, b)
            if ks < 35: trd(ks+1, aa)
            if aa in slots:
                for o in ops:
                    if o[2] <= ks:
                        ops.remove(o); o[3](*o[4]); break
    assert not ops

def k4():
    a = Asm()
    SLOT = 37120; UPO = 18560; NSLOT = 4; PF = 8
    a("s_load_dwordx2 s[6:7], s[0:1], 136")
    a("s_load_dwordx4 s[12:15], s[0:1], 80")
    a("s_cmp_ge_u32 s2, 256")
    a("s_cbranch_scc1 K4_END")
    stamp(a, 0)
    M = 224
    a(f"v_and_b32 v{M}, 63, v0")
    a(f"v_lshrrev_b32 v{M+1}, 6, v0")
    a(f"v_readfirstlane_b32 s16, v{M+1}")
    a(f"v_mov_b32 v1, v{M}")
    a("s_and_b32 s17, s2, 7"); a("s_lshr_b32 s18, s2, 3")
    a("s_and_b32 s19, s18, 3"); a("s_lshl_b32 s17, s17, 2"); a("s_add_u32 s17, s17, s19")
    a("s_lshr_b32 s18, s18, 2")
    a("s_lshl_b32 s19, s19, 1"); a("s_add_u32 s19, s19, s18")
    a("s_sub_u32 s20, s19, 9"); a("s_cmp_ge_u32 s19, 9"); a("s_cselect_b32 s19, s20, s19")
    if EXP == "norot": a("s_mov_b32 s19, 0")
    DV = M+2
    dma_voffsets(a, DV, 9216)
    a("s_and_b32 s22, s16, 1"); a("s_lshr_b32 s23, s16, 1")
    a(f"s_mul_i32 s28, s22, {32*9216}"); a("s_mul_i32 s30, s17, 288"); a("s_add_u32 s28, s28, s30")
    a(f"s_mul_i32 s29, s23, {UPO}"); a("s_mul_i32 s30, s22, 9216"); a("s_add_u32 s29, s29, s30")
    VT = M+13
    a(f"v_lshlrev_b32 v{VT}, 4, v{M}")
    a("s_lshl_b32 s31, s18, 3"); a("s_lshl_b32 s30, s16, 1"); a("s_add_u32 s31, s31, s30")
    a("s_mul_i32 s31, s31, 36864"); a(f"s_add_u32 s31, s31, {OFF_H2P}")
    a("s_add_u32 s32, s31, 36864")
    SD, ST0, ST1 = 33, 42, 51
    rot_soffsets(a, 19, SD, ST0, ST1, 28, 31, 32, 64*9216, 22)
    a.wait_all()
    stamp(a, 1)
    srd(a, 8, 6, WS_REC)
    a("s_cmp_ge_u32 s16, 2")
    a("s_cselect_b32 s20, s14, s12"); a("s_cselect_b32 s21, s15, s13")
    srd(a, 24, 20, 576*9216)
    AF = 64; BR = 100
    VA = M+14; VS = M+16
    def dma(st, i):
        a(f"s_add_u32 m0, s29, {(st % NSLOT)*SLOT + i*1024}")
        a(f"buffer_load_dwordx4 v{DV+i}, s[24:27], s{SD+st} offen lds", tag=("d", st))
    def tok(ks, b):
        rb = BR + 8 * (ks % PF) + 4*b
        a(f"buffer_load_dwordx4 a[{rb}:{rb+3}], v{VT}, s[8:11], s{(ST0, ST1)[b] + ks//4} offen offset:{(ks % 4)*1024}", tag=("t", ks))
    def acc(t):
        return f"v[{16*t}:{16*t+15}]" if t < 14 else f"a[{16*(t-14)}:{16*(t-14)+15}]"
    def trd(ks, aa):
        if EXP == "notr" and ks > 1: return
        st, kk = divmod(ks, 4); slot = st % NSLOT
        off = (slot & 1)*SLOT + kk*4608 + aa*32
        va = VA + (slot >> 1)
        a(f"ds_read_b64_tr_b16 a[{AF+4*aa}:{AF+4*aa+1}], v{va} offset:{off}", tag=("a", ks, aa))
        a(f"ds_read_b64_tr_b16 a[{AF+4*aa+2}:{AF+4*aa+3}], v{va} offset:{off+1152}", tag=("a", ks, aa))
    def mfma(ks, aa, b):
        t = 2*aa + b; rb = BR + 8 * (ks % PF) + 4*b
        if EXP == "m16":
            for hh in range(2):
                o = 8*(ks & 1) + 4*hh
                c = f"v[{16*t+o}:{16*t+o+3}]" if t < 14 else f"a[{16*(t-14)+o}:{16*(t-14)+o+3}]"
                a(f"v_mfma_f32_16x16x32_bf16 {c}, a[{AF+4*aa}:{AF+4*aa+3}], a[{rb}:{rb+3}], {c if ks > 1 else 0}")
                if a.defer: a.defer.pop(0)()
            return
        a(f"v_mfma_f32_32x32x16_bf16 {acc(t)}, a[{AF+4*aa}:{AF+4*aa+3}], a[{rb}:{rb+3}], {acc(t) if ks else 0}")
    def between():
        stamp(a, 2)
        a(f"v_bfe_u32 v2, v{M}, 4, 1"); a(f"v_mul_u32_u24 v{VA}, {UPO}, v2")
        a(f"v_lshrrev_b32 v2, 5, v{M}"); a(f"v_bfe_u32 v3, v{M}, 2, 2"); a("v_lshl_add_u32 v2, v2, 3, v3")
        a("v_mul_u32_u24 v2, 288, v2"); a(f"v_add_u32 v{VA}, v{VA}, v2")
        a(f"v_and_b32 v2, 3, v{M}"); a(f"v_lshl_add_u32 v{VA}, v2, 3, v{VA}")
        a(f"v_add_u32 v{VA+1}, {2*SLOT}, v{VA}")
        a(f"v_bfe_u32 v2, v{M}, 4, 1"); a(f"v_mul_u32_u24 v{VS}, 147456, v2")
        a(f"v_lshrrev_b32 v2, 5, v{M}"); a(f"v_lshl_add_u32 v{VS}, v2, 8, v{VS}")
        a(f"v_and_b32 v2, 15, v{M}"); a(f"v_lshl_add_u32 v{VS}, v2, 4, v{VS}")
        a("s_lshl_b32 s20, s18, 4"); a("s_lshl_b32 s21, s16, 2"); a("s_add_u32 s20, s20, s21")
        a("s_mul_i32 s20, s20, 147456"); a("s_mul_i32 s21, s17, 4608"); a("s_add_u32 s20, s20, s21")
        a(f"s_add_u32 s20, s20, {OFF_HM}")
        a("s_add_u32 s21, s20, 4096")
        a(f"s_add_u32 s22, s20, {2*147456}")
        a("s_add_u32 s23, s22, 4096")
    kloop(a, dma, tok, trd, mfma, PF, 3, (0, 2, 3, 5, 6, 8), between)
    stamp(a, 5)
    T = M+18
    for t in range(18):
        aa, b = divmod(t, 2)
        if t < 14:
            g = 16*t
        else:
            g = 0
            for r in range(16): a(f"v_accvgpr_read_b32 v{g+r}, a{16*(t-14)+r}")
        o = T + 4*(t % 3)
        for q in range(4):
            a(f"v_pk_mul_f32 v[{g+2*q}:{g+2*q+1}], v[{g+2*q}:{g+2*q+1}], v[{g+8+2*q}:{g+8+2*q+1}]")
        for q in range(4):
            a(f"v_cvt_pk_bf16_f32 v{o+q}, v{g+2*q}, v{g+2*q+1}")
        so = 20 + 2*b + (1 if aa == 8 else 0)
        a(f"buffer_store_dwordx4 v[{o}:{o+3}], v{VS}, s[8:11], s{so} offen offset:{(aa*512) % 4096}")
    if STAMP:
        stamp(a, 6); a.wait_all(); stamp(a, 7); stamp_store(a, 8, 4)
    a.label("K4_END")
    a("s_endpgm")
    return a.text(), dict(vgpr=256+BR+8*PF, sgpr=60, accum=256), f"grid=(256,1,1) block=(256,1,1) lds={NSLOT*SLOT}"

def k4b():
    a = Asm()
    SLOT = 36864; UPO = 18432; NSLOT = 4; PF = 4; NA = 6
    a("s_load_dwordx2 s[6:7], s[0:1], 136")
    a("s_load_dwordx4 s[12:15], s[0:1], 80")
    a("s_cmp_ge_u32 s2, 256")
    a("s_cbranch_scc1 K4_END")
    stamp(a, 0)
    M = 224
    a(f"v_and_b32 v{M}, 63, v0")
    a(f"v_lshrrev_b32 v{M+1}, 6, v0")
    a(f"v_readfirstlane_b32 s16, v{M+1}")
    a(f"v_mov_b32 v1, v{M}")
    a("s_and_b32 s17, s2, 7"); a("s_lshr_b32 s18, s2, 3")
    a("s_and_b32 s19, s18, 3"); a("s_lshl_b32 s17, s17, 2"); a("s_add_u32 s17, s17, s19")
    a("s_lshr_b32 s18, s18, 2")
    a("s_lshl_b32 s19, s19, 1"); a("s_add_u32 s19, s19, s18")
    a("s_sub_u32 s20, s19, 9"); a("s_cmp_ge_u32 s19, 9"); a("s_cselect_b32 s19, s20, s19")
    if EXP == "norot": a("s_mov_b32 s19, 0")
    DV = M+2
    dma_voffsets(a, DV, 9216, swap23=True)
    a("s_and_b32 s22, s16, 1"); a("s_lshr_b32 s23, s16, 1")
    a(f"s_mul_i32 s28, s22, {32*9216}"); a("s_mul_i32 s30, s17, 288"); a("s_add_u32 s28, s28, s30")
    a(f"s_mul_i32 s29, s23, {UPO}"); a("s_mul_i32 s30, s22, 9216"); a("s_add_u32 s29, s29, s30")
    VT = M+13
    a(f"v_lshlrev_b32 v{VT}, 4, v{M}")
    for b in range(1, 4): a(f"v_add_u32 v{VT+b}, {18432*b}, v{VT}")
    a("s_lshl_b32 s31, s18, 4"); a("s_lshl_b32 s30, s16, 2"); a("s_add_u32 s31, s31, s30")
    a("s_mul_i32 s32, s31, 18432"); a(f"s_add_u32 s32, s32, {OFF_H2P}")
    SD, ST = 33, 42
    for j in range(9):
        a(f"s_add_u32 s22, s19, {j}"); a("s_sub_u32 s23, s22, 9"); a("s_cmp_ge_u32 s22, 9"); a("s_cselect_b32 s22, s23, s22")
        a(f"s_mul_i32 s23, s22, {64*9216}"); a(f"s_add_u32 s{SD+j}, s28, s23")
        a("s_lshl_b32 s23, s22, 11"); a(f"s_add_u32 s{ST+j}, s32, s23")
    a.wait_all()
    stamp_n(a, 1)
    srd(a, 8, 6, WS_REC)
    a("s_cmp_ge_u32 s16, 2")
    a("s_cselect_b32 s20, s14, s12"); a("s_cselect_b32 s21, s15, s13")
    srd(a, 24, 20, 576*9216)
    AF = 64; BR = AF + 4*NA
    VA = M+17
    def dma(st, i):
        a(f"s_add_u32 m0, s29, {(st % NSLOT)*SLOT + i*1024}")
        a(f"buffer_load_dwordx4 v{DV+i}, s[24:27], s{SD+st} offen lds", tag=("d", st))
    def tok(ks, b):
        rb = BR + 16 * (ks % PF) + 4*b
        a(f"buffer_load_dwordx4 a[{rb}:{rb+3}], v{VT+b}, s[8:11], s{ST + ks//2} offen offset:{(ks % 2)*1024}", tag=("t", ks))
    def accr(mat, aa, b):
        if aa < 7: return ("v", 32*aa + 16*mat + 4*b)
        return ("a", 32*(aa-7) + 16*mat + 4*b)
    def acc(mat, aa, b):
        k, r = accr(mat, aa, b); return f"{k}[{r}:{r+3}]"
    def trd(n, q):
        if EXP == "notr" and n > 40: return
        ks, fi = divmod(n, 18); aa, mat = divmod(fi, 2)
        st, kk = divmod(ks, 2); slot = st % NSLOT
        off = mat*UPO + kk*9216 + aa*32 + q*2304
        r = AF + 4*(n % NA) + 2*q
        a(f"ds_read_b64_tr_b16 a[{r}:{r+1}], v{VA+slot} offset:{off}", tag=("a", n))
    for i in range(9): dma(0, i)
    for b in range(4): tok(0, b)
    stamp_n(a, 2)
    a(f"v_lshrrev_b32 v2, 5, v{M}"); a("v_lshlrev_b32 v2, 4, v2")
    a(f"v_bfe_u32 v3, v{M}, 4, 1"); a("v_lshl_add_u32 v2, v3, 2, v2")
    a(f"v_bfe_u32 v3, v{M}, 2, 2"); a("v_add_u32 v2, v2, v3")
    a(f"v_mul_u32_u24 v{VA}, 288, v2")
    a(f"v_and_b32 v2, 3, v{M}"); a(f"v_lshl_add_u32 v{VA}, v2, 3, v{VA}")
    for sl in range(1, 4): a(f"v_add_u32 v{VA+sl}, {sl*SLOT}, v{VA}")
    a("s_mul_i32 s20, s31, 147456"); a("s_mul_i32 s21, s17, 9"); a("s_lshr_b32 s21, s21, 1"); a("s_lshl_b32 s21, s21, 10")
    a("s_add_u32 s20, s20, s21"); a(f"s_add_u32 s52, s20, {OFF_HM}")
    for b in range(1, 4): a(f"s_add_u32 s{52+b}, s52, {147456*b}")
    for b in range(4): a(f"s_add_u32 s{56+b}, s{52+b}, 4096")
    NF = 18*18
    D = NA - 1
    ops = []
    for st in range(1, 9):
        for i in range(9):
            ops.append((36*st - D - 0.5, i, -1 if st <= 3 else 36*(st-2) - D, dma, (st, i)))
    for ks in range(1, 18):
        for b in range(4):
            ops.append((18*ks, b, -1 if ks < PF else 18*(ks-PF+1), tok, (ks, b)))
    ops.sort(key=lambda o: (o[0], o[1]))
    stamp_n(a, 3)
    a.wait_vm(("d", 0))
    a("s_barrier")
    if EXP == "stages": stamp(a, 1)
    stamp_n(a, 4)
    for n in range(D):
        trd(n, 0); trd(n, 1)
    for n in range(NF):
        ks, fi = divmod(n, 18); aa, mat = divmod(fi, 2)
        if (n + D) % 36 == 0 and n + D < NF:
            st1 = (n + D)//36
            assert not any(o[3] is dma and o[4][0] == st1 for o in ops)
            a.wait_vm(("d", st1))
            a("s_barrier")
            if EXP == "stages" and st1 in (1, 2, 3, 5, 7): lg = list(a.lg); stamp(a, {1:2, 2:3, 3:4, 5:5, 7:6}[st1])
        if fi == 0:
            assert not any(o[3] is tok and o[4][0] == ks for o in ops)
            a.wait_vm(("t", ks))
        a.wait_lg(("a", n))
        ar = AF + 4*(n % NA)
        for b in range(4):
            rb = BR + 16 * (ks % PF) + 4*b
            c = acc(mat, aa, b)
            a(f"v_mfma_f32_16x16x32_bf16 {c}, a[{ar}:{ar+3}], a[{rb}:{rb+3}], {c if ks else 0}")
            if b < 2 and n + D < NF: trd(n + D, b)
            if b == 2 and (n % 3 != 2):
                for o in ops:
                    if o[2] <= n:
                        ops.remove(o); o[3](*o[4]); break
    assert not ops
    stamp_n(a, 5)
    T = M+21
    T = 246
    def prod(aa, b, o):
        (k, g), (_, u) = accr(0, aa, b), accr(1, aa, b)
        if k == "a":
            for r in range(4):
                a(f"v_accvgpr_read_b32 v{0+r}, a{g+r}"); a(f"v_accvgpr_read_b32 v{4+r}, a{u+r}")
            g, u = 0, 4
        for q in range(2):
            a(f"v_pk_mul_f32 v[{g+2*q}:{g+2*q+1}], v[{g+2*q}:{g+2*q+1}], v[{u+2*q}:{u+2*q+1}]")
        for q in range(2):
            a(f"v_cvt_pk_bf16_f32 v{o+q}, v{g+2*q}, v{g+2*q+1}")
    def epi(par):
        cnt = 0
        groups = [(0, 1), (2, 3), (4, 5), (6, 7), (8,)] if par == 0 else [(0,), (1, 2), (3, 4), (5, 6), (7, 8)]
        for gr in groups:
            for b in range(4):
                o = T + 4*(cnt % 2); cnt += 1
                L = gr[0] + par; kap = L >> 1
                so = (52 if kap < 4 else 56) + b; im = (kap % 4)*1024
                if len(gr) == 2:
                    prod(gr[0], b, o); prod(gr[1], b, o+2)
                    a(f"buffer_store_dwordx4 v[{o}:{o+3}], v{VT}, s[8:11], s{so} offen offset:{im}")
                else:
                    prod(gr[0], b, o)
                    a(f"buffer_store_dwordx2 v[{o}:{o+1}], v{VT}, s[8:11], s{so} offen offset:{im + 8*(L & 1)}")
    a("s_bitcmp1_b32 s17, 0")
    a("s_cbranch_scc1 K4_ODD")
    h = list(a.hist); vm = list(a.vm)
    epi(0)
    a("s_branch K4_FIN")
    a.label("K4_ODD"); a.hist = h; a.vm = vm
    epi(1)
    a.label("K4_FIN")
    if STAMP:
        stamp_n(a, 6); a.wait_all(); stamp(a, 7); stamp_store(a, 8, 4)
    a.label("K4_END")
    a("s_endpgm")
    return a.text(), dict(vgpr=256+BR+16*PF, sgpr=60, accum=256), f"grid=(256,1,1) block=(256,1,1) lds={NSLOT*SLOT}"

F_LN1, F_MOD, F_FIN, F_CH, F_WARM, F_END = 0, 128, 236, 240, 816, 924
def poll_dbg(a, label, vflag, vaddr, lo, hi, tmp_s, depth=2):
    msk = ((1 << hi) - 1) ^ ((1 << lo) - 1)
    a(f"s_mov_b32 s{tmp_s}, 0x8000")
    a(f"s_mov_b32 s{tmp_s+2}, {msk & 0xffffffff:#x}"); a(f"s_mov_b32 s{tmp_s+3}, {msk >> 32:#x}")
    a(f"s_mov_b32 s{tmp_s+1}, 0x01010101")
    a.label(label)
    a(f"buffer_load_dword v{vflag}, v{vaddr}, s[24:27], 0 offen sc1")
    a("s_waitcnt vmcnt(0)")
    a(f"v_cmp_eq_u32 vcc, s{tmp_s+1}, v{vflag}")
    a(f"s_and_b64 s[{tmp_s+4}:{tmp_s+5}], vcc, s[{tmp_s+2}:{tmp_s+3}]")
    a(f"s_cmp_eq_u64 s[{tmp_s+4}:{tmp_s+5}], s[{tmp_s+2}:{tmp_s+3}]")
    a(f"s_cbranch_scc1 {label}_X")
    a(f"s_sub_u32 s{tmp_s}, s{tmp_s}, 1")
    a(f"s_cbranch_scc0 {label}")
    a.label(label + "_X")
    a.vm = []

def kf():
    a = Asm()
    stamp(a, 0)
    a("s_load_dwordx2 s[6:7], s[0:1], 136")
    a("s_load_dwordx2 s[34:35], s[0:1], 128")
    a(f"s_cmp_ge_u32 s2, {F_CH}")
    a("s_cbranch_scc1 KF_CH")
    a(f"s_cmp_ge_u32 s2, {F_FIN}")
    a("s_cbranch_scc1 KF_FIN")
    a(f"s_cmp_ge_u32 s2, {F_MOD}")
    a("s_cbranch_scc1 KF_MOD")
    def signal():
        a("v_mov_b32 v1, s2"); a("v_mov_b32 v2, 1"); a("v_lshlrev_b32 v3, 6, v1")
        a(f"s_mov_b32 s20, {OFF_PF}")
        a("s_mov_b64 exec, 1")
        a("buffer_store_dword v2, v3, s[8:11], s20 offen sc1")
        a("buffer_store_byte v2, v1, s[24:27], 0 offen sc1")
    PITCH = 1216; LN_N = 0; LN_X = 16 * PITCH
    a("s_setprio 3")
    a("s_load_dwordx2 s[4:5], s[0:1], 0")
    a("v_lshrrev_b32 v1, 4, v0")
    a("v_and_b32 v2, 15, v0")
    a("v_mul_u32_u24 v3, 1152, v1")
    a("v_lshl_add_u32 v3, v2, 3, v3")
    a("s_mul_i32 s3, s2, 18432")
    a.wait_all()
    srd(a, 12, 4, 2048*1152)
    srd(a, 8, 6, WS_REC)
    srd(a, 24, 34, 256)
    X = 10
    for k in range(9):
        a(f"buffer_load_dwordx2 v[{X+2*k}:{X+2*k+1}], v3, s[12:15], s3 offen offset:{128*k}", tag=("x", k))
    if EXP == "touch":
        a("s_lshl_b32 s21, s3, 1"); a("v_lshlrev_b32 v64, 7, v0")
        a("buffer_load_dword v65, v64, s[8:11], s21 offen")
    a(f"v_mul_u32_u24 v4, {PITCH}, v1")
    a("v_lshl_add_u32 v4, v2, 3, v4")
    F = 28
    for k in range(9):
        a.wait_vm(("x", k))
        for h in range(2):
            unpack(a, F+4*k+2*h, F+4*k+2*h+1, X+2*k+h)
        a(f"ds_write_b64 v4, v[{X+2*k}:{X+2*k+1}] offset:{LN_X+128*k}")
    stamp(a, 1)
    a(f"v_add_f32 v5, v{F}, v{F+1}")
    a(f"v_add_f32 v6, v{F+2}, v{F+3}")
    for i in range(4, 36, 2):
        a(f"v_add_f32 v5, v5, v{F+i}")
        a(f"v_add_f32 v6, v6, v{F+i+1}")
    a("v_add_f32 v5, v5, v6")
    row16_sum(a, 5)
    a(f"v_mul_f32 v5, {f32(1.0/576):#x}, v5")
    a("v_mov_b32 v6, 0"); a("v_mov_b32 v7, 0")
    for i in range(0, 36, 2):
        a(f"v_sub_f32 v8, v{F+i}, v5"); a(f"v_sub_f32 v9, v{F+i+1}, v5")
        a("v_fmac_f32 v6, v8, v8"); a("v_fmac_f32 v7, v9, v9")
    a("v_add_f32 v6, v6, v7")
    row16_sum(a, 6)
    a(f"v_mul_f32 v6, {f32(1.0/576):#x}, v6")
    rnd1(a, 6)
    a(f"v_add_f32 v6, {f32(1e-5):#x}, v6")
    rnd1(a, 6)
    a("v_sqrt_f32 v6, v6")
    rnd1(a, 6)
    a("v_rcp_f32 v7, v6")
    rnd1(a, 5)
    for k in range(9):
        for h in range(2):
            r0 = F+4*k+2*h; r1 = r0+1
            a(f"v_sub_f32 v{r0}, v{r0}, v5"); a(f"v_sub_f32 v{r1}, v{r1}, v5")
            rnd2(a, r0, r1, 8)
            a(f"v_mul_f32 v8, v{r0}, v7"); a(f"v_mul_f32 v9, v{r1}, v7")
            a(f"v_fma_f32 v{r0}, -v8, v6, v{r0}"); a(f"v_fma_f32 v{r1}, -v9, v6, v{r1}")
            a(f"v_fmac_f32 v8, v{r0}, v7"); a(f"v_fmac_f32 v9, v{r1}, v7")
            a(f"v_cvt_pk_bf16_f32 v{X+2*k+h}, v8, v9")
        a(f"ds_write_b64 v4, v[{X+2*k}:{X+2*k+1}] offset:{LN_N+128*k}")
    a("v_and_b32 v1, 63, v0")
    a("v_lshrrev_b32 v2, 6, v0")
    a("v_readfirstlane_b32 s16, v2")
    a("v_bfe_u32 v5, v1, 4, 1")
    a("v_lshrrev_b32 v6, 5, v1")
    a("v_bfe_u32 v7, v1, 2, 2")
    a("v_and_b32 v8, 3, v1")
    a("v_lshl_add_u32 v7, v5, 3, v7")
    a("v_lshl_add_u32 v7, v6, 4, v7")
    a(f"v_mul_u32_u24 v7, {PITCH}, v7")
    a("v_lshl_add_u32 v7, v8, 3, v7")
    a("s_mul_i32 s19, s16, 288")
    a("v_add_u32 v7, s19, v7")
    a("v_and_b32 v9, 15, v1"); a("v_lshlrev_b32 v9, 6, v9")
    a("v_lshrrev_b32 v3, 4, v1"); a("v_lshl_add_u32 v9, v3, 4, v9")
    a("s_lshl_b32 s21, s3, 1"); a("s_mul_i32 s22, s16, 9216"); a("s_add_u32 s21, s21, s22")
    if OFF_NT: a(f"s_add_u32 s21, s21, {OFF_NT}")
    a("s_add_u32 s22, s21, 4096")
    a("s_add_u32 s23, s21, 8192")
    a.wait_all(vm=False)
    a("s_barrier")
    stamp(a, 2)
    for i in range(9):
        a(f"ds_read_b64_tr_b16 v[{F+4*i}:{F+4*i+1}], v7 offset:{32*i}", tag=("t", i))
        a(f"ds_read_b64_tr_b16 v[{F+4*i+2}:{F+4*i+3}], v7 offset:{32*i+4*PITCH}", tag=("t", i))
    for i in range(9):
        a.wait_lg(("t", i))
        a(f"buffer_store_dwordx4 v[{F+4*i}:{F+4*i+3}], v9, s[8:11], s{21+i//4} offen offset:{1024*(i%4)} sc1")
    a.wait_all()
    a("s_barrier")
    stamp(a, 3)
    a("s_cmp_lg_u32 s16, 0")
    a("s_cbranch_scc1 KF_LE")
    signal()
    a.label("KF_LE")
    stamp_store(a, 4, 1)
    a("s_endpgm")
    a.label("KF_MOD"); a.hist = []; a.vm = []; a.lg = []
    a("s_setprio 3")
    a("s_load_dwordx2 s[4:5], s[0:1], 112")
    a("s_load_dwordx2 s[16:17], s[0:1], 104")
    a(f"s_sub_u32 s3, s2, {F_MOD}")
    a("s_cmp_ge_u32 s3, 54"); a("s_cselect_b32 s20, 1, 0")
    a("s_mul_i32 s21, s20, 54"); a("s_sub_u32 s21, s3, s21")
    a("v_lshrrev_b32 v1, 3, v0")
    a("v_and_b32 v2, 7, v0")
    a("v_mul_u32_u24 v3, 6912, v1")
    a("v_lshl_add_u32 v3, v2, 4, v3")
    a("v_lshlrev_b32 v4, 1, v1")
    a(f"s_mul_i32 s22, s20, {288*6912}")
    a("s_lshl_b32 s23, s21, 7")
    a("s_add_u32 s22, s22, s23")
    a("s_mul_i32 s23, s20, 576")
    a.wait_all()
    srd(a, 12, 4, 576*6912)
    srd(a, 28, 16, 1152)
    srd(a, 8, 6, WS_REC)
    srd(a, 24, 34, 256)
    for i in range(9):
        a(f"buffer_load_ushort v{10+i}, v4, s[28:31], s23 offen offset:{64*i}", tag="c")
    for i in range(9):
        a(f"buffer_load_dwordx4 v[{20+4*i}:{23+4*i}], v3, s[12:15], s22 offen", tag=("w", i))
        if i < 8: a(f"s_add_u32 s22, s22, {32*6912}")
    for j in range(8): a(f"v_mov_b32 v{56+j}, 0")
    a.wait_vm("c")
    for i in range(9):
        r = 10+i
        a(f"v_lshlrev_b32 v{r}, 16, v{r}")
        a(f"v_mul_f32 v5, {(LOG2E|0x80000000):#x}, v{r}")
        a("v_exp_f32 v5, v5")
        a("v_add_f32 v5, 1.0, v5")
        a("v_rcp_f32 v5, v5")
        a(f"v_mul_f32 v{r}, v{r}, v5")
        rnd1(a, r)
    for i in range(9):
        a.wait_vm(("w", i))
        for q in range(4):
            unpack(a, 5, 6, 20+4*i+q)
            a(f"v_fmac_f32 v{56+2*q}, v{10+i}, v5")
            a(f"v_fmac_f32 v{57+2*q}, v{10+i}, v6")
    stamp(a, 1)
    a("v_lshlrev_b32 v5, 8, v1")
    a("v_lshl_add_u32 v5, v2, 5, v5")
    a("ds_write_b128 v5, v[56:59]")
    a("ds_write_b128 v5, v[60:63] offset:16")
    a("v_lshlrev_b32 v6, 2, v0")
    a("v_lshrrev_b32 v7, 6, v0")
    a("v_readfirstlane_b32 s16, v7")
    a.wait_all(vm=False)
    a("s_barrier")
    stamp(a, 2)
    a("s_cmp_lg_u32 s16, 0")
    a("s_cbranch_scc1 KF_END")
    for i in range(32):
        a(f"ds_read_b32 v{10+i}, v6 offset:{256*i}", tag=("r", i))
    a.wait_all(vm=False)
    for st in (16, 8, 4, 2, 1):
        for i in range(st):
            a(f"v_add_f32 v{10+i}, v{10+i}, v{10+i+st}")
    a(f"s_mul_i32 s22, s20, {3456*4}")
    a("s_lshl_b32 s23, s21, 8")
    a("s_add_u32 s22, s22, s23")
    a(f"s_add_u32 s22, s22, {OFF_MODP}")
    a("buffer_store_dword v10, v6, s[8:11], s22 offen sc1")
    a.wait_all()
    stamp(a, 3)
    signal()
    stamp_store(a, 4, 1)
    a("s_endpgm")
    a.label("KF_FIN"); a.hist = []; a.vm = []; a.lg = []
    a(f"s_cmp_lg_u32 s2, {F_FIN}")
    a("s_cbranch_scc1 KF_END")
    a("v_lshlrev_b32 v1, 2, v0")
    a("v_and_b32 v3, 63, v0"); a("v_lshlrev_b32 v3, 2, v3")
    a("v_lshlrev_b32 v2, 4, v0")
    for q in range(4): a(f"v_mov_b32 v{4+q}, 0")
    a.wait_all()
    srd(a, 8, 6, WS_REC)
    srd(a, 24, 34, 256)
    a("s_setprio 3")
    a("v_lshrrev_b32 v9, 6, v0"); a("v_readfirstlane_b32 s16, v9")
    a("s_cmp_lg_u32 s16, 0")
    a("s_cbranch_scc1 KF_FB")
    a("v_lshlrev_b32 v44, 4, v3")
    a(f"s_mov_b32 s20, {OFF_PF}")
    for q in range(4):
        a(f"s_mov_b32 s{44+q}, {OFF_PF + 4096*q}")
        a(f"buffer_store_dword v4, v44, s[8:11], s{44+q} offen sc1")
    a("s_mov_b32 s36, 0x8000")
    a(f"s_mov_b32 s38, {(1 << 32) - 1:#x}"); a(f"s_mov_b32 s39, {(1 << (F_FIN - 192 - 32)) - 1:#x}")
    a(f"s_mov_b32 s40, {(1 << 32) - 1:#x}"); a(f"s_mov_b32 s41, {(1 << 27) - 1:#x}")
    a("s_mov_b32 s37, 0x01010101")
    a.wait_all()
    a.label("KF_PF")
    for q in range(4): a(f"buffer_load_dword v{45+q}, v44, s[8:11], s{44+q} offen sc1")
    a("s_waitcnt vmcnt(0)")
    a("v_min_u32 v45, v45, v46"); a("v_min_u32 v45, v45, v47")
    a("v_cmp_eq_u32 vcc, 0, v48")
    a("s_and_b64 s[42:43], vcc, s[38:39]")
    a("v_cmp_eq_u32 vcc, 0, v45")
    a("s_or_b64 s[42:43], s[42:43], vcc")
    a("s_cbranch_scc0 KF_PF_X")
    a("s_sub_u32 s36, s36, 1")
    a("s_cbranch_scc1 KF_PF_X")
    a("s_and_b32 s42, s36, 15")
    a("s_cbranch_scc1 KF_PF")
    a("buffer_load_dword v45, v3, s[24:27], 0 offen sc1")
    a("s_waitcnt vmcnt(0)")
    a("v_cmp_ne_u32 vcc, s37, v45")
    a("s_and_b64 s[42:43], vcc, s[40:41]")
    a("s_cbranch_scc1 KF_PF")
    a.label("KF_PF_X"); a.hist = []; a.vm = []
    a("v_mov_b32 v8, 252"); a("v_mov_b32 v9, 1")
    a("s_mov_b64 exec, 1")
    a("buffer_store_dword v9, v8, s[24:27], 0 offen sc1")
    a("s_mov_b64 exec, -1")
    a.label("KF_FB"); a.hist = []
    a("s_barrier")
    a("v_mov_b32 v40, 1"); a("v_lshlrev_b32 v41, 6, v0")
    for q in range(2):
        a(f"s_mov_b32 s20, {OFF_REP + 16384*q}")
        a("buffer_store_dword v40, v41, s[8:11], s20 offen sc1")
    a(f"s_mov_b32 s20, {OFF_REP + 32768}")
    a("s_cmp_lg_u32 s16, 0")
    a("s_cbranch_scc1 KF_FC")
    a("buffer_store_dword v40, v41, s[8:11], s20 offen sc1")
    a.label("KF_FC")
    for q in range(4):
        a(f"s_mov_b32 s20, {OFF_FLG + 4096*q}")
        a("buffer_store_dwordx4 v[4:7], v2, s[8:11], s20 offen")
    for i in range(7):
        for ks in range(2):
            a(f"s_mov_b32 s20, {OFF_MODP + ks*3456*4 + 1728*4 + 1024*i}")
            a(f"buffer_load_dword v{10+2*i+ks}, v1, s[8:11], s20 offen sc1")
    a.wait_all()
    for i in range(7):
        b = 10+2*i
        a(f"v_add_f32 v{b}, v{b}, v{b+1}")
        rnd1(a, b)
        a(f"v_add_f32 v{b+1}, 1.0, v{b}")
        rnd1(a, b+1)
        a(f"v_add_u32 v2, {256*i}, v0")
        a("v_subrev_u32 v3, 576, v2")
        a("v_cmp_gt_u32 vcc, 576, v3")
        a(f"v_cndmask_b32 v{b}, v{b}, v{b+1}, vcc")
        a(f"s_mov_b32 s20, {OFF_MODF + 1024*i}")
        if i == 6:
            a("v_cmp_gt_u32 vcc, 1728, v2")
            a("s_and_saveexec_b64 s[22:23], vcc")
            a("s_cbranch_execz KF_END")
        a(f"buffer_store_dword v{b}, v1, s[8:11], s20 offen")
    a("s_endpgm")
    a.label("KF_CH"); a.hist = []; a.vm = []; a.lg = []
    a(f"s_cmp_ge_u32 s2, {F_WARM}")
    a("s_cbranch_scc1 KF_WARM")
    RB = 24576; HT = RB; T16 = RB + 256; PT = RB + 4608; RH = RB + 6656; CS = 4160
    a("s_load_dwordx8 s[16:23], s[0:1], 8")
    a("s_load_dwordx8 s[24:31], s[0:1], 40")
    a(f"s_sub_u32 s3, s2, {F_CH}")
    a("s_and_b32 s4, s3, 7"); a("s_lshr_b32 s3, s3, 3"); a("s_mul_i32 s4, s4, 72"); a("s_add_u32 s3, s3, s4")
    a("v_and_b32 v1, 63, v0")
    a("v_lshrrev_b32 v2, 6, v0")
    a("v_lshrrev_b32 v3, 4, v1")
    a("v_and_b32 v4, 15, v0")
    a("v_and_b32 v5, 31, v0")
    a("v_lshl_add_u32 v5, v2, 5, v5")
    a("v_lshlrev_b32 v6, 4, v5")
    a("v_lshlrev_b32 v5, 1, v5")
    a("s_lshl_b32 s4, s3, 8")
    a("v_add_u32 v5, s4, v5")
    a("s_lshl_b32 s5, s3, 1")
    a("v_mov_b32 v15, s5")
    a.wait_all()
    srd(a, 8, 6, WS_REC)
    a(f"s_sub_u32 s42, s2, {F_CH}"); a("s_lshl_b32 s42, s42, 6"); a(f"s_add_u32 s42, s42, {OFF_REP}")
    a("v_mov_b32 v62, 0")
    a("v_cmp_eq_u32 vcc, 192, v0")
    a("s_and_saveexec_b64 s[44:45], vcc")
    a("s_cbranch_execz KF_CH_R")
    a("buffer_store_dword v62, v62, s[8:11], s42 offen sc1", tag="p")
    a.label("KF_CH_R")
    a("s_mov_b64 exec, -1")
    a("global_load_ushort v7, v15, s[28:29]", tag="p")
    for q in range(6):
        a(f"global_load_ushort v{28+q}, v5, s[{16+2*q}:{17+2*q}]", tag="p")
    a("global_load_ushort v63, v15, s[30:31]", tag="dsk")
    a("v_and_b32 v12, 7, v4")
    a("v_lshrrev_b32 v13, 3, v4")
    a("v_lshl_add_u32 v8, v13, 7, v12")
    a("v_lshrrev_b32 v12, 2, v4"); a("v_lshlrev_b32 v12, 7, v12")
    a("v_and_b32 v13, 3, v4"); a("v_lshl_add_u32 v12, v13, 1, v12")
    a("v_add_u32 v12, 256, v12")
    a("v_subrev_u32 v13, 8, v4"); a("v_lshrrev_b32 v13, 1, v13"); a("v_lshlrev_b32 v13, 7, v13")
    a("v_and_b32 v14, 1, v4"); a("v_lshl_add_u32 v13, v14, 2, v13")
    a("v_add_u32 v13, 512, v13")
    a("v_cmp_gt_u32 vcc, 8, v4")
    a("v_cndmask_b32 v9, v13, v12, vcc")
    a("v_lshlrev_b32 v12, 7, v4"); a("v_add_u32 v12, 1024, v12")
    a("v_mov_b32 v13, 2048")
    a("v_cndmask_b32 v10, v13, v12, vcc")
    a("v_lshlrev_b32 v11, 3, v4")
    a("v_lshlrev_b32 v12, 2, v4")
    for T in range(3):
        a(f"ds_write_b32 v12, v{8+T} offset:{HT+64*T}")
    for T in range(4):
        a(f"v_cvt_f32_u32 v{8+T}, v{8+T}")
    a("v_lshlrev_b32 v12, 9, v2"); a("v_lshl_add_u32 v12, v3, 6, v12")
    a("s_mov_b32 s33, 0x07060302")
    a.wait_vm("p")
    stamp(a, 1)
    a("v_lshlrev_b32 v7, 16, v7")
    a(f"v_mul_f32 v7, {LOG2E:#x}, v7")
    a("v_exp_f32 v7, v7")
    rnd1(a, 7)
    for q in range(6): a(f"v_lshlrev_b32 v{28+q}, 16, v{28+q}")
    for q in range(4): a(f"v_mul_f32 v{28+q}, v7, v{28+q}")
    a(f"v_mul_f32 v36, {LOG2E:#x}, v28")
    a(f"v_mul_f32 v37, {INV2PI:#x}, v29")
    a("v_mul_f32 v38, v32, v30"); a("v_mul_f32 v39, v32, v31")
    a("v_fma_f32 v38, -v33, v31, v38")
    a("v_fmac_f32 v39, v33, v30")
    a(f"ds_write_b128 v6, v[36:39] offset:{PT}")
    P = 64
    for st in range(8):
        a(f"ds_read_b128 v[{P+4*st}:{P+4*st+3}], v12 offset:{PT+256*(st >> 2)+16*(st & 3)}", tag=("pp", st))
    srd(a, 24, 34, 256)
    FR = 96
    def fr(T, lo): return FR + 8*T + 4*lo
    def valu(st):
        kp, e2 = divmod(st, 4)
        pr = P + 4*st; E = 36; Er = 48
        L = []
        for T in (3, 0, 1, 2):
            L.append(f"v_mul_f32 v{E+3*T}, v{pr}, v{8+T}")
            L.append(f"v_mul_f32 v{E+3*T+1}, v{pr+1}, v{8+T}")
        for T in (3, 0, 1, 2):
            L.append(f"v_exp_f32 v{E+3*T}, v{E+3*T}")
            L.append(f"v_fract_f32 v{E+3*T+1}, v{E+3*T+1}")
        for T in (3, 0, 1, 2):
            L.append(f"v_cos_f32 v{E+3*T+2}, v{E+3*T+1}")
            L.append(f"v_sin_f32 v{E+3*T+1}, v{E+3*T+1}")
        for T in (3, 0, 1, 2):
            L.append(f"v_mul_f32 v{E+3*T+1}, v{E+3*T}, v{E+3*T+1}")
            L.append(f"v_mul_f32 v{E+3*T}, v{E+3*T}, v{E+3*T+2}")
        L.append(f"v_mul_f32 v{Er}, v{pr+2}, v{E+9}")
        L.append(f"v_mul_f32 v{Er+1}, v{pr+2}, v{E+10}")
        L.append(f"v_fma_f32 v{Er}, -v{pr+3}, v{E+10}, v{Er}")
        L.append(f"v_fma_f32 v{Er+1}, -v{pr+3}, v{E+9}, -v{Er+1}")
        for T in range(4):
            r = Er if T == 3 else E+3*T
            L.append(f"v_perm_b32 v{fr(T,0)+e2}, v{r+1}, v{r}, s33")
            L.append(f"v_and_b32 v50, 0xffff0000, v{r}")
            L.append(f"v_and_b32 v51, 0xffff0000, v{r+1}")
            L.append(f"v_sub_f32 v50, v{r}, v50")
            L.append(f"v_sub_f32 v51, v{r+1}, v51")
            L.append(f"v_perm_b32 v{fr(T,1)+e2}, v51, v50, s33")
        return L
    def mf(kp):
        L = []
        for pi, (al, bl) in enumerate(((1, 0), (0, 1), (0, 0))):
            for T in range(3):
                c = f"v[{16+4*T}:{19+4*T}]"
                A = fr(T, al); B = fr(3, bl)
                L.append(f"v_mfma_f32_16x16x32_bf16 {c}, v[{A}:{A+3}], v[{B}:{B+3}], {c if (kp or pi) else 0}")
        return L
    for st in range(8):
        a.wait_lg(("pp", st))
        Mf = mf(0) if st == 4 else []
        for idx, ins in enumerate(valu(st)):
            if Mf and idx % 3 == 2: a(Mf.pop(0))
            a(ins)
    for ins in mf(1): a(ins)
    stamp(a, 2)
    a("v_mul_u32_u24 v12, 3072, v2")
    a("v_lshl_add_u32 v12, v1, 4, v12")
    for T in range(3):
        a(f"ds_write_b128 v12, v[{16+4*T}:{19+4*T}] offset:{1024*T}")
    a("v_readfirstlane_b32 s16, v2")
    a("v_lshlrev_b32 v13, 4, v0")
    a("v_lshlrev_b32 v14, 6, v2")
    a("v_lshl_add_u32 v14, v3, 4, v14")
    a("v_lshlrev_b32 v12, 3, v0")
    G = 64
    a(f"v_subrev_u32 v{G}, 1, v12"); a(f"v_max_i32 v{G}, 0, v{G}")
    for e in range(8): a(f"v_add_u32 v{G+1+e}, {e}, v12")
    a(f"v_mov_b32 v{G+9}, 0")
    for e in range(10): a(f"v_cvt_f32_u32 v{G+e}, v{G+e}")
    for e in range(0, 10, 2): rnd2(a, G+e, G+e+1, 15)
    for e in range(9):
        a(f"v_cvt_u32_f32 v{G+e}, v{G+e}")
        a(f"v_lshlrev_b32 v{G+e}, 1, v{G+e}")
    a.wait_all(vm=False)
    a("s_barrier")
    a("s_cmp_eq_u32 s16, 3")
    a("s_cbranch_scc1 KF_CH_P")
    for w in range(4):
        a(f"ds_read_b128 v[{16+4*w}:{19+4*w}], v13 offset:{3072*w}")
    a(f"ds_read_b128 v[32:35], v14 offset:{HT}")
    a.wait_all(vm=False)
    for r in range(4):
        a(f"v_add_f32 v{16+r}, v{16+r}, v{20+r}")
        a(f"v_add_f32 v{24+r}, v{24+r}, v{28+r}")
        a(f"v_lshl_add_u32 v{32+r}, v4, 3, v{32+r}")
    for r in range(4):
        a(f"v_add_f32 v{16+r}, v{16+r}, v{24+r}")
        a(f"v_lshlrev_b32 v{32+r}, 1, v{32+r}")
    for r in range(4):
        a(f"v_cvt_pk_bf16_f32 v{16+r}, v{16+r}, v{16+r}")
    for r in range(4):
        a(f"ds_write_b16 v{32+r}, v{16+r} offset:{T16}")
    a("s_branch KF_CH_C")
    a.label("KF_CH_P"); a.hist = []
    a("v_mov_b32 v16, 252")
    a("s_mov_b32 s36, 0x8000")
    a.label("KF_PC")
    a("buffer_load_dword v17, v62, s[8:11], s42 offen sc1")
    a("s_waitcnt vmcnt(0)")
    a("v_cmp_ne_u32 vcc, 0, v17")
    a("s_sub_u32 s36, s36, 1")
    a("s_cbranch_scc1 KF_CH_C")
    a("s_cbranch_vccnz KF_CH_C")
    a("s_sleep 4")
    a("s_and_b32 s37, s36, 31")
    a("s_cbranch_scc1 KF_PC")
    a("buffer_load_dword v17, v16, s[24:27], 0 offen sc1")
    a("s_waitcnt vmcnt(0)")
    a("v_cmp_ne_u32 vcc, 0, v17")
    a("s_cbranch_vccz KF_PC")
    a.label("KF_CH_C"); a.hist = []; a.vm = ["dsk"]
    a("v_lshrrev_b32 v16, 1, v0"); a("v_mul_u32_u24 v16, 36864, v16")
    a("v_and_b32 v17, 1, v0"); a("v_lshl_add_u32 v16, v17, 4, v16")
    a("v_mul_u32_u24 v17, 36864, v4"); a("v_lshl_add_u32 v17, v3, 3, v17")
    a("s_lshl_b32 s17, s3, 6")
    if OFF_NT: a(f"s_add_u32 s17, s17, {OFF_NT}")
    a(f"s_mul_i32 s18, s16, {32*36864}"); a("s_add_u32 s18, s18, s17"); a(f"s_add_u32 s19, s18, {16*36864}")
    a("s_lshl_b32 s20, s3, 2"); a("v_mov_b32 v18, s20")
    a(f"s_mov_b32 s21, {OFF_MODP}"); a(f"s_mov_b32 s22, {OFF_MODP + 3456*4}")
    a(f"s_mov_b32 s23, {OFF_MODP + 4608}"); a(f"s_mov_b32 s32, {OFF_MODP + 3456*4 + 4608}")
    a.wait_all(vm=False)
    a("s_barrier")
    stamp(a, 3)
    a("buffer_load_dwordx4 v[20:23], v16, s[8:11], s17 offen sc1", tag="n")
    a("buffer_load_dword v24, v18, s[8:11], s21 offen sc1", tag="n")
    a("buffer_load_dword v25, v18, s[8:11], s22 offen sc1", tag="n")
    a("buffer_load_dword v26, v18, s[8:11], s21 offen offset:2304 sc1", tag="n")
    a("buffer_load_dword v27, v18, s[8:11], s22 offen offset:2304 sc1", tag="n")
    a("buffer_load_dword v60, v18, s[8:11], s23 offen sc1", tag="x")
    a("buffer_load_dword v61, v18, s[8:11], s32 offen sc1", tag="x")
    a("buffer_load_dwordx2 v[56:57], v17, s[8:11], s18 offen offset:32 sc1", tag="x")
    a("buffer_load_dwordx2 v[58:59], v17, s[8:11], s19 offen offset:32 sc1", tag="x")
    for e in range(9):
        a(f"ds_read_u16 v{80+e}, v{G+e} offset:{T16}")
    a("v_mov_b32 v28, 0"); a("v_mov_b32 v29, 0")
    a(f"v_mul_u32_u24 v30, {CS}, v3"); a("v_lshl_add_u32 v30, v4, 1, v30"); a("v_and_b32 v30, -4, v30")
    a("ds_write_b32 v30, v28")
    a("v_lshlrev_b32 v31, 3, v1")
    a(f"ds_write_b64 v31, v[28:29] offset:{RH}")
    a(f"v_add_u32 v31, {2*CS + 32}, v28"); a(f"ds_write_b32 v31, v28"); a(f"ds_write_b32 v31, v28 offset:{CS}")
    a("v_cmp_eq_u32 vcc, 0, v0")
    a.wait_all(vm=False)
    a("v_cndmask_b32 v80, v80, v28, vcc")
    for q in range(4):
        a(f"v_lshl_or_b32 v{32+q}, v{82+2*q}, 16, v{81+2*q}")
        a(f"v_lshl_or_b32 v{36+q}, v{81+2*q}, 16, v{80+2*q}")
    a(f"v_add_u32 v30, {32 + 2*CS + 4}, v13"); a(f"v_add_u32 v31, {32 + 3*CS + 4}, v13")
    a("ds_write_b128 v13, v[32:35] offset:32")
    a(f"ds_write_b128 v13, v[36:39] offset:{32 + CS}")
    a("ds_write2_b32 v30, v32, v33 offset0:0 offset1:1"); a("ds_write2_b32 v30, v34, v35 offset0:2 offset1:3")
    a("ds_write2_b32 v31, v36, v37 offset0:0 offset1:1"); a("ds_write2_b32 v31, v38, v39 offset0:2 offset1:3")
    a("s_lshl_b32 s20, s16, 7")
    a("v_lshlrev_b32 v18, 5, v4"); a("v_lshl_add_u32 v18, v3, 4, v18"); a(f"v_add_u32 v18, {RH + 32 - 64}, v18"); a("v_subrev_u32 v18, s20, v18")
    a("v_bfe_u32 v19, v1, 2, 2"); a(f"v_mul_u32_u24 v19, {CS}, v19")
    a("v_and_b32 v14, 3, v1"); a("v_lshl_add_u32 v19, v14, 3, v19")
    a("v_lshlrev_b32 v14, 4, v3"); a("v_sub_u32 v19, v19, v14"); a("v_add_u32 v19, 56, v19"); a("v_add_u32 v19, s20, v19")
    a("s_lshl_b32 s20, s16, 10")
    a("v_lshlrev_b32 v14, 5, v4"); a("v_lshl_add_u32 v14, v3, 3, v14"); a(f"v_add_u32 v14, {RH + 512}, v14"); a("v_add_u32 v14, s20, v14")
    a.wait_vm("n")
    a("v_add_f32 v24, v24, v25"); rnd1(a, 24)
    a("v_add_f32 v26, v26, v27"); rnd1(a, 26); a("v_add_f32 v26, 1.0, v26"); rnd1(a, 26)
    for q in range(4):
        unpack(a, 28, 29, 20+q)
        a("v_mul_f32 v28, v28, v26"); a("v_mul_f32 v29, v29, v26")
        rnd2(a, 28, 29, 30)
        a("v_add_f32 v28, v28, v24"); a("v_add_f32 v29, v29, v24")
        a(f"v_cvt_pk_bf16_f32 v{20+q}, v28, v29")
    a(f"ds_write_b128 v13, v[20:23] offset:{RH + 512}")
    a.wait_all(vm=False)
    a("s_barrier")
    stamp(a, 4)
    ACC = 20; Bb = 64; Ab = 96
    def ldB(rr, u): a(f"ds_read_b128 v[{Bb+4*u}:{Bb+4*u+3}], v18 offset:{64*(8*u+7) + 64 - 64*rr}", tag=("B", rr, u))
    def ldA(rr, aa):
        a(f"ds_read_b64_tr_b16 v[{Ab+4*aa}:{Ab+4*aa+1}], v19 offset:{64*rr + 512*aa + 8}", tag=("A", rr, aa))
        a(f"ds_read_b64_tr_b16 v[{Ab+4*aa+2}:{Ab+4*aa+3}], v19 offset:{64*rr + 512*aa}", tag=("A", rr, aa))
    ldA(0, 0)
    for u in range(8): ldB(0, u)
    for aa in range(1, 8): ldA(0, aa)
    for rr in range(2):
        for aa in range(8):
            a.wait_lg(("A", rr, aa))
            for jt in range(7, aa-1, -1) if rr else range(aa, 8):
                u = jt - aa
                a.wait_lg(("B", rr, u))
                c = f"v[{ACC+4*jt}:{ACC+4*jt+3}]"
                a(f"v_mfma_f32_16x16x32_bf16 {c}, v[{Ab+4*aa}:{Ab+4*aa+3}], v[{Bb+4*u}:{Bb+4*u+3}], {c if (rr or aa) else 0}")
            if rr == 0:
                ldB(1, 7-aa); ldA(1, aa)
    a("ds_read_b64 v[52:53], v14"); a("ds_read_b64 v[54:55], v14 offset:512")
    a("s_lshl_b32 s20, s16, 13"); a("v_lshlrev_b32 v15, 4, v1"); a("v_add_u32 v16, s20, v15")
    a("s_lshl_b32 s20, s16, 11"); a("v_add_u32 v15, s20, v15")
    a.wait_all(vm=False)
    stamp(a, 5)
    a("s_barrier")
    for jt in range(8):
        a(f"ds_write_b128 v16, v[{ACC+4*jt}:{ACC+4*jt+3}] offset:{1024*jt}")
    a.wait_vm("x")
    a("v_add_f32 v60, v60, v61"); rnd1(a, 60)
    a("v_lshlrev_b32 v63, 16, v63")
    for q in range(4):
        unpack(a, 64+2*q, 65+2*q, 52+q)
        a(f"v_mul_f32 v{64+2*q}, v{64+2*q}, v63"); a(f"v_mul_f32 v{65+2*q}, v{65+2*q}, v63")
        rnd2(a, 64+2*q, 65+2*q, 62)
    a("v_mul_u32_u24 v17, 18432, v4"); a("v_lshl_add_u32 v17, v3, 3, v17")
    a("s_lshl_b32 s17, s3, 5"); a(f"s_mul_i32 s18, s16, {32*18432}"); a("s_add_u32 s18, s18, s17"); a(f"s_add_u32 s18, s18, {OFF_X1T}")
    a(f"s_add_u32 s19, s18, {16*18432}")
    a.wait_all(vm=False)
    a("s_barrier")
    for q in range(2):
        for sw in range(4):
            a(f"ds_read_b128 v[{72+16*q+4*sw}:{75+16*q+4*sw}], v15 offset:{8192*sw + 1024*q}", tag=("r", q))
    for q in range(2):
        a.wait_lg(("r", q))
        y = 72 + 16*q
        for e in range(4):
            a(f"v_add_f32 v{y+e}, v{y+e}, v{y+4+e}"); a(f"v_add_f32 v{y+8+e}, v{y+8+e}, v{y+12+e}")
        for e in range(4): a(f"v_add_f32 v{y+e}, v{y+e}, v{y+8+e}")
        for h in range(2):
            y0 = y+2*h; y1 = y0+1
            rnd2(a, y0, y1, 62)
            a(f"v_add_f32 v{y0}, v{y0}, v{64+4*q+2*h}"); a(f"v_add_f32 v{y1}, v{y1}, v{65+4*q+2*h}")
            rnd2(a, y0, y1, 62)
            a(f"v_mul_f32 v{y0}, v{y0}, v60"); a(f"v_mul_f32 v{y1}, v{y1}, v60")
            rnd2(a, y0, y1, 62)
            unpack(a, 61, 62, 56+2*q+h)
            a(f"v_add_f32 v{y0}, v{y0}, v61"); a(f"v_add_f32 v{y1}, v{y1}, v62")
            a(f"v_cvt_pk_bf16_f32 v{56+2*q+h}, v{y0}, v{y1}")
        a(f"buffer_store_dwordx2 v[{56+2*q}:{57+2*q}], v17, s[8:11], s{18+q} offen")
    if STAMP:
        stamp(a, 6); a.wait_all(); stamp(a, 7); stamp_store(a, 8, 1)
    a.label("KF_END")
    a("s_endpgm")
    a.label("KF_WARM"); a.hist = []; a.vm = []; a.lg = []
    a(f"s_cmp_ge_u32 s2, {F_END}")
    a("s_cbranch_scc1 KF_END")
    a("s_load_dwordx4 s[12:15], s[0:1], 80")
    a("s_load_dwordx2 s[16:17], s[0:1], 96")
    a(f"s_sub_u32 s3, s2, {F_WARM}")
    a("v_lshlrev_b32 v1, 4, v0")
    a.wait_all()
    a("s_cmp_ge_u32 s3, 36"); a("s_cselect_b32 s12, s14, s12"); a("s_cselect_b32 s13, s15, s13")
    a("s_cselect_b32 s18, 36, 0")
    a("s_cmp_ge_u32 s3, 72"); a("s_cselect_b32 s12, s16, s12"); a("s_cselect_b32 s13, s17, s13")
    a("s_cselect_b32 s18, 72, s18")
    a("s_sub_u32 s3, s3, s18"); a("s_mul_i32 s3, s3, 147456")
    srd(a, 8, 12, 576*9216)
    if EXP != "nocp":
        a.label("KF_CP")
        a("s_getpc_b64 s[20:21]")
        a.raw("    s_sub_u32 s20, s20, KF_CP+4-front_kernel"); a("s_subb_u32 s21, s21, 0")
        a("v_lshlrev_b32 v2, 7, v0")
        for i in range(3):
            a.raw("    v_min_u32 v3, GG_END-front_kernel-8, v2")
            a(f"global_load_dword v{90+i}, v3, s[20:21]")
            a("v_add_u32 v2, 32768, v2")
    for i in range(36):
        a(f"buffer_load_dwordx4 v[{4+4*(i % 18)}:{7+4*(i % 18)}], v1, s[8:11], s3 offen")
        a("s_add_u32 s3, s3, 4096")
        if i % 6 == 5: a("s_waitcnt vmcnt(2)")
    a("s_endpgm")
    return a.text(), dict(vgpr=128, sgpr=50, accum=128), f"grid=({F_WARM if EXP == 'nowarm' else F_END},1,1) block=(256,1,1) lds=38912"

def poll(a, label, vflag, vaddr, soff, nl, tmp_s, depth=4):
    msk = (1 << nl) - 1
    a(f"s_mov_b32 s{tmp_s}, 0x8000")
    for d in range(depth - 1):
        a(f"buffer_load_dword v{vflag+d}, v{vaddr}, s[8:11], s{soff} offen sc1")
    a.label(label)
    for d in range(depth):
        a(f"buffer_load_dword v{vflag+(d+depth-1) % depth}, v{vaddr}, s[8:11], s{soff} offen sc1")
        a(f"s_waitcnt vmcnt({depth-1})")
        a(f"v_cmp_ne_u32 vcc, 0, v{vflag+d}")
        a(f"s_and_b32 s{tmp_s+1}, vcc_lo, {msk:#x}")
        a(f"s_cmp_eq_u32 s{tmp_s+1}, {msk:#x}")
        a(f"s_cbranch_scc1 {label}_X")
    a(f"s_sub_u32 s{tmp_s}, s{tmp_s}, 1")
    a(f"s_cbranch_scc0 {label}")
    a.label(label + "_X")
    a.vm = [None] * (depth - 1)

def kgg():
    a = Asm()
    SLOT = 36864; UPO = 18432; NSLOT = 4; PF = 6; NA = 6
    L2B = 3*SLOT; RED = L2B + 18432
    CODE_PF = 7
    HS = '' if EXP in ('local', 'localwb', 'localp') else ' sc1'
    a("s_load_dwordx2 s[6:7], s[0:1], 136")
    a("s_load_dwordx4 s[12:15], s[0:1], 80")
    a("s_load_dwordx2 s[4:5], s[0:1], 96")
    a("s_load_dwordx2 s[62:63], s[0:1], 120")
    a("s_cmp_ge_u32 s2, 256")
    a("s_cbranch_scc1 GG_END")
    stamp(a, 0)
    M = 224; DV = M+2; VT = M+13; VA = M+17
    a(f"v_and_b32 v{M}, 63, v0")
    a(f"v_lshrrev_b32 v{M+1}, 6, v0")
    a(f"v_readfirstlane_b32 s16, v{M+1}")
    a(f"v_lshlrev_b32 v{VT}, 4, v{M}")
    a(f"v_lshrrev_b32 v5, 4, v{M}")
    a("v_lshlrev_b32 v6, 5, v5")
    a("s_lshr_b32 s17, s2, 1"); a("s_mul_i32 s17, s17, 18432")
    a("s_and_b32 s18, s2, 1")
    a("s_mul_i32 s19, s16, 6144")
    a("s_add_u32 s20, s17, s19"); a(f"s_add_u32 s20, s20, {OFF_X1T}"); a("s_add_u32 s21, s20, 4096")
    a("s_mul_i32 s22, s16, 768"); a("s_mul_i32 s23, s18, 384"); a("s_add_u32 s22, s22, s23"); a(f"s_add_u32 s22, s22, {OFF_MODF}")
    a(f"s_add_u32 s19, s19, {L2B}")
    a("s_mul_i32 s3, s16, 384"); a("s_mul_i32 s23, s18, 192"); a("s_add_u32 s3, s3, s23"); a("s_add_u32 s3, s3, s17"); a(f"s_add_u32 s3, s3, {OFF_X1R}")
    a("s_mul_i32 s51, s18, 3072")
    a("s_mul_i32 s60, s16, 6144"); a("s_add_u32 s60, s60, s51"); a("s_add_u32 s60, s60, s17"); a(f"s_add_u32 s60, s60, {OFF_H2P}")
    a("s_mov_b32 s61, s19")
    a.wait_all()
    srd(a, 8, 6, WS_REC)
    a("s_cmp_eq_u32 s16, 3")
    a("s_cbranch_scc1 GG_S1")
    a("s_mov_b32 m0, s19")
    for i in range(4): a(f"buffer_load_dwordx4 v{VT}, s[8:11], s20 offen offset:{1024*i} lds", tag="x")
    a("s_add_u32 m0, s19, 4096")
    for i in range(2): a(f"buffer_load_dwordx4 v{VT}, s[8:11], s21 offen offset:{1024*i} lds", tag="x")
    SB = 100; CB = 124
    for i in range(3):
        for h in range(2):
            a(f"buffer_load_dwordx4 v[{SB+8*i+4*h}:{SB+8*i+4*h+3}], v6, s[8:11], s22 offen offset:{128*i+16*h}", tag="m")
            a(f"buffer_load_dwordx4 v[{CB+8*i+4*h}:{CB+8*i+4*h+3}], v6, s[8:11], s22 offen offset:{2304+128*i+16*h}", tag="m")
    a.label("GG_S1")
    a(f"v_mov_b32 v1, v{M}")
    a("s_and_b32 s17, s2, 7"); a("s_lshr_b32 s18, s2, 3")
    a("s_and_b32 s19, s18, 3"); a("s_lshl_b32 s17, s17, 2"); a("s_add_u32 s17, s17, s19")
    a("s_lshr_b32 s18, s18, 2")
    a("s_lshl_b32 s19, s19, 1"); a("s_add_u32 s19, s19, s18")
    a("s_sub_u32 s20, s19, 9"); a("s_cmp_ge_u32 s19, 9"); a("s_cselect_b32 s19, s20, s19")
    dma_voffsets(a, DV, 9216, swap23=True)
    a("s_and_b32 s22, s16, 1"); a("s_lshr_b32 s23, s16, 1")
    a(f"s_mul_i32 s28, s22, {32*9216}"); a("s_mul_i32 s30, s17, 288"); a("s_add_u32 s28, s28, s30")
    a(f"s_mul_i32 s29, s23, {UPO}"); a("s_mul_i32 s30, s22, 9216"); a("s_add_u32 s29, s29, s30")
    a("s_lshl_b32 s31, s18, 4"); a("s_lshl_b32 s30, s16, 2"); a("s_add_u32 s31, s31, s30")
    a("s_mul_i32 s32, s31, 18432"); a(f"s_add_u32 s32, s32, {OFF_H2P}")
    SD, ST = 33, 42
    for j in range(9):
        a(f"s_add_u32 s22, s19, {j}"); a("s_sub_u32 s23, s22, 9"); a("s_cmp_ge_u32 s22, 9"); a("s_cselect_b32 s22, s23, s22")
        a(f"s_mul_i32 s23, s22, {64*9216}"); a(f"s_add_u32 s{SD+j}, s28, s23")
        a("s_lshl_b32 s23, s22, 11"); a(f"s_add_u32 s{ST+j}, s32, s23")
    a("s_cmp_ge_u32 s16, 2")
    a("s_cselect_b32 s20, s14, s12"); a("s_cselect_b32 s21, s15, s13")
    srd(a, 24, 20, 576*9216)
    srd(a, 12, 4, 4608*1152)
    AF = 64; BR = AF + 4*NA; DV2A = BR + 16*PF
    def dma(st, i):
        a(f"s_add_u32 m0, s29, {(st % NSLOT)*SLOT + i*1024}")
        a(f"buffer_load_dwordx4 v{DV+i}, s[24:27], s{SD+st} offen lds", tag=("d", st))
    def tok(ks, b):
        rb = BR + 16 * (ks % PF) + 4*b
        a(f"buffer_load_dwordx4 a[{rb}:{rb+3}], v{VT+b}, s[8:11], s{ST + ks//2} offen offset:{(ks % 2)*1024} sc1", tag=("t", ks))
    def accr(mat, aa, b):
        if aa < 7: return ("v", 32*aa + 16*mat + 4*b)
        return ("a", 32*(aa-7) + 16*mat + 4*b)
    def acc(mat, aa, b):
        k, r = accr(mat, aa, b); return f"{k}[{r}:{r+3}]"
    def trd(n, q, seq):
        ks, aa, mat = seq[n]
        st, kk = divmod(ks, 2); slot = st % NSLOT
        off = mat*UPO + kk*9216 + aa*32 + q*2304
        r = AF + 4*(n % NA) + 2*q
        a(f"ds_read_b64_tr_b16 a[{r}:{r+1}], v{VA+slot} offset:{off}", tag=("a", n))
    for i in range(9): dma(0, i)
    def late_setup():
        for b in range(1, 4): a(f"v_add_u32 v{VT+b}, {18432*b}, v{VT}")
        a(f"v_lshrrev_b32 v2, 5, v{M}"); a("v_lshlrev_b32 v2, 4, v2")
        a(f"v_bfe_u32 v3, v{M}, 4, 1"); a("v_lshl_add_u32 v2, v3, 2, v2")
        a(f"v_bfe_u32 v3, v{M}, 2, 2"); a("v_add_u32 v2, v2, v3")
        a(f"v_mul_u32_u24 v{VA}, 288, v2")
        a(f"v_and_b32 v2, 3, v{M}"); a(f"v_lshl_add_u32 v{VA}, v2, 3, v{VA}")
        for sl in range(1, 4): a(f"v_add_u32 v{VA+sl}, {sl*SLOT}, v{VA}")
        a("s_mul_i32 s20, s31, 147456"); a("s_mul_i32 s21, s17, 9"); a("s_lshr_b32 s21, s21, 1"); a("s_lshl_b32 s21, s21, 10")
        a("s_add_u32 s20, s20, s21"); a(f"s_add_u32 s52, s20, {OFF_HM}")
        for b in range(1, 4): a(f"s_add_u32 s{52+b}, s52, {147456*b}")
        for b in range(4): a(f"s_add_u32 s{56+b}, s{52+b}, 4096")
        dma_voffsets(a, 10, 1152)
        for i in range(9): a(f"v_accvgpr_write_b32 a{DV2A+i}, v{10+i}")
        a("s_and_b32 s20, s2, 7"); a("s_lshr_b32 s21, s2, 3")
        a("s_and_b32 s5, s21, 3"); a("s_lshr_b32 s4, s21, 2")
        a("s_and_b32 s22, s20, 1"); a("s_lshl_b32 s22, s22, 3"); a("s_add_u32 s4, s4, s22")
        a("s_lshr_b32 s3, s20, 1")
        a(f"s_mul_i32 s60, s3, {1152*1152}"); a(f"s_mul_i32 s20, s16, {32*1152}"); a("s_add_u32 s60, s60, s20")
        a("s_mul_i32 s20, s5, 288"); a("s_add_u32 s60, s60, s20")
        a(f"s_add_u32 s61, s60, {128*1152}")
        a("s_mul_i32 s51, s16, 9216")
        a("s_lshl_b32 s30, s18, 5"); a("s_add_u32 s30, s30, s17"); a("s_mul_i32 s30, s30, 36864"); a("s_add_u32 s30, s30, s51")
        a(f"s_add_u32 s30, s30, {OFF_PART}"); a("s_add_u32 s32, s30, 4096"); a("s_add_u32 s28, s30, 8192")
        for q in range(4): a(f"v_mov_b32 v{246+q}, -1")
    a("s_cmp_eq_u32 s16, 3")
    a("s_cbranch_scc1 GG_W3")
    vm_w3 = [t for t in a.vm if t not in ("x", "m")]
    a(f"v_and_b32 v4, 15, v{M}")
    a(f"v_bfe_u32 v7, v{M}, 2, 2"); a("v_lshlrev_b32 v7, 5, v7")
    a(f"v_and_b32 v8, 3, v{M}"); a("v_lshl_add_u32 v7, v8, 3, v7")
    a("v_lshl_add_u32 v7, v5, 8, v7")
    a("v_add_u32 v7, s61, v7")
    a("v_subrev_u32 v8, s51, v7")
    a("v_add_u32 v7, s51, v7")
    a("v_mul_u32_u24 v9, 1152, v4"); a("v_lshl_add_u32 v9, v5, 4, v9")
    a("v_lshlrev_b32 v23, 4, v4"); a(f"v_add_u32 v23, {RED}, v23")
    a(f"v_lshl_add_u32 v22, v{M+1}, 2, v23")
    stamp_x(a, 1)
    a.wait_vm("x")
    stamp_x(a, 2)
    X = 24; F = 48
    for i in range(6):
        va = 7 if i < 3 else 8
        a(f"ds_read_b64_tr_b16 v[{X+4*i}:{X+4*i+1}], v{va} offset:{1024*i}", tag=("t", i))
        a(f"ds_read_b64_tr_b16 v[{X+4*i+2}:{X+4*i+3}], v{va} offset:{1024*i+128}", tag=("t", i))
    for i in range(6):
        a.wait_lg(("t", i))
        if i < 3: a(f"buffer_store_dwordx4 v[{X+4*i}:{X+4*i+3}], v9, s[8:11], s3 offen offset:{64*i} sc1", tag="st")
        for q in range(4): unpack(a, F+8*i+2*q, F+8*i+2*q+1, X+4*i+q)
    def xreduce(r, off):
        a(f"v_mov_b32 v10, v{r}")
        a(f"v_permlane32_swap_b32 v10, v{r}")
        a(f"v_add_f32 v{r}, v{r}, v10")
        a(f"v_mov_b32 v10, v{r}")
        a(f"v_permlane16_swap_b32 v10, v{r}")
        a(f"v_add_f32 v{r}, v{r}, v10")
        a(f"ds_write_b32 v22, v{r} offset:{off}")
        a.wait_all(vm=False)
        a("s_barrier")
        a(f"ds_read_b96 v[10:12], v23 offset:{off}")
        a.wait_all(vm=False)
        a("v_add_f32 v10, v10, v11"); a(f"v_add_f32 v{r}, v10, v12")
    for c in range(4): a(f"v_add_f32 v{14+c}, v{F+c}, v{F+4+c}")
    for i in range(8, 48, 4):
        for c in range(4): a(f"v_add_f32 v{14+c}, v{14+c}, v{F+i+c}")
    a("v_add_f32 v14, v14, v15"); a("v_add_f32 v16, v16, v17"); a("v_add_f32 v14, v14, v16")
    xreduce(14, 0)
    a(f"v_mul_f32 v14, {f32(1.0/576):#x}, v14")
    for i in range(0, 48, 2):
        a(f"v_sub_f32 v18, v{F+i}, v14"); a(f"v_sub_f32 v19, v{F+i+1}, v14")
        if i == 0: a("v_mul_f32 v15, v18, v18"); a("v_mul_f32 v16, v19, v19")
        else: a("v_fmac_f32 v15, v18, v18"); a("v_fmac_f32 v16, v19, v19")
    a("v_add_f32 v15, v15, v16")
    xreduce(15, 256)
    a(f"v_mul_f32 v15, {f32(1.0/576):#x}, v15")
    rnd1(a, 15)
    a(f"v_add_f32 v15, {f32(1e-5):#x}, v15")
    rnd1(a, 15)
    a("v_sqrt_f32 v15, v15")
    rnd1(a, 15)
    a("v_rcp_f32 v16, v15")
    rnd1(a, 14)
    stamp_x(a, 3)
    a.wait_vm("m")
    for i in range(3):
        for q in range(4):
            r0 = F+8*i+2*q; r1 = r0+1
            a(f"v_sub_f32 v{r0}, v{r0}, v14"); a(f"v_sub_f32 v{r1}, v{r1}, v14")
            rnd2(a, r0, r1, 17)
            a(f"v_mul_f32 v18, v{r0}, v16"); a(f"v_mul_f32 v19, v{r1}, v16")
            a(f"v_fma_f32 v{r0}, -v18, v15, v{r0}"); a(f"v_fma_f32 v{r1}, -v19, v15, v{r1}")
            a(f"v_fmac_f32 v18, v{r0}, v16"); a(f"v_fmac_f32 v19, v{r1}, v16")
            rnd2(a, 18, 19, 17)
            a(f"v_mul_f32 v18, v18, v{CB+8*i+2*q}"); a(f"v_mul_f32 v19, v19, v{CB+8*i+2*q+1}")
            rnd2(a, 18, 19, 17)
            a(f"v_add_f32 v18, v18, v{SB+8*i+2*q}"); a(f"v_add_f32 v19, v19, v{SB+8*i+2*q+1}")
            a(f"v_cvt_pk_bf16_f32 v{X+12+4*i+q}, v18, v19")
        a(f"buffer_store_dwordx4 v[{X+12+4*i}:{X+12+4*i+3}], v{VT}, s[8:11], s60 offen offset:{1024*i} sc1", tag="st")
    stamp_x(a, 4)
    a.wait_vm("st")
    a("s_barrier")
    stamp_x(a, 5)
    def code_pf(lab, n, vd):
        if EXP == "nocp": return
        a.label(lab)
        a("s_getpc_b64 s[0:1]")
        a(f"v_lshlrev_b32 v{vd}, 7, v{M}"); a("s_lshl_b32 s20, s16, 13"); a(f"v_add_u32 v{vd}, s20, v{vd}")
        for i in range(n):
            a.raw(f"    v_min_u32 v{vd+1}, GG_END-{lab}-8, v{vd}")
            a(f"global_load_dword v{vd+2}, v{vd+1}, s[0:1]")
            if i < n-1: a(f"v_add_u32 v{vd}, {8192*3}, v{vd}")
    code_pf("GG_CP0", 2, 2)
    late_setup()
    for i in range(9): dma(1, i)
    vm_main = list(a.vm)
    a("s_branch GG_R4")
    a.label("GG_W3"); a.hist = []; a.vm = vm_w3; a.lg = []
    late_setup()
    for i in range(9): dma(1, i)
    a("s_lshr_b32 s20, s2, 5"); a("s_lshl_b32 s20, s20, 7"); a("s_and_b32 s21, s2, 31"); a("s_lshl_b32 s21, s21, 2")
    a("s_add_u32 s20, s20, s21"); a(f"s_add_u32 s20, s20, {OFF_FLG + 12288}")
    a("s_lshl_b32 s21, s18, 7"); a(f"s_add_u32 s21, s21, {OFF_FLG + 12288}")
    a(f"v_lshlrev_b32 v3, 2, v{M}"); a("v_mov_b32 v4, 1")
    a("s_barrier"); a("s_barrier")
    a.wait_all()
    a("s_barrier")
    a("s_mov_b64 exec, 1")
    a("buffer_store_dword v4, v3, s[8:11], s20 offen sc1")
    a("s_mov_b64 exec, -1")
    poll(a, "GG_P0", 6, 3, 21, 32, 22)
    a.label("GG_R4"); a.hist = []; a.vm = vm_main; a.lg = []
    a("s_barrier")
    stamp_x(a, 6)
    stamp_m(a, 1)
    for b in range(4): tok(0, b)
    def slot2(st): return (st + 1) % NSLOT
    def dma2(st, i, so=None):
        a(f"s_add_u32 m0, s51, {slot2(st)*SLOT + i*1024}")
        a(f"buffer_load_dwordx4 v{DV+i}, s[12:15], s{so if so is not None else SD+st} offen lds", tag=("d2", st))
    def swapdv():
        for i in range(9): a(f"v_accvgpr_read_b32 v{DV+i}, a{DV2A+i}")
    NF = 18*18
    D = NA - 1
    TM = 4
    KM = 18 - TM
    base = [(ks, aa, mat) for ks in range(KM) for aa in range(9) for mat in range(2)]
    def barrier_at(st1): return min(36*st1, 18*KM) - D
    ops = []
    for st in range(2, 9):
        for i in range(9):
            ops.append((barrier_at(st) - 0.5 + 0.01*st, i, -1 if st <= 3 else 36*(st-2) - D, dma, (st, i)))
    for ks in range(1, 18):
        for b in range(4):
            ops.append((min(18*ks, 18*KM + 2*(ks - KM)), b, -1 if ks < PF else 18*(ks-PF+1), tok, (ks, b)))
    def poison(i):
        a(f"buffer_store_dwordx4 v[246:249], v{VT}, s[8:11], s{(30, 32, 28)[i//4]} offen offset:{(i % 4)*1024} sc1", tag="po")
    for i in range(9): ops.append((NF-1, i, 40 + 22*i, poison, (i,)))
    ops.append((NF+1, 0, 18*KM - D, swapdv, ()))
    for st in range(2):
        for i in range(9):
            ops.append((NF+2+st, i, (18*KM - D) if st == 0 else (18*KM + 2), dma2, (st, i, 60+st)))
    ops.sort(key=lambda o: (o[0], o[1]))
    T = 246
    def prod(aa, b, o):
        L = []
        (k_, g), (_, u) = accr(0, aa, b), accr(1, aa, b)
        if k_ == "a":
            for r in range(4):
                L.append(f"v_accvgpr_read_b32 v{32+r}, a{g+r}"); L.append(f"v_accvgpr_read_b32 v{36+r}, a{u+r}")
            g, u = 32, 36
        for q in range(4):
            L.append(f"v_mul_f32 v{g+q}, v{g+q}, v{u+q}")
        for q in range(2):
            L.append(f"v_cvt_pk_bf16_f32 v{o+q}, v{g+2*q}, v{g+2*q+1}")
        return L
    def epi_group(gr, par, cnt0):
        L = []
        for b in range(4):
            o = T + 4*((cnt0 + b) % 2)
            Lf = gr[0] + par; kap = Lf >> 1
            so = (52 if kap < 4 else 56) + b; im = (kap % 4)*1024
            if len(gr) == 2:
                L += prod(gr[0], b, o) + prod(gr[1], b, o+2)
                L.append(f"buffer_store_dwordx4 v[{o}:{o+3}], v{VT}, s[8:11], s{so} offen offset:{im}" + HS)
            else:
                L += prod(gr[0], b, o)
                L.append(f"buffer_store_dwordx2 v[{o}:{o+1}], v{VT}, s[8:11], s{so} offen offset:{im + 8*(Lf & 1)}" + HS)
        return L
    def run(seq, n0, n1, ops, done_at=None):
        epq = []
        seen_t = set()
        for n in range(n0, n1):
            ks, aa, mat = seq[n]
            for st1 in range(1, 9):
                if barrier_at(st1) == n:
                    assert not any(o[3] is dma and o[4][0] == st1 for o in ops)
                    a.wait_vm(("d", st1))
            if any(barrier_at(st1) == n for st1 in range(1, 9)) or n == 18*KM + 2: a("s_barrier")
            if EXP == "g1st" and n in (31, 103, 175, 247, 288): stamp(a, {31: 2, 103: 3, 175: 4, 247: 5, 288: 6}[n])
            assert not any(o[3] is tok and o[4][0] == ks for o in ops)
            a.wait_vm(("t", ks))
            a.wait_lg(("a", n))
            ar = AF + 4*(n % NA)
            for b in range(4):
                rb = BR + 16 * (ks % PF) + 4*b
                c = acc(mat, aa, b)
                a(f"v_mfma_f32_16x16x32_bf16 {c}, a[{ar}:{ar+3}], a[{rb}:{rb+3}], {c if ks else 0}")
                if b < 2 and n + D < NF: trd(n + D, b, seq)
                issued = False
                if b == 2 and (n % 3 != 2 or n >= 18*KM):
                    for o in ops:
                        if o[2] <= n:
                            if o[3] is swapdv: assert not any(p[3] is dma for p in ops)
                            if o[3] is poison: assert not epq
                            ops.remove(o); o[3](*o[4]); issued = True; break
                for _ in range(1 if b < 2 else (0 if issued else 2)):
                    if epq: a(epq.pop(0), tag="hm")
            if done_at and n in done_at: epq += done_at[n]
        for ins in epq: a(ins, tag="hm")
        assert n1 < NF or not ops
    for n in range(D):
        trd(n, 0, base); trd(n, 1, base)
    NC = 18*KM - D - D
    run(base + [None]*NF, 0, NC, ops)
    a("s_bitcmp1_b32 s17, 0")
    a("s_cbranch_scc1 GG_ODD")
    h = list(a.hist); vm = list(a.vm); lg = list(a.lg)
    for par in range(2):
        groups = [(0, 1), (2, 3), (4, 5), (6, 7), (8,)] if par == 0 else [(1, 2), (3, 4), (5, 6), (7, 8), (0,)]
        seq = list(base); done = {}; cnt = 0
        for gr in groups:
            for aa in gr:
                seq += [(ks, aa, mat) for ks in range(KM, 18) for mat in range(2)]
            done[min(len(seq) + 1, NF - 1)] = done.get(min(len(seq) + 1, NF - 1), []) + epi_group(gr, par, cnt); cnt += 4
        if par == 1:
            a.label("GG_ODD"); a.hist = h; a.vm = vm; a.lg = lg
        run(seq, NC, NF, list(ops), done)
        if par == 0: a("s_branch GG_FIN")
    a.label("GG_FIN"); a.hist = []
    if EXP == "g1st":
        stamp(a, 7); stamp_store(a, 8, 4); a("s_mov_b64 exec, -1")
    stamp_m(a, 2)
    a("s_lshl_b32 s20, s18, 2"); a("s_lshr_b32 s21, s17, 3"); a("s_add_u32 s20, s20, s21"); a("s_lshl_b32 s20, s20, 7")
    a("s_and_b32 s21, s17, 7"); a("s_lshl_b32 s21, s21, 2"); a("s_add_u32 s20, s20, s21"); a(f"s_add_u32 s20, s20, {OFF_FLG}")
    a("s_lshr_b32 s21, s4, 1"); a("s_lshl_b32 s21, s21, 2"); a("s_add_u32 s21, s21, s3"); a("s_lshl_b32 s21, s21, 7"); a(f"s_add_u32 s21, s21, {OFF_FLG}")
    ST0, ST1 = 42, 52
    a("s_lshl_b32 s31, s4, 3"); a("s_lshl_b32 s30, s16, 1"); a("s_add_u32 s31, s31, s30")
    a("s_mul_i32 s31, s31, 147456"); a("s_mul_i32 s30, s3, 36864"); a("s_add_u32 s31, s31, s30")
    a(f"s_add_u32 s31, s31, {OFF_HM}")
    for j in range(9):
        a(f"s_add_u32 s{SD+j}, s60, {j*128*1152}")
    for j in range(9):
        a(f"s_add_u32 s{ST0+j}, s31, {j*4096}")
    a(f"v_add_u32 v{VT+1}, 147456, v{VT}")
    a(f"v_lshrrev_b32 v2, 2, v{M}")
    a(f"v_mul_u32_u24 v{VA}, 288, v2")
    a(f"v_and_b32 v2, 3, v{M}"); a(f"v_lshl_add_u32 v{VA}, v2, 3, v{VA}")
    for sl in range(1, 4): a(f"v_add_u32 v{VA+sl}, {sl*SLOT}, v{VA}")
    a(f"v_lshlrev_b32 v{VT+2}, 2, v{M}")
    a(f"v_mov_b32 v{VT+3}, 1")
    a.wait_all()
    stamp_m(a, 3)
    a("s_barrier")
    a("s_cmp_lg_u32 s16, 0")
    a("s_cbranch_scc1 GG_W1")
    a("s_mov_b64 exec, 1")
    a(f"buffer_store_dword v{VT+3}, v{VT+2}, s[8:11], s20 offen sc1")
    a("s_mov_b64 exec, -1")
    poll(a, "GG_P1", 2, VT+2, 21, 8, 22)
    a.label("GG_W1"); a.hist = []; a.vm = []
    for st in (2, 3):
        for i in range(9): dma2(st, i)
    a("s_barrier")
    stamp_m(a, 4)
    a("s_and_b32 s22, s4, 1"); a("s_lshl_b32 s22, s22, 2"); a("s_add_u32 s22, s22, s5"); a("s_lshl_b32 s22, s22, 2")
    a("s_lshr_b32 s23, s4, 1"); a("s_lshl_b32 s23, s23, 7"); a("s_add_u32 s23, s23, s22")
    a("s_lshl_b32 s28, s3, 5"); a("s_add_u32 s28, s28, s23"); a("s_add_u32 s28, s28, s16")
    a("s_mul_i32 s28, s28, 9216"); a(f"s_add_u32 s28, s28, {OFF_PART}")
    for q in range(1, 3): a(f"s_add_u32 s{28+q}, s28, {4096*q}")
    a("s_add_u32 s23, s23, s3")
    a("s_lshl_b32 s17, s16, 11"); a(f"s_add_u32 s17, s17, {OFF_PART}")
    for i in range(1, 4):
        a(f"s_add_u32 s18, s3, {i}"); a("s_and_b32 s18, s18, 3"); a("s_lshl_b32 s18, s18, 5"); a("s_add_u32 s18, s18, s23")
        a("s_mul_i32 s18, s18, 9216"); a(f"s_add_u32 s{52+i}, s18, s17")
    a("s_lshl_b32 s56, s4, 7"); a("s_lshl_b32 s18, s3, 5"); a("s_add_u32 s56, s56, s18"); a("s_mul_i32 s56, s56, 1152")
    a("s_mul_i32 s18, s5, 288"); a("s_add_u32 s56, s56, s18"); a("s_lshl_b32 s18, s16, 6"); a("s_add_u32 s56, s56, s18")
    a("s_mul_i32 s57, s5, 576"); a("s_lshl_b32 s18, s16, 7"); a("s_add_u32 s57, s57, s18"); a(f"s_add_u32 s57, s57, {OFF_MODF + 4608}")
    a(f"s_add_u32 s58, s56, {OFF_X1R}")
    a("s_lshl_b32 s59, s16, 12"); a(f"s_add_u32 s59, s59, {2*SLOT}")
    if EXP == "localwb": a("buffer_wbl2 sc1")
    stamp_g(a, 1)
    PF2 = 12; AF2 = 72; BR2 = 108
    def tok2(ks, b):
        if EXP == "g2not" and ks >= 12: return
        rb = BR2 + 8 * (ks % PF2) + 4*b
        a(f"buffer_load_dwordx4 v[{rb}:{rb+3}], v{VT+b}, s[8:11], s{ST0 + ks//4} offen offset:{(ks % 4)*1024}" + ("" if EXP in ("g2plain", "localp") else " sc1"), tag=("t2", ks))
    def trd2(n, q):
        ks, aa = divmod(n, 9); st, kk = divmod(ks, 4)
        off = kk*9216 + aa*32 + q*16*288
        a(f"ds_read_b64_tr_b16 v[{AF2+4*aa+2*q}:{AF2+4*aa+2*q+1}], v{VA+slot2(st)} offset:{off}", tag=("a2", n))
    def dm0(st, i): a(f"s_add_u32 m0, s51, {slot2(st)*SLOT + i*1024}")
    def dld(st, i):
        if EXP == "g2now": return
        a(f"buffer_load_dwordx4 v{DV+i}, s[12:15], s{SD+st} offen lds", tag=("d2", st))
    PRO2 = 4
    for ks in range(PRO2):
        for b in range(2): tok2(ks, b)
    N2 = 36*9; D2 = 8
    ops = []
    for st in range(4, 9):
        for i in range(9): ops.append((36*st - D2 - 0.5, i, 36*(st-2) - D2, dld, (st, i)))
    for ks in range(PRO2, 36):
        for b in range(2): ops.append((9*ks, b, -1 if ks < PF2 else 9*(ks-PF2+1), tok2, (ks, b)))
    ops.sort(key=lambda o: (o[0], o[1]))
    for n in range(D2):
        trd2(n, 0); trd2(n, 1)
    armed = None
    for n in range(N2):
        ks, aa = divmod(n, 9)
        if (n + D2) % 36 == 0 and n + D2 < N2:
            st1 = (n + D2)//36
            assert not any(o[3] is dld and o[4][0] == st1 for o in ops) and not (armed and armed[0] == st1)
            a.wait_vm(("d2", st1))
            a("s_barrier")
        if aa == 0:
            assert not any(o[3] is tok2 and o[4][0] == ks for o in ops)
            a.wait_vm(("t2", ks))
            if ks in (0, 6, 12, 24): stamp_g(a, {0: 2, 6: 3, 12: 4, 24: 5}[ks])
        if n == 200: code_pf("GG_CP1", 1, 204)
        if n % 2 == 0: a.wait_lg(("a2", min(n+1, N2-1)))
        for b in range(2):
            t = 2*aa + b; rb = BR2 + 8 * (ks % PF2) + 4*b
            c = f"v[{4*t}:{4*t+3}]"
            a(f"v_mfma_f32_16x16x32_bf16 {c}, v[{AF2+4*aa}:{AF2+4*aa+3}], v[{rb}:{rb+3}], {c if ks else 0}")
            if n + D2 < N2: trd2(n + D2, b)
            if b == 0 or n % 2 == 1:
                if armed:
                    dld(*armed); armed = None
                else:
                    for o in ops:
                        if o[2] <= n:
                            ops.remove(o)
                            if o[3] is dld: dm0(*o[4]); armed = o[4]
                            else: o[3](*o[4])
                            break
    assert not ops and not armed
    stamp_m(a, 5)
    a(f"v_add_u32 v{VA}, {2*SLOT}, v{VT}")
    stamp_g(a, 6)
    OWN = 2 * SLOT
    a("s_cmp_eq_u32 s16, s3")
    a("s_cbranch_scc1 GG_OWN")
    h = list(a.hist)
    for aa in range(9):
        o = 72 + 4*(aa % 3)
        for q in range(4): a(f"v_cvt_pk_bf16_f32 v{o+q}, v{8*aa+2*q}, v{8*aa+2*q+1}")
        a(f"buffer_store_dwordx4 v[{o}:{o+3}], v{VT}, s[8:11], s{28 + aa//4} offen offset:{(aa % 4)*1024} sc1")
    a("s_branch GG_PUB")
    a.label("GG_OWN"); a.hist = h
    for t in range(18):
        a(f"ds_write_b128 v{VA}, v[{4*t}:{4*t+3}] offset:{1024*t}")
    a.label("GG_PUB"); a.hist = []
    a(f"v_and_b32 v140, 15, v{M}"); a("v_mul_u32_u24 v144, 1152, v140")
    a(f"v_lshrrev_b32 v140, 4, v{M}"); a("v_lshl_add_u32 v144, v140, 3, v144")
    a("v_lshlrev_b32 v145, 4, v140")
    a(f"v_add_u32 v146, {16*1152}, v144")
    a(f"v_add_u32 v147, s59, v{VT}")
    for i in range(3):
        for b in range(2):
            a(f"buffer_load_dwordx2 v[{108+2*(2*i+b)}:{109+2*(2*i+b)}], v{144 if b == 0 else 146}, s[8:11], s58 offen offset:{32*i} sc1")
        a(f"buffer_load_dwordx4 v[{120+4*i}:{123+4*i}], v145, s[8:11], s57 offen offset:{64*i}")
    for q in range(3): a(f"s_mov_b32 s{48+q}, s{53+q}")
    a("s_mov_b32 s34, s56")
    srd(a, 24, 62, 2048*1152)
    a.wait_all(vm=False)
    stamp_m(a, 6)
    a("s_barrier")
    for i in range(6):
        a(f"ds_read_b128 v[{4*i}:{4*i+3}], v147 offset:{1024*i}")
    R = 24
    a("s_mov_b32 s22, 0x8000")
    a.label("GG_P2")
    for i in range(3):
        for q in range(3):
            r = R + 4*(3*i + q)
            a(f"buffer_load_dwordx4 v[{r}:{r+3}], v{VT}, s[8:11], s{48+q} offen offset:{i*1024} sc1")
    a("s_waitcnt vmcnt(0)"); a.vm = []
    a(f"v_max3_u32 v60, v{R}, v{R+1}, v{R+2}")
    a(f"v_max3_u32 v61, v{R+3}, v{R+4}, v{R+5}")
    for r in range(R+6, R+36, 4):
        if r + 3 < R + 36:
            a(f"v_max3_u32 v60, v60, v{r}, v{r+1}"); a(f"v_max3_u32 v61, v61, v{r+2}, v{r+3}")
        else:
            a(f"v_max3_u32 v60, v60, v{r}, v{r+1}")
    a("v_max_u32 v60, v60, v61")
    a("v_cmp_eq_u32 vcc, -1, v60")
    a("s_sub_u32 s22, s22, 1")
    a("s_cbranch_scc1 GG_P2X")
    a("s_cbranch_vccnz GG_P2")
    a.label("GG_P2X"); a.hist = []
    a.wait_all(vm=False)
    for i in range(3):
        for b in range(2):
            r = 4*(2*i + b)
            for q in range(3):
                for e in range(2):
                    unpack(a, 60, 61, R + 4*(3*i+q) + 2*b + e)
                    a(f"v_add_f32 v{r+2*e}, v{r+2*e}, v60"); a(f"v_add_f32 v{r+2*e+1}, v{r+2*e+1}, v61")
            xr = 108 + 2*(2*i + b)
            for e in range(0, 4, 2):
                rnd2(a, r+e, r+e+1, 62)
                a(f"v_mul_f32 v{r+e}, v{r+e}, v{120+4*i+e}"); a(f"v_mul_f32 v{r+e+1}, v{r+e+1}, v{120+4*i+e+1}")
                rnd2(a, r+e, r+e+1, 62)
                unpack(a, 62, 63, xr+e//2)
                a(f"v_add_f32 v{r+e}, v{r+e}, v62"); a(f"v_add_f32 v{r+e+1}, v{r+e+1}, v63")
                a(f"v_cvt_pk_bf16_f32 v{xr+e//2}, v{r+e}, v{r+e+1}")
            a(f"buffer_store_dwordx2 v[{xr}:{xr+1}], v{144 if b == 0 else 146}, s[24:27], s34 offen offset:{32*i}")
    if STAMP and EXP != "g1st":
        a.wait_all(); stamp(a, 7); stamp_store(a, 8, 4)
    a.label("GG_END")
    a("s_endpgm")
    return a.text(), dict(vgpr=256+DV2A+12, sgpr=64, accum=256), f"grid=(256,1,1) block=(256,1,1) lds={NSLOT*SLOT}"

def voffs(a, base, n, ppr, pitch, t0, t1, swap23=False):
    magic = -(-65536 // ppr)
    assert all((P * magic) >> 16 == P // ppr for P in range(64*n))
    for i in range(n):
        a(f"v_add_u32 v{t0}, {64*i}, v1")
        a(f"v_mul_u32_u24 v{t1}, {magic}, v{t0}")
        a(f"v_lshrrev_b32 v{t1}, 16, v{t1}")
        a(f"v_mul_u32_u24 v{base+i}, {ppr}, v{t1}")
        a(f"v_sub_u32 v{t0}, v{t0}, v{base+i}")
        if swap23:
            a(f"v_lshrrev_b32 v{base+i}, 1, v{t1}")
            a(f"v_xor_b32 v{base+i}, v{base+i}, v{t1}")
            a(f"v_and_b32 v{base+i}, 4, v{base+i}")
            a(f"v_mul_u32_u24 v{base+i}, 3, v{base+i}")
            a(f"v_xor_b32 v{t1}, v{t1}, v{base+i}")
        a(f"v_mul_u32_u24 v{base+i}, {pitch}, v{t1}")
        a(f"v_lshl_add_u32 v{base+i}, v{t0}, 4, v{base+i}")

def kgg2():
    a = Asm()
    SLOT = 36864; NSLOT = 4
    S1 = 20480; NS1 = 6; PF = 4; NA = 6
    L2B = NS1*S1; RED = L2B + 18432
    a("s_load_dwordx2 s[6:7], s[0:1], 136")
    a("s_load_dwordx4 s[12:15], s[0:1], 80")
    a("s_load_dwordx2 s[4:5], s[0:1], 96")
    a("s_load_dwordx2 s[62:63], s[0:1], 120")
    a("s_cmp_ge_u32 s2, 256")
    a("s_cbranch_scc1 GG_END")
    stamp(a, 0)
    M = 224; DV = 226; DV2 = 231; VT = 240; VP = 244; VSG = 247; T = 250; VA = 244
    a(f"v_and_b32 v{M}, 63, v0")
    a(f"v_lshrrev_b32 v{M+1}, 6, v0")
    a(f"v_readfirstlane_b32 s16, v{M+1}")
    a(f"v_lshlrev_b32 v{VT}, 4, v{M}")
    a(f"v_lshrrev_b32 v5, 4, v{M}")
    a("v_lshlrev_b32 v6, 5, v5")
    a("s_lshr_b32 s17, s2, 1"); a("s_mul_i32 s17, s17, 18432")
    a("s_and_b32 s18, s2, 1")
    a("s_mul_i32 s19, s16, 6144")
    a("s_add_u32 s20, s17, s19"); a(f"s_add_u32 s20, s20, {OFF_X1T}"); a("s_add_u32 s21, s20, 4096")
    a("s_mul_i32 s22, s16, 768"); a("s_mul_i32 s23, s18, 384"); a("s_add_u32 s22, s22, s23"); a(f"s_add_u32 s22, s22, {OFF_MODF}")
    a(f"s_add_u32 s19, s19, {L2B}")
    a("s_mul_i32 s3, s16, 384"); a("s_mul_i32 s23, s18, 192"); a("s_add_u32 s3, s3, s23"); a("s_add_u32 s3, s3, s17"); a(f"s_add_u32 s3, s3, {OFF_X1R}")
    a("s_mul_i32 s51, s18, 3072")
    a("s_mul_i32 s60, s16, 6144"); a("s_add_u32 s60, s60, s51"); a("s_add_u32 s60, s60, s17"); a(f"s_add_u32 s60, s60, {OFF_H2P}")
    a("s_mov_b32 s61, s19")
    a.wait_all()
    srd(a, 8, 6, WS_REC)
    a("s_cmp_eq_u32 s16, 3")
    a("s_cbranch_scc1 GG_S1")
    a("s_mov_b32 m0, s19")
    for i in range(4): a(f"buffer_load_dwordx4 v{VT}, s[8:11], s20 offen offset:{1024*i} lds", tag="x")
    a("s_add_u32 m0, s19, 4096")
    for i in range(2): a(f"buffer_load_dwordx4 v{VT}, s[8:11], s21 offen offset:{1024*i} lds", tag="x")
    SB = 100; CB = 124
    for i in range(3):
        for h in range(2):
            a(f"buffer_load_dwordx4 v[{SB+8*i+4*h}:{SB+8*i+4*h+3}], v6, s[8:11], s22 offen offset:{128*i+16*h}", tag="m")
            a(f"buffer_load_dwordx4 v[{CB+8*i+4*h}:{CB+8*i+4*h+3}], v6, s[8:11], s22 offen offset:{2304+128*i+16*h}", tag="m")
    a.label("GG_S1")
    a(f"v_mov_b32 v1, v{M}")
    a("s_and_b32 s17, s2, 7"); a("s_lshr_b32 s18, s2, 3")
    a("s_and_b32 s19, s18, 3"); a("s_lshl_b32 s17, s17, 2"); a("s_add_u32 s17, s17, s19")
    a("s_lshr_b32 s18, s18, 2")
    a("s_lshl_b32 s19, s19, 1"); a("s_add_u32 s19, s19, s18")
    a("s_sub_u32 s20, s19, 9"); a("s_cmp_ge_u32 s19, 9"); a("s_cselect_b32 s19, s20, s19")
    voffs(a, DV, 5, 10, 9216, 254, 255, swap23=True)
    a("s_and_b32 s22, s16, 1"); a("s_lshr_b32 s23, s16, 1")
    a(f"s_mul_i32 s28, s22, {32*9216}"); a("s_mul_i32 s30, s17, 288"); a("s_add_u32 s28, s28, s30")
    a("s_and_b32 s30, s17, 1"); a("s_lshl_b32 s30, s30, 7"); a("s_add_u32 s28, s28, s30")
    a("s_mul_i32 s29, s23, 10240"); a("s_mul_i32 s30, s22, 5120"); a("s_add_u32 s29, s29, s30")
    a("s_lshl_b32 s31, s18, 4"); a("s_lshl_b32 s30, s16, 2"); a("s_add_u32 s31, s31, s30")
    a("s_mul_i32 s32, s31, 18432"); a(f"s_add_u32 s32, s32, {OFF_H2P}")
    SD, ST = 33, 42
    for j in range(9):
        a(f"s_add_u32 s22, s19, {j}"); a("s_sub_u32 s23, s22, 9"); a("s_cmp_ge_u32 s22, 9"); a("s_cselect_b32 s22, s23, s22")
        a(f"s_mul_i32 s23, s22, {64*9216}"); a(f"s_add_u32 s{SD+j}, s28, s23")
        a("s_lshl_b32 s23, s22, 11"); a(f"s_add_u32 s{ST+j}, s32, s23")
    a("s_cmp_ge_u32 s16, 2")
    a("s_cselect_b32 s20, s14, s12"); a("s_cselect_b32 s21, s15, s13")
    srd(a, 24, 20, 576*9216)
    srd(a, 12, 4, 4608*1152)
    AF = 64; BR = AF + 4*NA; PO = BR + 16*PF
    def dma(st, i):
        a(f"s_add_u32 m0, s29, {(st % NS1)*S1 + i*1024}")
        a(f"buffer_load_dwordx4 v{DV+i}, s[24:27], s{SD + st % 9} offen lds", tag=("d", st))
    def tok(ks, b):
        rb = BR + 16 * (ks % PF) + 4*b
        a(f"buffer_load_dwordx4 a[{rb}:{rb+3}], v{VT+b}, s[8:11], s{ST + (ks % 18)//2} offen offset:{(ks % 2)*1024} sc1", tag=("t", ks))
    def accr(ps, mat, pos, b):
        if ps == 0: return ("v", 32*pos + 16*mat + 4*b)
        if pos < 3: return ("v", 128 + 32*pos + 16*mat + 4*b)
        return ("a", 32*(pos-3) + 16*mat + 4*b)
    seq = [(ks, pos, mat) for ks in range(18) for pos in range(4) for mat in range(2)] + \
          [(ks, pos, mat) for ks in range(18, 36) for pos in range(5) for mat in range(2)]
    first = {}
    for n, (ks, _, _) in enumerate(seq): first.setdefault(ks, n)
    first[36] = len(seq)
    def trd(n, q):
        ks, pos, mat = seq[n]
        st, kk = divmod(ks, 2); slot = st % NS1
        off = (slot & 1)*S1 + mat*10240 + kk*5120 + q*1280 + (32*pos if pos < 4 else 0)
        r = AF + 4*(n % NA) + 2*q
        a(f"ds_read_b64_tr_b16 a[{r}:{r+1}], v{(VP if pos < 4 else VSG) + (slot >> 1)} offset:{off}", tag=("a", n))
    for st in range(2):
        for i in range(5): dma(st, i)
    def late_setup():
        for b in range(1, 4): a(f"v_add_u32 v{VT+b}, {18432*b}, v{VT}")
        a(f"v_lshrrev_b32 v2, 5, v{M}"); a("v_lshlrev_b32 v2, 4, v2")
        a(f"v_bfe_u32 v3, v{M}, 4, 1"); a("v_lshl_add_u32 v2, v3, 2, v2")
        a(f"v_bfe_u32 v3, v{M}, 2, 2"); a("v_add_u32 v2, v2, v3")
        a("v_mul_u32_u24 v2, 160, v2")
        a(f"v_and_b32 v3, 3, v{M}"); a("v_lshl_add_u32 v2, v3, 3, v2")
        a("s_and_b32 s19, s17, 1")
        a("s_lshl_b32 s20, s19, 5"); a(f"v_add_u32 v{VP}, s20, v2")
        a("s_lshl_b32 s20, s19, 7"); a("s_sub_u32 s20, 128, s20"); a(f"v_add_u32 v{VSG}, s20, v2")
        for sl in range(1, 3):
            a(f"v_add_u32 v{VP+sl}, {2*sl*S1}, v{VP}"); a(f"v_add_u32 v{VSG+sl}, {2*sl*S1}, v{VSG}")
        a("s_mul_i32 s52, s31, 147456"); a(f"s_add_u32 s52, s52, {OFF_HM}")
        for b in range(1, 4): a(f"s_add_u32 s{52+b}, s52, {147456*b}")
        a("s_mul_i32 s20, s17, 9")
        a("s_mul_i32 s21, s19, 5"); a("s_add_u32 s21, s21, s20"); a("s_lshl_b32 s21, s21, 9")
        a("s_mul_i32 s22, s19, 3"); a("s_sub_u32 s22, s20, s22"); a("s_add_u32 s22, s22, 4"); a("s_lshl_b32 s22, s22, 9")
        a("s_mul_i32 s23, s19, 9"); a("s_sub_u32 s23, s20, s23"); a("s_add_u32 s23, s23, 8"); a("s_lshl_b32 s23, s23, 9")
        a("s_lshl_b32 s20, s19, 3"); a("s_add_u32 s23, s23, s20")
        voffs(a, DV2, 9, 18, 1152, 254, 255)
        a("s_and_b32 s20, s2, 7"); a("s_lshr_b32 s28, s2, 3")
        a("s_and_b32 s5, s28, 3"); a("s_lshr_b32 s4, s28, 2")
        a("s_and_b32 s28, s20, 1"); a("s_lshl_b32 s28, s28, 3"); a("s_add_u32 s4, s4, s28")
        a("s_lshr_b32 s3, s20, 1")
        a(f"s_mul_i32 s61, s3, {1152*1152}"); a("s_mul_i32 s20, s5, 288"); a("s_add_u32 s61, s61, s20")
        a("s_lshr_b32 s20, s16, 1"); a("s_mul_i32 s20, s20, 5"); a("s_add_u32 s20, s20, s16"); a(f"s_mul_i32 s20, s20, {32*1152}")
        a("s_add_u32 s60, s61, s20")
        a("s_mul_i32 s51, s16, 9216")
        a("s_lshl_b32 s30, s18, 5"); a("s_add_u32 s30, s30, s17"); a("s_mul_i32 s30, s30, 36864"); a("s_add_u32 s30, s30, s51")
        a(f"s_add_u32 s30, s30, {OFF_PART}"); a("s_add_u32 s31, s30, 4096"); a("s_add_u32 s32, s30, 8192")
        for q in range(4): a(f"v_accvgpr_write_b32 a{PO+q}, -1")
        a("s_lshl_b32 s56, s18, 2"); a("s_lshr_b32 s20, s17, 3"); a("s_add_u32 s56, s56, s20"); a("s_lshl_b32 s56, s56, 7")
        a("s_and_b32 s20, s17, 7"); a("s_lshl_b32 s20, s20, 2"); a("s_add_u32 s56, s56, s20"); a(f"s_add_u32 s56, s56, {OFF_FLG}")
        a("s_add_u32 s57, s56, 4096")
        a("s_lshr_b32 s58, s4, 1"); a("s_lshl_b32 s58, s58, 2"); a("s_add_u32 s58, s58, s3"); a("s_lshl_b32 s58, s58, 7"); a(f"s_add_u32 s58, s58, {OFF_FLG}")
        a("s_add_u32 s59, s58, 4096")
        a("s_lshl_b32 s28, s19, 8"); a("s_sub_u32 s28, 128, s28")
    a("s_cmp_eq_u32 s16, 3")
    a("s_cbranch_scc1 GG_W3")
    vm_w3 = [t for t in a.vm if t not in ("x", "m")]
    a(f"v_and_b32 v4, 15, v{M}")
    a(f"v_bfe_u32 v7, v{M}, 2, 2"); a("v_lshlrev_b32 v7, 5, v7")
    a(f"v_and_b32 v8, 3, v{M}"); a("v_lshl_add_u32 v7, v8, 3, v7")
    a("v_lshl_add_u32 v7, v5, 8, v7")
    a("v_add_u32 v7, s61, v7")
    a("v_subrev_u32 v8, s51, v7")
    a("v_add_u32 v7, s51, v7")
    a("v_mul_u32_u24 v9, 1152, v4"); a("v_lshl_add_u32 v9, v5, 4, v9")
    a("v_lshlrev_b32 v23, 4, v4"); a(f"v_add_u32 v23, {RED}, v23")
    a(f"v_lshl_add_u32 v22, v{M+1}, 2, v23")
    stamp_x(a, 1)
    a.wait_vm("x")
    stamp_x(a, 2)
    X = 24; F = 48
    for i in range(6):
        va = 7 if i < 3 else 8
        a(f"ds_read_b64_tr_b16 v[{X+4*i}:{X+4*i+1}], v{va} offset:{1024*i}", tag=("t", i))
        a(f"ds_read_b64_tr_b16 v[{X+4*i+2}:{X+4*i+3}], v{va} offset:{1024*i+128}", tag=("t", i))
    for i in range(6):
        a.wait_lg(("t", i))
        if i < 3: a(f"buffer_store_dwordx4 v[{X+4*i}:{X+4*i+3}], v9, s[8:11], s3 offen offset:{64*i} sc1", tag="st")
        for q in range(4): unpack(a, F+8*i+2*q, F+8*i+2*q+1, X+4*i+q)
    def xreduce(r, off):
        a(f"v_mov_b32 v10, v{r}")
        a(f"v_permlane32_swap_b32 v10, v{r}")
        a(f"v_add_f32 v{r}, v{r}, v10")
        a(f"v_mov_b32 v10, v{r}")
        a(f"v_permlane16_swap_b32 v10, v{r}")
        a(f"v_add_f32 v{r}, v{r}, v10")
        a(f"ds_write_b32 v22, v{r} offset:{off}")
        a.wait_all(vm=False)
        a("s_barrier")
        a(f"ds_read_b96 v[10:12], v23 offset:{off}")
        a.wait_all(vm=False)
        a("v_add_f32 v10, v10, v11"); a(f"v_add_f32 v{r}, v10, v12")
    for c in range(4): a(f"v_add_f32 v{14+c}, v{F+c}, v{F+4+c}")
    for i in range(8, 48, 4):
        for c in range(4): a(f"v_add_f32 v{14+c}, v{14+c}, v{F+i+c}")
    a("v_add_f32 v14, v14, v15"); a("v_add_f32 v16, v16, v17"); a("v_add_f32 v14, v14, v16")
    xreduce(14, 0)
    a(f"v_mul_f32 v14, {f32(1.0/576):#x}, v14")
    for i in range(0, 48, 2):
        a(f"v_sub_f32 v18, v{F+i}, v14"); a(f"v_sub_f32 v19, v{F+i+1}, v14")
        if i == 0: a("v_mul_f32 v15, v18, v18"); a("v_mul_f32 v16, v19, v19")
        else: a("v_fmac_f32 v15, v18, v18"); a("v_fmac_f32 v16, v19, v19")
    a("v_add_f32 v15, v15, v16")
    xreduce(15, 256)
    a(f"v_mul_f32 v15, {f32(1.0/576):#x}, v15")
    rnd1(a, 15)
    a(f"v_add_f32 v15, {f32(1e-5):#x}, v15")
    rnd1(a, 15)
    a("v_sqrt_f32 v15, v15")
    rnd1(a, 15)
    a("v_rcp_f32 v16, v15")
    rnd1(a, 14)
    stamp_x(a, 3)
    a.wait_vm("m")
    for i in range(3):
        for q in range(4):
            r0 = F+8*i+2*q; r1 = r0+1
            a(f"v_sub_f32 v{r0}, v{r0}, v14"); a(f"v_sub_f32 v{r1}, v{r1}, v14")
            rnd2(a, r0, r1, 17)
            a(f"v_mul_f32 v18, v{r0}, v16"); a(f"v_mul_f32 v19, v{r1}, v16")
            a(f"v_fma_f32 v{r0}, -v18, v15, v{r0}"); a(f"v_fma_f32 v{r1}, -v19, v15, v{r1}")
            a(f"v_fmac_f32 v18, v{r0}, v16"); a(f"v_fmac_f32 v19, v{r1}, v16")
            rnd2(a, 18, 19, 17)
            a(f"v_mul_f32 v18, v18, v{CB+8*i+2*q}"); a(f"v_mul_f32 v19, v19, v{CB+8*i+2*q+1}")
            rnd2(a, 18, 19, 17)
            a(f"v_add_f32 v18, v18, v{SB+8*i+2*q}"); a(f"v_add_f32 v19, v19, v{SB+8*i+2*q+1}")
            a(f"v_cvt_pk_bf16_f32 v{X+12+4*i+q}, v18, v19")
        a(f"buffer_store_dwordx4 v[{X+12+4*i}:{X+12+4*i+3}], v{VT}, s[8:11], s60 offen offset:{1024*i} sc1", tag="st")
    a.wait_vm("st")
    a("s_barrier")
    late_setup()
    for st in (2, 3):
        for i in range(5): dma(st, i)
    vm_main = list(a.vm)
    a("s_branch GG_R4")
    a.label("GG_W3"); a.hist = []; a.vm = vm_w3; a.lg = []
    for st in (2, 3):
        for i in range(5): dma(st, i)
    late_setup()
    a("s_lshr_b32 s20, s2, 5"); a("s_lshl_b32 s20, s20, 7"); a("s_and_b32 s0, s2, 31"); a("s_lshl_b32 s0, s0, 2")
    a("s_add_u32 s20, s20, s0"); a(f"s_add_u32 s20, s20, {OFF_FLG + 12288}")
    a("s_lshl_b32 s0, s18, 7"); a(f"s_add_u32 s0, s0, {OFF_FLG + 12288}")
    a(f"v_lshlrev_b32 v3, 2, v{M}"); a("v_mov_b32 v4, 1")
    a("s_barrier"); a("s_barrier")
    a.wait_all()
    a("s_barrier")
    a("s_mov_b64 exec, 1")
    a("buffer_store_dword v4, v3, s[8:11], s20 offen sc1")
    a("s_mov_b64 exec, -1")
    poll(a, "GG_P0", 6, 3, 0, 32, 6)
    a.label("GG_R4"); a.hist = []; a.vm = vm_main; a.lg = []
    a("s_barrier")
    stamp_m(a, 1)
    for b in range(4): tok(0, b)
    a(f"v_lshlrev_b32 v254, 2, v{M}"); a("v_mov_b32 v255, 1")
    def dma2(st, i, so=None):
        a(f"s_add_u32 m0, s51, {(st % NSLOT)*SLOT + i*1024}")
        a(f"buffer_load_dwordx4 v{DV2+i}, s[12:15], s{so if so is not None else SD+st} offen lds", tag=("d2", st))
    def switch():
        for j in range(9): a(f"s_add_u32 s{SD+j}, s{SD+j}, s28")
    def next2(): a(f"s_add_u32 s60, s60, {9*32*1152}")
    def poison(i):
        a(f"buffer_store_dwordx4 a[{PO}:{PO+3}], v{VT}, s[8:11], s{30 + i//4} offen offset:{(i % 4)*1024} sc1", tag="hmA")
    def flag(sreg):
        a("s_cmp_lg_u32 s16, 0")
        lab = f"GG_F{sreg}"
        a(f"s_cbranch_scc1 {lab}")
        a("s_mov_b64 exec, 1")
        a(f"buffer_store_dword v255, v254, s[8:11], s{sreg} offen sc1")
        a("s_mov_b64 exec, -1")
        a.label(lab)
        a.vm.pop()
    NF = len(seq); D = NA - 1
    bar = {first[2*st] - D: st for st in range(1, 18)}
    ops = []
    for st in range(4, 18):
        if st == 9: ops.append((first[18] - D - 0.6, -1, first[2*(st-4)] - D, switch, ()))
        for i in range(5):
            ops.append((first[2*st] - D - 0.5, i, -1 if st < NS1 else first[2*(st-4)] - D, dma, (st, i)))
    for ks in range(1, 36):
        for b in range(4):
            ops.append((first[ks], b, -1 if ks < PF else first[ks-PF+1], tok, (ks, b)))
    for i in range(9): ops.append((NF-1, i, 30 + 12*i, poison, (i,)))
    for i in range(9): ops.append((NF+2, i, first[30] - D, dma2, (0, i, 60)))
    ops.append((NF+3, -1, first[34] - D, next2, ()))
    for i in range(9): ops.append((NF+3, i, first[34] - D, dma2, (1, i, 60)))
    ops.sort(key=lambda o: (o[0], o[1]))
    def pk(g, u, o):
        return [f"v_pk_mul_f32 v[{g+2*q}:{g+2*q+1}], v[{g+2*q}:{g+2*q+1}], v[{u+2*q}:{u+2*q+1}]" for q in range(2)] + \
               [f"v_cvt_pk_bf16_f32 v{o+q}, v{g+2*q}, v{g+2*q+1}" for q in range(2)]
    rel = {}
    for p in range(2):
        for b in range(4):
            L = []
            for e in range(2):
                L += pk(accr(0, 0, 2*p+e, b)[1], accr(0, 1, 2*p+e, b)[1], T + 2*e)
            L.append(f"s_add_u32 s20, s{52+b}, s21")
            L.append(f"buffer_store_dwordx4 v[{T}:{T+3}], v{VT}, s[8:11], s20 offen offset:{1024*p} sc1")
            rel[first[18] + 4 + 14*(4*p+b)] = L
    for n in range(D):
        trd(n, 0); trd(n, 1)
    epq = []
    for n in range(NF):
        ks, pos, mat = seq[n]
        if n in bar:
            st1 = bar[n]
            assert not any(o[3] is dma and o[4][0] == st1 for o in ops), st1
            a.wait_vm(("d", st1))
            if st1 == 16:
                assert not epq and max(rel) < n
                a.wait_vm("hmA")
            a("s_barrier")
            if st1 == 16: flag(56)
        assert not any(o[3] is tok and o[4][0] == ks for o in ops), ks
        a.wait_vm(("t", ks))
        a.wait_lg(("a", n))
        ar = AF + 4*(n % NA)
        for b in range(4):
            rb = BR + 16 * (ks % PF) + 4*b
            k_, r = accr(ks // 18, mat, pos, b); c = f"{k_}[{r}:{r+3}]"
            a(f"v_mfma_f32_16x16x32_bf16 {c}, a[{ar}:{ar+3}], a[{rb}:{rb+3}], {c if ks % 18 else 0}")
            if b < 2 and n + D < NF: trd(n + D, b)
            issued = False
            if b == 2:
                for o in ops:
                    if o[2] <= n:
                        if o[3] is switch: assert not any(q[3] is dma and q[4][0] < 9 for q in ops)
                        if o[3] is next2: assert not any(q[3] is dma2 and q[4][0] == 0 for q in ops)
                        ops.remove(o); o[3](*o[4]); issued = True; break
            if b >= 2 and not issued and epq: a(epq.pop(0), tag="hmA")
        if n in rel: epq += rel[n]
    assert not ops and not epq
    stamp_m(a, 2)
    a(f"buffer_load_dword v{T}, v254, s[8:11], s58 offen sc1", tag="fa")
    for b in range(4):
        g0, u0, g1, u1, g2, u2 = [accr(1, m_, p_, b)[1] for p_ in range(3) for m_ in range(2)]
        for ins in pk(g0, u0, u0)[:2] + pk(g1, u1, u0+2) + pk(g0, u0, u0)[2:]: a(ins)
        for (p_, o) in ((3, None), (4, u1)):
            ga, ua = accr(1, 0, p_, b)[1], accr(1, 1, p_, b)[1]
            for r in range(4):
                a(f"v_accvgpr_read_b32 v{g0+r}, a{ga+r}"); a(f"v_accvgpr_read_b32 v{g1+r}, a{ua+r}")
            if p_ == 3:
                for ins in pk(g2, u2, u2)[:2] + pk(g0, g1, u2+2) + pk(g2, u2, u2)[2:]: a(ins)
            else:
                for ins in pk(g0, g1, u1): a(ins)
    def hmB(i):
        kind, b = divmod(i, 4)
        u = accr(1, 1, (0, 2, 1)[kind], b)[1]
        a(f"s_add_u32 s20, s{52+b}, s{22 if kind < 2 else 23}")
        if kind < 2: a(f"buffer_store_dwordx4 v[{u}:{u+3}], v{VT}, s[8:11], s20 offen offset:{1024*kind} sc1", tag="hmB")
        else: a(f"buffer_store_dwordx2 v[{u}:{u+1}], v{VT}, s[8:11], s20 offen sc1", tag="hmB")
    ST0 = 42
    a("s_lshl_b32 s31, s4, 3"); a("s_lshl_b32 s30, s16, 1"); a("s_add_u32 s31, s31, s30")
    a("s_mul_i32 s31, s31, 147456"); a("s_mul_i32 s30, s3, 36864"); a("s_add_u32 s31, s31, s30")
    a(f"s_add_u32 s31, s31, {OFF_HM}")
    for j in range(9): a(f"s_add_u32 s{ST0+j}, s31, {j*4096}")
    for st in (2, 3): a(f"s_add_u32 s{SD+st}, s60, {(st-1)*9*32*1152}")
    for st in range(4, 9):
        a(f"s_add_u32 s30, s16, {4*(st-4)}"); a("s_mul_i32 s31, s30, 13"); a("s_lshr_b32 s31, s31, 6"); a("s_lshl_b32 s31, s31, 2")
        a("s_add_u32 s30, s30, s31"); a("s_add_u32 s30, s30, 2"); a(f"s_mul_i32 s30, s30, {32*1152}"); a(f"s_add_u32 s{SD+st}, s61, s30")
    a(f"v_add_u32 v{VT+1}, 147456, v{VT}")
    a(f"v_lshrrev_b32 v2, 2, v{M}")
    a(f"v_mul_u32_u24 v{VA}, 288, v2")
    a(f"v_and_b32 v2, 3, v{M}"); a(f"v_lshl_add_u32 v{VA}, v2, 3, v{VA}")
    for sl in range(1, 4): a(f"v_add_u32 v{VA+sl}, {sl*SLOT}, v{VA}")
    def check(lab, sreg, tag):
        a.wait_vm(tag)
        a("s_mov_b32 s30, 0x8000")
        a.label(lab)
        a(f"v_cmp_ne_u32 vcc, 0, v{T}")
        a("s_and_b32 s31, vcc_lo, 0xff"); a("s_cmp_eq_u32 s31, 0xff")
        a(f"s_cbranch_scc1 {lab}_X")
        a(f"buffer_load_dword v{T}, v254, s[8:11], s{sreg} offen sc1"); a.vm.pop()
        a("s_waitcnt vmcnt(0)")
        a("s_sub_u32 s30, s30, 1")
        a(f"s_cbranch_scc0 {lab}")
        a.label(lab + "_X")
    check("GG_CA", 58, "fa")
    PF2 = 12; AF2 = 72; BR2 = 64
    kap = [9*(ks // 4) + (0, 1, 7, 8)[ks % 4] for ks in range(16)] + [9*(q // 5) + 2 + q % 5 for q in range(20)]
    def tok2(ks, b):
        rb = BR2 + 8 * (ks % PF2) + 4*b
        a(f"buffer_load_dwordx4 a[{rb}:{rb+3}], v{VT+b}, s[8:11], s{ST0 + kap[ks]//4} offen offset:{(kap[ks] % 4)*1024} sc1", tag=("t2", ks))
    PRO2 = 4
    for ks in range(PRO2):
        for b in range(2): tok2(ks, b)
    a.wait_vm(("d2", 1))
    a.wait_all(vm=False)
    stamp_m(a, 3)
    a("s_barrier")
    stamp_m(a, 4)
    def trd2(n, q):
        ks, aa = divmod(n, 9); st, kk = divmod(ks, 4)
        off = kk*9216 + aa*32 + q*16*288
        a(f"ds_read_b64_tr_b16 v[{AF2+4*aa+2*q}:{AF2+4*aa+2*q+1}], v{VA + st % NSLOT} offset:{off}", tag=("a2", n))
    def dm0(st, i): a(f"s_add_u32 m0, s51, {(st % NSLOT)*SLOT + i*1024}")
    def dld(st, i): a(f"buffer_load_dwordx4 v{DV2+i}, s[12:15], s{SD+st} offen lds", tag=("d2", st))
    def fbl(): a(f"buffer_load_dword v{T}, v254, s[8:11], s59 offen sc1", tag="fb")
    def fbc(): check("GG_CB", 59, "fb")
    N2 = 36*9; D2 = 8
    NCHK = 104
    ops = []
    for st in range(2, 9):
        for i in range(9): ops.append((36*st - D2 - 0.5, i, -1 if st < 4 else 36*(st-2) - D2, dld, (st, i)))
    for ks in range(PRO2, 36):
        for b in range(2): ops.append((9*ks, b, max(-1 if ks < PF2 else 9*(ks-PF2+1), NCHK + 1 if ks >= 16 else -1), tok2, (ks, b)))
    for i in range(12): ops.append((4*i + 6, 0, 4*i + 2, hmB, (i,)))
    ops.append((NCHK - 12, 0, NCHK - 14, fbl, ()))
    ops.append((NCHK, 0, NCHK, fbc, ()))
    ops.sort(key=lambda o: (o[0], o[1]))
    for n in range(D2):
        trd2(n, 0); trd2(n, 1)
    armed = None
    for n in range(N2):
        ks, aa = divmod(n, 9)
        if (n + D2) % 36 == 0 and n + D2 < N2:
            st1 = (n + D2)//36
            assert not any(o[3] is dld and o[4][0] == st1 for o in ops) and not (armed and armed[0] == st1), st1
            a.wait_vm(("d2", st1))
            if st1 == 2:
                assert not any(o[3] is hmB for o in ops)
                a.wait_vm("hmB")
            a("s_barrier")
            if st1 == 2: flag(57)
        if aa == 0:
            assert not any(o[3] is tok2 and o[4][0] == ks for o in ops), ks
            a.wait_vm(("t2", ks))
        if n % 2 == 0: a.wait_lg(("a2", min(n+1, N2-1)))
        for b in range(2):
            t = 2*aa + b; rb = BR2 + 8 * (ks % PF2) + 4*b
            c = f"v[{4*t}:{4*t+3}]"
            a(f"v_mfma_f32_16x16x32_bf16 {c}, v[{AF2+4*aa}:{AF2+4*aa+3}], a[{rb}:{rb+3}], {c if ks else 0}")
            if n + D2 < N2: trd2(n + D2, b)
            if b == 0 or n % 2 == 1:
                if armed:
                    dld(*armed); armed = None
                else:
                    for o in ops:
                        if o[2] <= n:
                            ops.remove(o)
                            if o[3] is dld: dm0(*o[4]); armed = o[4]
                            else: o[3](*o[4])
                            break
        if n == 200:
            a("s_and_b32 s22, s4, 1"); a("s_lshl_b32 s22, s22, 2"); a("s_add_u32 s22, s22, s5"); a("s_lshl_b32 s22, s22, 2")
            a("s_lshr_b32 s23, s4, 1"); a("s_lshl_b32 s23, s23, 7"); a("s_add_u32 s23, s23, s22")
            a("s_lshl_b32 s28, s3, 5"); a("s_add_u32 s28, s28, s23"); a("s_add_u32 s28, s28, s16")
            a("s_mul_i32 s28, s28, 9216"); a(f"s_add_u32 s28, s28, {OFF_PART}")
            for q in range(1, 3): a(f"s_add_u32 s{28+q}, s28, {4096*q}")
            a("s_add_u32 s23, s23, s3")
            a("s_lshl_b32 s17, s16, 11"); a(f"s_add_u32 s17, s17, {OFF_PART}")
        if n == 206:
            for i in range(1, 4):
                a(f"s_add_u32 s18, s3, {i}"); a("s_and_b32 s18, s18, 3"); a("s_lshl_b32 s18, s18, 5"); a("s_add_u32 s18, s18, s23")
                a("s_mul_i32 s18, s18, 9216"); a(f"s_add_u32 s{52+i}, s18, s17")
        if n == 212:
            a("s_lshl_b32 s56, s4, 7"); a("s_lshl_b32 s18, s3, 5"); a("s_add_u32 s56, s56, s18"); a("s_mul_i32 s56, s56, 1152")
            a("s_mul_i32 s18, s5, 288"); a("s_add_u32 s56, s56, s18"); a("s_lshl_b32 s18, s16, 6"); a("s_add_u32 s56, s56, s18")
            a("s_mul_i32 s57, s5, 576"); a("s_lshl_b32 s18, s16, 7"); a("s_add_u32 s57, s57, s18"); a(f"s_add_u32 s57, s57, {OFF_MODF + 4608}")
            a(f"s_add_u32 s58, s56, {OFF_X1R}")
            a("s_lshl_b32 s59, s16, 12"); a(f"s_add_u32 s59, s59, {SLOT}")
    assert not ops and not armed
    stamp_m(a, 5)
    a(f"v_add_u32 v{VA}, {SLOT}, v{VT}")
    OWN = 2 * SLOT
    a("s_cmp_eq_u32 s16, s3")
    a("s_cbranch_scc1 GG_OWN")
    h = list(a.hist)
    for aa in range(9):
        o = 72 + 4*(aa % 3)
        for q in range(4): a(f"v_cvt_pk_bf16_f32 v{o+q}, v{8*aa+2*q}, v{8*aa+2*q+1}")
        a(f"buffer_store_dwordx4 v[{o}:{o+3}], v{VT}, s[8:11], s{28 + aa//4} offen offset:{(aa % 4)*1024} sc1")
    a("s_branch GG_PUB")
    a.label("GG_OWN"); a.hist = h
    for t in range(18):
        a(f"ds_write_b128 v{VA}, v[{4*t}:{4*t+3}] offset:{1024*t}")
    a.label("GG_PUB"); a.hist = []
    a(f"v_and_b32 v140, 15, v{M}"); a("v_mul_u32_u24 v144, 1152, v140")
    a(f"v_lshrrev_b32 v140, 4, v{M}"); a("v_lshl_add_u32 v144, v140, 3, v144")
    a("v_lshlrev_b32 v145, 4, v140")
    a(f"v_add_u32 v146, {16*1152}, v144")
    a(f"v_add_u32 v147, s59, v{VT}")
    for i in range(3):
        for b in range(2):
            a(f"buffer_load_dwordx2 v[{108+2*(2*i+b)}:{109+2*(2*i+b)}], v{144 if b == 0 else 146}, s[8:11], s58 offen offset:{32*i} sc1")
        a(f"buffer_load_dwordx4 v[{120+4*i}:{123+4*i}], v145, s[8:11], s57 offen offset:{64*i}")
    for q in range(3): a(f"s_mov_b32 s{48+q}, s{53+q}")
    a("s_mov_b32 s34, s56")
    srd(a, 24, 62, 2048*1152)
    a.wait_all(vm=False)
    stamp_m(a, 6)
    a("s_barrier")
    for i in range(6):
        a(f"ds_read_b128 v[{4*i}:{4*i+3}], v147 offset:{1024*i}")
    R = 24
    a("s_mov_b32 s22, 0x8000")
    a.label("GG_P2")
    for i in range(3):
        for q in range(3):
            r = R + 4*(3*i + q)
            a(f"buffer_load_dwordx4 v[{r}:{r+3}], v{VT}, s[8:11], s{48+q} offen offset:{i*1024} sc1")
    a("s_waitcnt vmcnt(0)"); a.vm = []
    a(f"v_max3_u32 v60, v{R}, v{R+1}, v{R+2}")
    a(f"v_max3_u32 v61, v{R+3}, v{R+4}, v{R+5}")
    for r in range(R+6, R+36, 4):
        if r + 3 < R + 36:
            a(f"v_max3_u32 v60, v60, v{r}, v{r+1}"); a(f"v_max3_u32 v61, v61, v{r+2}, v{r+3}")
        else:
            a(f"v_max3_u32 v60, v60, v{r}, v{r+1}")
    a("v_max_u32 v60, v60, v61")
    a("v_cmp_eq_u32 vcc, -1, v60")
    a("s_sub_u32 s22, s22, 1")
    a("s_cbranch_scc1 GG_P2X")
    a("s_cbranch_vccnz GG_P2")
    a.label("GG_P2X"); a.hist = []
    a.wait_all(vm=False)
    for i in range(3):
        for b in range(2):
            r = 4*(2*i + b)
            for q in range(3):
                for e in range(2):
                    unpack(a, 60, 61, R + 4*(3*i+q) + 2*b + e)
                    a(f"v_add_f32 v{r+2*e}, v{r+2*e}, v60"); a(f"v_add_f32 v{r+2*e+1}, v{r+2*e+1}, v61")
            xr = 108 + 2*(2*i + b)
            for e in range(0, 4, 2):
                rnd2(a, r+e, r+e+1, 62)
                a(f"v_mul_f32 v{r+e}, v{r+e}, v{120+4*i+e}"); a(f"v_mul_f32 v{r+e+1}, v{r+e+1}, v{120+4*i+e+1}")
                rnd2(a, r+e, r+e+1, 62)
                unpack(a, 62, 63, xr+e//2)
                a(f"v_add_f32 v{r+e}, v{r+e}, v62"); a(f"v_add_f32 v{r+e+1}, v{r+e+1}, v63")
                a(f"v_cvt_pk_bf16_f32 v{xr+e//2}, v{r+e}, v{r+e+1}")
            a(f"buffer_store_dwordx2 v[{xr}:{xr+1}], v{144 if b == 0 else 146}, s[24:27], s34 offen offset:{32*i}")
    if STAMP:
        a.wait_all(); stamp(a, 7); stamp_store(a, 8, 4)
    a.label("GG_END")
    a("s_endpgm")
    return a.text(), dict(vgpr=256+160, sgpr=64, accum=256), f"grid=(256,1,1) block=(256,1,1) lds={NSLOT*SLOT}"

def k5():
    a = Asm()
    SLOT = 36864; NSLOT = 4; PF = 12
    a("s_load_dwordx2 s[6:7], s[0:1], 136")
    a("s_load_dwordx2 s[12:13], s[0:1], 96")
    a("s_cmp_ge_u32 s2, 256")
    a("s_cbranch_scc1 K5_END")
    stamp(a, 0)
    M = 208
    a(f"v_and_b32 v{M}, 63, v0")
    a(f"v_lshrrev_b32 v{M+1}, 6, v0")
    a(f"v_readfirstlane_b32 s16, v{M+1}")
    a(f"v_mov_b32 v1, v{M}")
    a("s_and_b32 s17, s2, 7"); a("s_lshr_b32 s18, s2, 3")
    a("s_and_b32 s19, s18, 3")
    a("s_lshr_b32 s18, s18, 2")
    a("s_lshl_b32 s14, s19, 1"); a("s_add_u32 s14, s14, s18")
    a("s_sub_u32 s20, s14, 9"); a("s_cmp_ge_u32 s14, 9"); a("s_cselect_b32 s14, s20, s14")
    if EXP == "norot": a("s_mov_b32 s14, 0")
    a("s_and_b32 s20, s17, 1"); a("s_lshl_b32 s20, s20, 3"); a("s_add_u32 s18, s18, s20")
    a("s_lshr_b32 s17, s17, 1")
    DV = M+2
    dma_voffsets(a, DV, 1152)
    a(f"s_mul_i32 s28, s17, {1152*1152}"); a(f"s_mul_i32 s30, s16, {32*1152}"); a("s_add_u32 s28, s28, s30")
    a("s_mul_i32 s30, s19, 288"); a("s_add_u32 s28, s28, s30")
    a("s_mul_i32 s29, s16, 9216")
    VT = M+13
    a(f"v_lshlrev_b32 v{VT}, 4, v{M}")
    a("s_lshl_b32 s31, s18, 3"); a("s_lshl_b32 s30, s16, 1"); a("s_add_u32 s31, s31, s30")
    a("s_mul_i32 s31, s31, 147456"); a("s_mul_i32 s30, s17, 36864"); a("s_add_u32 s31, s31, s30")
    a(f"s_add_u32 s31, s31, {OFF_HM}")
    a("s_add_u32 s32, s31, 147456")
    SD, ST0, ST1 = 33, 42, 51
    rot_soffsets(a, 14, SD, ST0, ST1, 28, 31, 32, 128*1152, 22)
    a.wait_all()
    stamp_m(a, 1)
    srd(a, 8, 6, WS_REC)
    srd(a, 24, 12, 4608*1152)
    AF = 72; BR = 108
    VA = M+14; VS = M+18
    def dma(st, i):
        a(f"s_add_u32 m0, s29, {(st % NSLOT)*SLOT + i*1024}")
        a(f"buffer_load_dwordx4 v{DV+i}, s[24:27], s{SD+st} offen lds", tag=("d", st))
    def tok(ks, b):
        rb = BR + 8 * (ks % PF) + 4*b
        a(f"buffer_load_dwordx4 v[{rb}:{rb+3}], v{VT}, s[8:11], s{(ST0, ST1)[b] + ks//4} offen offset:{(ks % 4)*1024}", tag=("t", ks))
    def trd(ks, aa):
        st, kk = divmod(ks, 4); slot = st % NSLOT
        off = kk*9216 + aa*32
        a(f"ds_read_b64_tr_b16 v[{AF+4*aa}:{AF+4*aa+1}], v{VA+slot} offset:{off}", tag=("a", ks, aa))
        a(f"ds_read_b64_tr_b16 v[{AF+4*aa+2}:{AF+4*aa+3}], v{VA+slot} offset:{off+(16 if G16 else 8)*288}", tag=("a", ks, aa))
    def mfma(ks, aa, b):
        t = 2*aa + b; rb = BR + 8 * (ks % PF) + 4*b
        c = f"v[{4*t}:{4*t+3}]"
        a(f"v_mfma_f32_16x16x32_bf16 {c}, v[{AF+4*aa}:{AF+4*aa+3}], v[{rb}:{rb+3}], {c if ks else 0}")
    def between():
        stamp_m(a, 2)
        if G16:
            a(f"v_lshrrev_b32 v2, 2, v{M}")
        else:
            a(f"v_lshrrev_b32 v2, 5, v{M}"); a("v_lshlrev_b32 v2, 4, v2")
            a(f"v_bfe_u32 v3, v{M}, 4, 1"); a("v_lshl_add_u32 v2, v3, 2, v2")
            a(f"v_bfe_u32 v3, v{M}, 2, 2"); a("v_add_u32 v2, v2, v3")
        a(f"v_mul_u32_u24 v{VA}, 288, v2")
        a(f"v_and_b32 v2, 3, v{M}"); a(f"v_lshl_add_u32 v{VA}, v2, 3, v{VA}")
        a(f"v_add_u32 v{VA+1}, {SLOT}, v{VA}")
        a(f"v_add_u32 v{VA+2}, {2*SLOT}, v{VA}")
        a(f"v_add_u32 v{VA+3}, {3*SLOT}, v{VA}")
        a(f"v_and_b32 v2, 15, v{M}"); a(f"v_mul_u32_u24 v{VS}, 2304, v2")
        a(f"v_lshrrev_b32 v2, 4, v{M}"); a(f"v_lshl_add_u32 v{VS}, v2, 4, v{VS}")
        a("s_lshl_b32 s20, s17, 11"); a("s_lshl_b32 s21, s18, 7"); a("s_add_u32 s20, s20, s21")
        a("s_lshl_b32 s21, s16, 5"); a("s_add_u32 s20, s20, s21")
        a("s_mul_i32 s20, s20, 2304"); a("s_mul_i32 s21, s19, 576"); a("s_add_u32 s20, s20, s21")
        a(f"s_add_u32 s20, s20, {OFF_PART}")
        a(f"s_add_u32 s21, s20, {16*2304}")
    kloop(a, dma, tok, trd, mfma, PF, 4, (0, 1, 2, 3, 4, 5, 6, 7, 8), between)
    stamp_m(a, 5)
    for t in range(18):
        aa, b = divmod(t, 2)
        a(f"buffer_store_dwordx4 v[{4*t}:{4*t+3}], v{VS}, s[8:11], s{20+b} offen offset:{64*aa}")
    if STAMP:
        stamp_m(a, 6); a.wait_all(); stamp(a, 7); stamp_store(a, 8, 5)
    a.label("K5_END")
    a("s_endpgm")
    return a.text(), dict(vgpr=228, sgpr=60, accum=228), f"grid=(256,1,1) block=(256,1,1) lds={NSLOT*SLOT}"

def k6():
    a = Asm()
    a("s_load_dwordx2 s[6:7], s[0:1], 136")
    a("s_load_dwordx2 s[4:5], s[0:1], 120")
    a("s_cmp_ge_u32 s2, 576")
    a("s_cbranch_scc1 K6_END")
    stamp(a, 0)
    a("s_lshl_b32 s3, s2, 8"); a("v_add_u32 v1, s3, v0")
    a("v_lshlrev_b32 v2, 5, v1")
    a("v_lshlrev_b32 v3, 4, v1")
    a("s_mov_b32 s12, 0x38e38e4")
    a("v_mul_hi_u32 v4, s12, v1"); a("v_mul_u32_u24 v4, 72, v4"); a("v_sub_u32 v4, v1, v4")
    a("v_lshlrev_b32 v4, 5, v4")
    a.wait_all()
    srd(a, 8, 6, WS_REC)
    srd(a, 12, 4, 2048*1152)
    for s in range(4):
        a(f"s_mov_b32 s16, {OFF_PART + s*2048*2304}")
        a(f"buffer_load_dwordx4 v[{8+8*s}:{11+8*s}], v2, s[8:11], s16 offen")
        a(f"buffer_load_dwordx4 v[{12+8*s}:{15+8*s}], v2, s[8:11], s16 offen offset:16")
    a(f"s_mov_b32 s16, {OFF_X1R}")
    a("buffer_load_dwordx4 v[40:43], v3, s[8:11], s16 offen")
    a(f"s_mov_b32 s16, {OFF_MODF + 4608}")
    a("buffer_load_dwordx4 v[44:47], v4, s[8:11], s16 offen")
    a("buffer_load_dwordx4 v[48:51], v4, s[8:11], s16 offen offset:16")
    a.wait_all()
    stamp_m(a, 1)
    for e in range(8):
        a(f"v_add_f32 v{8+e}, v{8+e}, v{16+e}")
        a(f"v_add_f32 v{24+e}, v{24+e}, v{32+e}")
    for e in range(8):
        a(f"v_add_f32 v{8+e}, v{8+e}, v{24+e}")
    for e in range(0, 8, 2):
        rnd2(a, 8+e, 9+e, 5)
        a(f"v_mul_f32 v{8+e}, v{8+e}, v{44+e}"); a(f"v_mul_f32 v{9+e}, v{9+e}, v{45+e}")
        rnd2(a, 8+e, 9+e, 5)
        unpack(a, 5, 6, 40+e//2)
        a(f"v_add_f32 v{8+e}, v{8+e}, v5"); a(f"v_add_f32 v{9+e}, v{9+e}, v6")
        a(f"v_cvt_pk_bf16_f32 v{52+e//2}, v{8+e}, v{9+e}")
    a("buffer_store_dwordx4 v[52:55], v3, s[12:15], 0 offen")
    if STAMP:
        a.wait_all(); stamp_m(a, 2); stamp_store(a, 3, 6)
    a.label("K6_END")
    a("s_endpgm")
    return a.text(), dict(vgpr=56, sgpr=40, accum=56), "grid=(576,1,1) block=(256,1,1) lds=0"

HEADER = open("adaLN_cond__ssm_conv_s4__glu_gated_bilinear__prompt.s.ref").read().split("; Override launch")[0]

def build(kernels, path):
    out = HEADER
    bodies = []
    for name, fn in kernels:
        text, res, launch = fn()
        out += f"; @launch kernel={name} {launch}\n"
        bodies.append((name, text, res))
    out += '.amdgcn_target "amdgcn-amd-amdhsa--gfx950"\n.text\n'
    seen = set()
    for name, text, res in bodies:
        if name in seen: continue
        seen.add(name)
        out += kernel_header(name) + text
    out += '.section .rodata,"a"\n'
    seen = set()
    for name, text, res in bodies:
        if name in seen: continue
        seen.add(name)
        out += kernel_desc(name, res["vgpr"], 102 if STAMP else res["sgpr"], res["accum"])
    open(path, "w").write(out)

if __name__ == "__main__":
    if len(sys.argv) > 2 and sys.argv[2] == "stamp": STAMP = True
    if len(sys.argv) > 3: EXP = sys.argv[3]
    if EXP == "g32": G16 = False
    path = sys.argv[1] if len(sys.argv) > 1 else "adaLN_cond__ssm_conv_s4__glu_gated_bilinear__prompt.s"
    if EXP in ("sep", "g32", "norot", "notr", "stages"):
        build([("prep_kernel", k1), ("conv_kernel", k2), ("ln2_kernel", k3), ("gemm1_kernel", k4b if G16 else k4), ("gemm2_kernel", k5), ("fin_kernel", k6)], path)
    else:
        if EXP == "old3": build([("prep_kernel", k1), ("conv_kernel", k2), ("gg_kernel", kgg)], path)
        elif EXP != "gg2": build([("front_kernel", kf), ("gg_kernel", kgg)], path)
        else: build([("front_kernel", kf), ("gg_kernel", kgg2)], path)
```

```python
import sys
from asmlib import *

import os
BASE = int(os.environ.get('WSBASE', '0'), 0)
OFF_NT   = BASE + 0x000000
OFF_XT   = BASE + 0x240000
OFF_KC   = BASE + 0x480000
OFF_X1T  = BASE + 0x6C0000
OFF_H2P  = BASE + 0x900000
OFF_X1R  = BASE + 0xB40000
OFF_MODP = BASE + 0xD80000
OFF_MODF = BASE + 0xD90000
OFF_FLG  = BASE + 0xDA0000
OFF_REP  = BASE + 0xDB0000
OFF_PF   = BASE + 0xDC0000
OFF_HM   = BASE + 0xE00000
OFF_PART = BASE + 0x2000000
WS_REC   = 0x10000000
LOG2E = 0x3fb8aa3b
INV2PI = 0x3e22f983
def f32(x):
    import struct
    return struct.unpack("<I", struct.pack("<f", x))[0]

OFF_STAMP = 0x6000000
STAMP = False
G16 = True
EXP = None
def stamp(a, i):
    if not STAMP: return
    if i == 0:
        a("v_lshrrev_b32 v1, 6, v0"); a("v_readfirstlane_b32 s99, v1")
    a(f"s_memtime s[{64+4*i}:{65+4*i}]")
    a(f"s_memrealtime s[{66+4*i}:{67+4*i}]")
    a("s_waitcnt lgkmcnt(0)"); a.lg = []
def stamp_n(a, i):
    if EXP != "stages": stamp(a, i)
def stamp_m(a, i):
    if EXP not in ("ln2st", "g2st", "g1st") or (EXP == "g1st" and i == 1): stamp(a, i)
def stamp_g(a, i):
    if EXP == "g2st":
        lg = list(a.lg); stamp(a, i)
def stamp_x(a, i):
    if EXP == "ln2st": stamp(a, i)
def stamp_store(a, n, kid, tidreg="v0"):
    if not STAMP: return
    a(f"s_lshl_b32 s100, {'s98' if (kid == 1 and EXP == 'old3') else 's2'}, 11")
    a(f"s_lshl_b32 s101, s99, 7")
    a(f"s_add_u32 s100, s100, s101")
    a(f"s_add_u32 s100, s100, {OFF_STAMP + kid*0x200000}")
    a("s_mov_b64 exec, 1")
    a("v_mov_b32 v1, 0")
    for i in range(n):
        for q in range(4):
            a(f"v_mov_b32 v{4+q}, s{64+4*i+q}")
        a(f"buffer_store_dwordx4 v[4:7], v1, s[8:11], s100 offen offset:{16*i}")
        a("s_waitcnt vmcnt(0)")

def srd(a, d, lo, nrec):
    a(f"s_mov_b32 s{d}, s{lo}")
    a(f"s_and_b32 s{d+1}, s{lo+1}, 0xffff")
    a(f"s_mov_b32 s{d+2}, {nrec:#x}")
    a(f"s_mov_b32 s{d+3}, 0x00020000")

def unpack(a, dlo, dhi, src):
    a(f"v_lshlrev_b32 v{dlo}, 16, v{src}")
    a(f"v_and_b32 v{dhi}, 0xffff0000, v{src}")

def rnd1(a, r):
    a(f"v_cvt_pk_bf16_f32 v{r}, v{r}, v{r}")
    a(f"v_and_b32 v{r}, 0xffff0000, v{r}")

def rnd2(a, r0, r1, tmp):
    a(f"v_cvt_pk_bf16_f32 v{tmp}, v{r0}, v{r1}")
    unpack(a, r0, r1, tmp)

def row16_sum(a, r):
    for s in (8, 4, 2, 1):
        a(f"v_add_f32_dpp v{r}, v{r}, v{r} row_ror:{s} row_mask:0xf bank_mask:0xf")

N_LN1, N_MOD, N_KG, N_WARM = 128, 162, 576, 108
def k1():
    a = Asm()
    stamp(a, 0)
    a("s_load_dwordx2 s[6:7], s[0:1], 136")
    if STAMP: a("s_mov_b32 s98, s2")
    a(f"s_cmp_lt_u32 s2, {N_KG}")
    a("s_cbranch_scc1 K1_KGEN")
    a(f"s_cmp_ge_u32 s2, {N_LN1+N_MOD+N_KG}")
    a("s_cbranch_scc1 K1_WARM")
    a(f"s_sub_u32 s2, s2, {N_KG}")
    a(f"s_cmp_ge_u32 s2, {N_LN1}")
    a("s_cbranch_scc1 K1_MOD")
    PITCH = 1216; LN_N = 0; LN_X = 16 * PITCH
    a("s_load_dwordx2 s[4:5], s[0:1], 0")
    a("v_lshrrev_b32 v1, 4, v0")
    a("v_and_b32 v2, 15, v0")
    a("v_mul_u32_u24 v3, 1152, v1")
    a("v_lshl_add_u32 v3, v2, 3, v3")
    a("s_mul_i32 s3, s2, 18432")
    a.wait_all()
    srd(a, 12, 4, 2048*1152)
    srd(a, 8, 6, WS_REC)
    X = 10
    for k in range(9):
        a(f"buffer_load_dwordx2 v[{X+2*k}:{X+2*k+1}], v3, s[12:15], s3 offen offset:{128*k}", tag=("x", k))
    a(f"v_mul_u32_u24 v4, {PITCH}, v1")
    a("v_lshl_add_u32 v4, v2, 3, v4")
    F = 28
    for k in range(9):
        a.wait_vm(("x", k))
        for h in range(2):
            unpack(a, F+4*k+2*h, F+4*k+2*h+1, X+2*k+h)
        a(f"ds_write_b64 v4, v[{X+2*k}:{X+2*k+1}] offset:{LN_X+128*k}")
    stamp(a, 1)
    a(f"v_add_f32 v5, v{F}, v{F+1}")
    a(f"v_add_f32 v6, v{F+2}, v{F+3}")
    for i in range(4, 36, 2):
        a(f"v_add_f32 v5, v5, v{F+i}")
        a(f"v_add_f32 v6, v6, v{F+i+1}")
    a("v_add_f32 v5, v5, v6")
    row16_sum(a, 5)
    a(f"v_mul_f32 v5, {f32(1.0/576):#x}, v5")
    a("v_mov_b32 v6, 0"); a("v_mov_b32 v7, 0")
    for i in range(0, 36, 2):
        a(f"v_sub_f32 v8, v{F+i}, v5"); a(f"v_sub_f32 v9, v{F+i+1}, v5")
        a("v_fmac_f32 v6, v8, v8"); a("v_fmac_f32 v7, v9, v9")
    a("v_add_f32 v6, v6, v7")
    row16_sum(a, 6)
    a(f"v_mul_f32 v6, {f32(1.0/576):#x}, v6")
    rnd1(a, 6)
    a(f"v_add_f32 v6, {f32(1e-5):#x}, v6")
    rnd1(a, 6)
    a("v_sqrt_f32 v6, v6")
    rnd1(a, 6)
    a("v_rcp_f32 v7, v6")
    rnd1(a, 5)
    for k in range(9):
        for h in range(2):
            r0 = F+4*k+2*h; r1 = r0+1
            a(f"v_sub_f32 v{r0}, v{r0}, v5"); a(f"v_sub_f32 v{r1}, v{r1}, v5")
            rnd2(a, r0, r1, 8)
            a(f"v_mul_f32 v8, v{r0}, v7"); a(f"v_mul_f32 v9, v{r1}, v7")
            a(f"v_fma_f32 v{r0}, -v8, v6, v{r0}"); a(f"v_fma_f32 v{r1}, -v9, v6, v{r1}")
            a(f"v_fmac_f32 v8, v{r0}, v7"); a(f"v_fmac_f32 v9, v{r1}, v7")
            a(f"v_cvt_pk_bf16_f32 v{X+2*k+h}, v8, v9")
        a(f"ds_write_b64 v4, v[{X+2*k}:{X+2*k+1}] offset:{LN_N+128*k}")
    a("v_and_b32 v1, 63, v0")
    a("v_lshrrev_b32 v2, 6, v0")
    a("v_readfirstlane_b32 s16, v2")
    a("v_lshrrev_b32 v3, 4, v1")
    a("v_and_b32 v5, 1, v3")
    a("v_lshrrev_b32 v6, 1, v3")
    a("v_bfe_u32 v7, v1, 2, 2")
    a("v_and_b32 v8, 3, v1")
    a("v_lshl_add_u32 v7, v6, 3, v7")
    a(f"v_mul_u32_u24 v7, {PITCH}, v7")
    a("v_lshl_add_u32 v7, v5, 5, v7")
    a("v_lshl_add_u32 v7, v8, 3, v7")
    a("s_lshr_b32 s17, s16, 1")
    a("s_and_b32 s18, s16, 1")
    a(f"s_mul_i32 s19, s17, {LN_X}")
    a("s_mul_i32 s20, s18, 576")
    a("s_add_u32 s19, s19, s20")
    a("v_add_u32 v7, s19, v7")
    a("v_and_b32 v9, 15, v1")
    a("v_lshl_add_u32 v9, v5, 4, v9")
    a("v_lshlrev_b32 v9, 5, v9")
    a("v_lshl_add_u32 v9, v6, 4, v9")
    a(f"s_mul_i32 s21, s17, {OFF_XT - OFF_NT}")
    a("s_add_u32 s21, s21, s3")
    a("s_mul_i32 s22, s18, 9216")
    a("s_add_u32 s21, s21, s22")
    if OFF_NT: a(f"s_add_u32 s21, s21, {OFF_NT}")
    a("s_add_u32 s22, s21, 4096")
    a("s_add_u32 s23, s21, 8192")
    a.wait_all(vm=False)
    a("s_barrier")
    stamp(a, 2)
    for i in range(9):
        a(f"ds_read_b64_tr_b16 v[{F+4*i}:{F+4*i+1}], v7 offset:{64*i}", tag=("t", i))
        a(f"ds_read_b64_tr_b16 v[{F+4*i+2}:{F+4*i+3}], v7 offset:{64*i+4*PITCH}", tag=("t", i))
    for i in range(9):
        a.wait_lg(("t", i))
        a(f"buffer_store_dwordx4 v[{F+4*i}:{F+4*i+3}], v9, s[8:11], s{21+i//4} offen offset:{1024*(i%4)}")
    if STAMP:
        a.wait_all(); stamp(a, 3); stamp_store(a, 4, 1)
    a("s_endpgm")
    a.label("K1_MOD"); a.hist = []; a.vm = []; a.lg = []
    a("s_load_dwordx2 s[4:5], s[0:1], 112")
    a("s_load_dwordx2 s[16:17], s[0:1], 104")
    a(f"s_sub_u32 s3, s2, {N_LN1}")
    a("s_mov_b32 s20, 0")
    a("s_cmp_ge_u32 s3, 54"); a("s_cselect_b32 s20, 1, s20")
    a("s_cmp_ge_u32 s3, 108"); a("s_cselect_b32 s20, 2, s20")
    a("s_mul_i32 s21, s20, 54"); a("s_sub_u32 s21, s3, s21")
    a("v_lshrrev_b32 v1, 3, v0")
    a("v_and_b32 v2, 7, v0")
    a("v_mul_u32_u24 v3, 6912, v1")
    a("v_lshl_add_u32 v3, v2, 4, v3")
    a("v_lshlrev_b32 v4, 1, v1")
    a(f"s_mul_i32 s22, s20, {192*6912}")
    a("s_lshl_b32 s23, s21, 7")
    a("s_add_u32 s22, s22, s23")
    a("s_mul_i32 s23, s20, 384")
    a.wait_all()
    srd(a, 12, 4, 576*6912)
    srd(a, 24, 16, 1152)
    srd(a, 8, 6, WS_REC)
    for i in range(6):
        a(f"buffer_load_ushort v{10+i}, v4, s[24:27], s23 offen offset:{64*i}", tag="c")
    for i in range(6):
        a(f"buffer_load_dwordx4 v[{16+4*i}:{19+4*i}], v3, s[12:15], s22 offen", tag=("w", i))
        if i < 5: a(f"s_add_u32 s22, s22, {32*6912}")
    for j in range(8): a(f"v_mov_b32 v{40+j}, 0")
    a.wait_vm("c")
    for i in range(6):
        r = 10+i
        a(f"v_lshlrev_b32 v{r}, 16, v{r}")
        a(f"v_mul_f32 v5, {(LOG2E|0x80000000):#x}, v{r}")
        a("v_exp_f32 v5, v5")
        a("v_add_f32 v5, 1.0, v5")
        a("v_rcp_f32 v5, v5")
        a(f"v_mul_f32 v{r}, v{r}, v5")
        rnd1(a, r)
    for i in range(6):
        a.wait_vm(("w", i))
        for q in range(4):
            unpack(a, 5, 6, 16+4*i+q)
            a(f"v_fmac_f32 v{40+2*q}, v{10+i}, v5")
            a(f"v_fmac_f32 v{41+2*q}, v{10+i}, v6")
    stamp(a, 1)
    a("v_lshlrev_b32 v5, 8, v1")
    a("v_lshl_add_u32 v5, v2, 5, v5")
    a("ds_write_b128 v5, v[40:43]")
    a("ds_write_b128 v5, v[44:47] offset:16")
    a("v_lshlrev_b32 v6, 2, v0")
    a("v_lshrrev_b32 v7, 6, v0")
    a("v_readfirstlane_b32 s16, v7")
    a.wait_all(vm=False)
    a("s_barrier")
    stamp(a, 2)
    a("s_cmp_lg_u32 s16, 0")
    a("s_cbranch_scc1 K1_END")
    for i in range(32):
        a(f"ds_read_b32 v{10+i}, v6 offset:{256*i}", tag=("r", i))
    a.wait_all(vm=False)
    for st in (16, 8, 4, 2, 1):
        for i in range(st):
            a(f"v_add_f32 v{10+i}, v{10+i}, v{10+i+st}")
    a(f"s_mul_i32 s22, s20, {3456*4}")
    a("s_lshl_b32 s23, s21, 8")
    a("s_add_u32 s22, s22, s23")
    a(f"s_add_u32 s22, s22, {OFF_MODP}")
    a("buffer_store_dword v10, v6, s[8:11], s22 offen")
    if STAMP:
        a.wait_all(); stamp(a, 3); stamp_store(a, 4, 1)
    a("s_endpgm")
    a.label("K1_KGEN"); a.hist = []; a.vm = []; a.lg = []
    a("s_load_dwordx8 s[16:23], s[0:1], 8")
    a("s_load_dwordx4 s[24:27], s[0:1], 40")
    a("s_load_dwordx2 s[28:29], s[0:1], 56")
    a("s_mov_b32 s3, s2")
    a("v_and_b32 v1, 63, v0")
    a("v_lshrrev_b32 v2, 6, v0")
    a("v_lshrrev_b32 v3, 4, v1")
    a("v_and_b32 v4, 15, v0")
    a("v_and_b32 v5, 31, v0")
    a("v_lshl_add_u32 v5, v2, 5, v5")
    a("v_lshlrev_b32 v6, 4, v5")
    a("v_lshlrev_b32 v5, 1, v5")
    a("s_lshl_b32 s4, s3, 8")
    a("v_add_u32 v5, s4, v5")
    a("s_lshl_b32 s5, s3, 1")
    a("v_mov_b32 v15, s5")
    a.wait_all()
    a("global_load_ushort v7, v15, s[28:29]", tag="p")
    for q in range(6):
        a(f"global_load_ushort v{28+q}, v5, s[{16+2*q}:{17+2*q}]", tag="p")
    srd(a, 8, 6, WS_REC)
    a("v_and_b32 v12, 7, v4")
    a("v_lshrrev_b32 v13, 3, v4")
    a("v_lshl_add_u32 v8, v13, 7, v12")
    a("v_lshrrev_b32 v12, 2, v4"); a("v_lshlrev_b32 v12, 7, v12")
    a("v_and_b32 v13, 3, v4"); a("v_lshl_add_u32 v12, v13, 1, v12")
    a("v_add_u32 v12, 256, v12")
    a("v_subrev_u32 v13, 8, v4"); a("v_lshrrev_b32 v13, 1, v13"); a("v_lshlrev_b32 v13, 7, v13")
    a("v_and_b32 v14, 1, v4"); a("v_lshl_add_u32 v13, v14, 2, v13")
    a("v_add_u32 v13, 512, v13")
    a("v_cmp_gt_u32 vcc, 8, v4")
    a("v_cndmask_b32 v9, v13, v12, vcc")
    a("v_lshlrev_b32 v12, 7, v4"); a("v_add_u32 v12, 1024, v12")
    a("v_mov_b32 v13, 2048")
    a("v_cndmask_b32 v10, v13, v12, vcc")
    a("v_lshlrev_b32 v11, 3, v4")
    HT = 12288; T16 = 12544; PT = 16896
    a("v_lshlrev_b32 v12, 2, v4")
    for T in range(3):
        a(f"ds_write_b32 v12, v{8+T} offset:{HT+64*T}")
    for T in range(4):
        a(f"v_cvt_f32_u32 v{8+T}, v{8+T}")
    a("v_lshlrev_b32 v12, 9, v2"); a("v_lshl_add_u32 v12, v3, 6, v12")
    a("s_mov_b32 s30, 0x07060302")
    a.wait_vm("p")
    stamp(a, 1)
    a("v_lshlrev_b32 v7, 16, v7")
    a(f"v_mul_f32 v7, {LOG2E:#x}, v7")
    a("v_exp_f32 v7, v7")
    rnd1(a, 7)
    for q in range(6): a(f"v_lshlrev_b32 v{28+q}, 16, v{28+q}")
    for q in range(4): a(f"v_mul_f32 v{28+q}, v7, v{28+q}")
    a(f"v_mul_f32 v36, {LOG2E:#x}, v28")
    a(f"v_mul_f32 v37, {INV2PI:#x}, v29")
    a("v_mul_f32 v38, v32, v30"); a("v_mul_f32 v39, v32, v31")
    a("v_fma_f32 v38, -v33, v31, v38")
    a("v_fmac_f32 v39, v33, v30")
    a(f"ds_write_b128 v6, v[36:39] offset:{PT}")
    P = 64
    for st in range(8):
        a(f"ds_read_b128 v[{P+4*st}:{P+4*st+3}], v12 offset:{PT+256*(st >> 2)+16*(st & 3)}", tag=("pp", st))
    FR = 96
    def fr(kp, T, lo): return FR + 8*T + 4*lo
    def valu(st):
        kp, e2 = divmod(st, 4)
        pr = P + 4*st; E = 36; Er = 48
        L = []
        for T in (3, 0, 1, 2):
            L.append(f"v_mul_f32 v{E+3*T}, v{pr}, v{8+T}")
            L.append(f"v_mul_f32 v{E+3*T+1}, v{pr+1}, v{8+T}")
        for T in (3, 0, 1, 2):
            L.append(f"v_exp_f32 v{E+3*T}, v{E+3*T}")
            L.append(f"v_fract_f32 v{E+3*T+1}, v{E+3*T+1}")
        for T in (3, 0, 1, 2):
            L.append(f"v_cos_f32 v{E+3*T+2}, v{E+3*T+1}")
            L.append(f"v_sin_f32 v{E+3*T+1}, v{E+3*T+1}")
        for T in (3, 0, 1, 2):
            L.append(f"v_mul_f32 v{E+3*T+1}, v{E+3*T}, v{E+3*T+1}")
            L.append(f"v_mul_f32 v{E+3*T}, v{E+3*T}, v{E+3*T+2}")
        L.append(f"v_mul_f32 v{Er}, v{pr+2}, v{E+9}")
        L.append(f"v_mul_f32 v{Er+1}, v{pr+2}, v{E+10}")
        L.append(f"v_fma_f32 v{Er}, -v{pr+3}, v{E+10}, v{Er}")
        L.append(f"v_fma_f32 v{Er+1}, -v{pr+3}, v{E+9}, -v{Er+1}")
        for T in range(4):
            r = Er if T == 3 else E+3*T
            L.append(f"v_perm_b32 v{fr(kp,T,0)+e2}, v{r+1}, v{r}, s30")
            L.append(f"v_and_b32 v50, 0xffff0000, v{r}")
            L.append(f"v_and_b32 v51, 0xffff0000, v{r+1}")
            L.append(f"v_sub_f32 v50, v{r}, v50")
            L.append(f"v_sub_f32 v51, v{r+1}, v51")
            L.append(f"v_perm_b32 v{fr(kp,T,1)+e2}, v51, v50, s30")
        return L
    def mf(kp):
        L = []
        for pi, (al, bl) in enumerate(((1, 0), (0, 1), (0, 0))):
            for T in range(3):
                c = f"v[{16+4*T}:{19+4*T}]"
                A = fr(kp, T, al); B = fr(kp, 3, bl)
                L.append(f"v_mfma_f32_16x16x32_bf16 {c}, v[{A}:{A+3}], v[{B}:{B+3}], {c if (kp or pi) else 0}")
        return L
    for st in range(8):
        a.wait_lg(("pp", st))
        Mf = mf(0) if st == 4 else []
        for idx, ins in enumerate(valu(st)):
            if Mf and idx % 3 == 2: a(Mf.pop(0))
            a(ins)
    for ins in mf(1): a(ins)
    stamp(a, 2)
    a("v_mul_u32_u24 v12, 3072, v2")
    a("v_lshl_add_u32 v12, v1, 4, v12")
    for T in range(3):
        a(f"ds_write_b128 v12, v[{16+4*T}:{19+4*T}] offset:{1024*T}")
    a("v_readfirstlane_b32 s16, v2")
    a("v_lshlrev_b32 v13, 4, v0")
    a("v_lshlrev_b32 v14, 6, v2")
    a("v_lshl_add_u32 v14, v3, 4, v14")
    a.wait_all(vm=False)
    a("s_barrier")
    a("s_cmp_eq_u32 s16, 3")
    a("s_cbranch_scc1 K1_KG_C")
    for w in range(4):
        a(f"ds_read_b128 v[{16+4*w}:{19+4*w}], v13 offset:{3072*w}")
    a(f"ds_read_b128 v[32:35], v14 offset:{HT}")
    a.wait_all(vm=False)
    for r in range(4):
        a(f"v_add_f32 v{16+r}, v{16+r}, v{20+r}")
        a(f"v_add_f32 v{24+r}, v{24+r}, v{28+r}")
        a(f"v_lshl_add_u32 v{32+r}, v4, 3, v{32+r}")
    for r in range(4):
        a(f"v_add_f32 v{16+r}, v{16+r}, v{24+r}")
        a(f"v_lshlrev_b32 v{32+r}, 1, v{32+r}")
    for r in range(4):
        a(f"v_cvt_pk_bf16_f32 v{16+r}, v{16+r}, v{16+r}")
    for r in range(4):
        a(f"ds_write_b16 v{32+r}, v{16+r} offset:{T16}")
    a.label("K1_KG_C"); a.fence(4)
    a("v_lshlrev_b32 v12, 3, v0")
    for e in range(8):
        a(f"v_add_u32 v{16+e}, {e}, v12")
        a(f"v_cvt_f32_u32 v{16+e}, v{16+e}")
    for e in range(0, 8, 2):
        rnd2(a, 16+e, 17+e, 13)
    for e in range(8):
        a(f"v_cvt_u32_f32 v{16+e}, v{16+e}")
        a(f"v_lshlrev_b32 v{16+e}, 1, v{16+e}")
    a("v_lshlrev_b32 v12, 4, v0")
    a("s_lshl_b32 s4, s3, 12")
    a(f"s_add_u32 s4, s4, {OFF_KC}")
    a.wait_all(vm=False)
    a("s_barrier")
    for e in range(8):
        a(f"ds_read_u16 v{24+e}, v{16+e} offset:{T16}")
    a.wait_all(vm=False)
    for e in range(4):
        a(f"v_lshl_or_b32 v{32+e}, v{25+2*e}, 16, v{24+2*e}")
    a("buffer_store_dwordx4 v[32:35], v12, s[8:11], s4 offen")
    if STAMP:
        a.wait_all(); stamp(a, 3); stamp_store(a, 4, 1)
    a.label("K1_END")
    a("s_endpgm")
    a.label("K1_WARM"); a.hist = []; a.vm = []; a.lg = []
    a(f"s_cmp_ge_u32 s2, {N_LN1+N_MOD+N_KG+N_WARM}")
    a("s_cbranch_scc1 K1_END")
    a("s_load_dwordx4 s[12:15], s[0:1], 80")
    a("s_load_dwordx2 s[16:17], s[0:1], 96")
    a(f"s_sub_u32 s3, s2, {N_LN1+N_MOD+N_KG}")
    a("v_lshlrev_b32 v1, 4, v0")
    a.wait_all()
    a("s_cmp_ge_u32 s3, 36"); a("s_cselect_b32 s12, s14, s12"); a("s_cselect_b32 s13, s15, s13")
    a("s_cselect_b32 s18, 36, 0")
    a("s_cmp_ge_u32 s3, 72"); a("s_cselect_b32 s12, s16, s12"); a("s_cselect_b32 s13, s17, s13")
    a("s_cselect_b32 s18, 72, s18")
    a("s_sub_u32 s3, s3, s18"); a("s_mul_i32 s3, s3, 147456")
    srd(a, 8, 12, 576*9216)
    for i in range(36):
        a(f"buffer_load_dwordx4 v[{4+4*(i % 18)}:{7+4*(i % 18)}], v1, s[8:11], s3 offen")
        a("s_add_u32 s3, s3, 4096")
        if i % 6 == 5: a("s_waitcnt vmcnt(2)")
    a("s_endpgm")
    return a.text(), dict(vgpr=128, sgpr=100 if STAMP else 40, accum=128), f"grid=({N_LN1+N_MOD+N_KG+N_WARM},1,1) block=(256,1,1) lds=38912"

def k2():
    a = Asm()
    CS = 4160; KB = 4 * CS; HB0 = 4 * KB; HS = 4640
    a("s_load_dwordx2 s[6:7], s[0:1], 136")
    a("s_load_dwordx2 s[4:5], s[0:1], 64")
    a("s_cmp_gt_u32 s2, 144")
    a("s_cbranch_scc1 K2_END")
    a("s_cmp_eq_u32 s2, 144")
    a("s_cbranch_scc1 K2_MODF")
    stamp(a, 0)
    a("v_and_b32 v1, 63, v0")
    a("v_lshrrev_b32 v2, 6, v0")
    a("v_readfirstlane_b32 s16, v2")
    a("v_and_b32 v3, 7, v1")
    a("v_lshrrev_b32 v4, 3, v1")
    a("v_lshrrev_b32 v5, 1, v3")
    a("s_lshl_b32 s17, s2, 2")
    a("s_add_u32 s18, s17, s16")
    a.wait_all()
    srd(a, 8, 6, WS_REC)
    a("v_mul_u32_u24 v6, 18432, v4")
    a("v_lshl_add_u32 v6, v3, 4, v6")
    a(f"s_mul_i32 s19, s16, {32*18432}")
    a("s_lshl_b32 s20, s17, 5")
    a("s_add_u32 s19, s19, s20")
    if OFF_NT: a(f"s_add_u32 s19, s19, {OFF_NT}")
    NR = 64
    for i in range(4):
        a(f"buffer_load_dwordx4 v[{NR+4*i}:{NR+4*i+3}], v6, s[8:11], s19 offen", tag=("n", i))
        if i < 3: a(f"s_add_u32 s19, s19, {8*18432}")
    a("v_add_u32 v7, s17, v5"); a("v_lshlrev_b32 v7, 2, v7")
    a("s_lshl_b32 s20, s18, 2"); a("v_mov_b32 v8, s20")
    a(f"s_mov_b32 s21, {OFF_MODP}")
    for ks in range(3):
        a(f"buffer_load_dword v{80+ks}, v7, s[8:11], s21 offen", tag="m")
        a(f"buffer_load_dword v{83+ks}, v7, s[8:11], s21 offen offset:2304", tag="m")
        a(f"s_add_u32 s22, s21, 4608")
        a(f"buffer_load_dword v{86+ks}, v8, s[8:11], s22 offen", tag="m")
        if ks < 2: a(f"s_add_u32 s21, s21, {3456*4}")
    a("s_lshl_b32 s20, s18, 1"); a("v_mov_b32 v9, s20")
    a("global_load_ushort v89, v9, s[4:5]", tag="m")
    a("v_lshlrev_b32 v10, 4, v1")
    a("v_subrev_u32 v11, 4, v10")
    a("s_lshl_b32 s21, s18, 12")
    a(f"s_add_u32 s21, s21, {OFF_KC}")
    a("s_sub_u32 s22, s21, 4")
    KR = 96
    for i in range(4):
        a(f"buffer_load_dwordx4 v[{KR+4*i}:{KR+4*i+3}], v10, s[8:11], s21 offen offset:{1024*i}", tag=("k", i))
        a(f"buffer_load_dword v{KR+16+i}, v10, s[8:11], s22 offen offset:{1024*i}", tag=("k", i))
    a("v_and_b32 v12, 15, v1")
    a("v_lshrrev_b32 v13, 4, v1")
    a("v_mul_u32_u24 v14, 18432, v12")
    a("v_lshl_add_u32 v14, v13, 3, v14")
    a("s_lshl_b32 s23, s18, 5")
    a(f"s_add_u32 s24, s23, {OFF_XT}")
    XR = 200
    for jt in range(8):
        a(f"buffer_load_dwordx2 v[{XR+2*jt}:{XR+2*jt+1}], v14, s[8:11], s24 offen", tag="x")
        if jt < 7: a(f"s_add_u32 s24, s24, {16*18432}")
    a("v_mov_b32 v16, 0"); a("v_mov_b32 v17, 0")
    a(f"s_mul_i32 s25, s16, {HS}"); a(f"s_add_u32 s25, s25, {HB0}")
    a(f"s_mul_i32 s26, s16, {KB}")
    a("v_lshlrev_b32 v15, 3, v1"); a("v_add_u32 v15, s25, v15")
    a("ds_write_b64 v15, v[16:17]")
    a(f"v_mul_u32_u24 v15, {CS}, v13"); a("v_lshl_add_u32 v15, v12, 2, v15"); a("v_add_u32 v15, s26, v15")
    a("ds_write_b32 v15, v16")
    a.wait_vm("m")
    stamp(a, 1)
    for b in (80, 83, 86):
        a(f"v_add_f32 v{b}, v{b}, v{b+1}"); a(f"v_add_f32 v{b}, v{b}, v{b+2}")
        rnd1(a, b)
    a("v_add_f32 v83, 1.0, v83"); rnd1(a, 83)
    a("v_lshlrev_b32 v57, 16, v89")
    a("v_mov_b32 v56, v86")
    a(f"v_mul_u32_u24 v15, {HS}, v5")
    a("v_and_b32 v18, 1, v3")
    a("v_lshl_add_u32 v15, v18, 4, v15")
    a("v_lshl_add_u32 v15, v4, 5, v15")
    a("s_lshl_b32 s27, s16, 10"); a(f"s_add_u32 s27, s27, {HB0+512}")
    a("v_add_u32 v15, s27, v15")
    for i in range(4):
        for q in range(4):
            r = NR+4*i+q
            unpack(a, 18, 19, r)
            a("v_mul_f32 v18, v18, v83"); a("v_mul_f32 v19, v19, v83")
            rnd2(a, 18, 19, 20)
            a("v_add_f32 v18, v18, v80"); a("v_add_f32 v19, v19, v80")
            a(f"v_cvt_pk_bf16_f32 v{r}, v18, v19")
        a(f"ds_write_b128 v15, v[{NR+4*i}:{NR+4*i+3}] offset:{256*i}")
    a("v_add_u32 v15, s26, v10")
    a("v_add_u32 v21, 4, v15")
    a("v_cmp_eq_u32 vcc, 0, v1")
    for i in range(4):
        a.wait_vm(("k", i))
        d = KR+4*i; pv = KR+16+i
        if i == 0: a(f"v_cndmask_b32 v{pv}, v{pv}, v16, vcc")
        a(f"v_alignbit_b32 v24, v{d}, v{pv}, 16")
        for q in range(1, 4): a(f"v_alignbit_b32 v{24+q}, v{d+q}, v{d+q-1}, 16")
        o = 32 + 1024*i
        a(f"ds_write_b128 v15, v[{d}:{d+3}] offset:{o}")
        a(f"ds_write_b128 v15, v[24:27] offset:{o+CS}")
        a(f"v_add_u32 v22, {o+2*CS}, v21")
        a(f"v_add_u32 v23, {o+3*CS}, v21")
        a(f"ds_write2_b32 v22, v{d}, v{d+1} offset0:0 offset1:1")
        a(f"ds_write2_b32 v22, v{d+2}, v{d+3} offset0:2 offset1:3")
        a(f"ds_write2_b32 v23, v24, v25 offset0:0 offset1:1")
        a(f"ds_write2_b32 v23, v26, v27 offset0:2 offset1:3")
    a("v_lshlrev_b32 v18, 5, v12"); a("v_lshl_add_u32 v18, v13, 4, v18")
    a("s_add_u32 s27, s25, 32"); a("v_add_u32 v18, s27, v18")
    a("v_bfe_u32 v19, v1, 2, 2"); a(f"v_mul_u32_u24 v19, {CS}, v19")
    a("v_and_b32 v20, 3, v1"); a("v_lshl_add_u32 v19, v20, 3, v19")
    a("v_lshlrev_b32 v20, 4, v13"); a("v_sub_u32 v19, v19, v20")
    a("s_add_u32 s27, s26, 56"); a("v_add_u32 v19, s27, v19")
    a("v_lshlrev_b32 v20, 5, v12"); a("v_lshl_add_u32 v20, v13, 3, v20")
    a("s_add_u32 s27, s25, 512"); a("v_add_u32 v20, s27, v20")
    ACC = 24
    a.wait_all(vm=False)
    a("s_barrier")
    stamp(a, 2)
    for r in range(32): a(f"v_mov_b32 v{ACC+r}, 0")
    BUF = [(64, 96), (128, 160)]
    def loads(r):
        Bb, Ab = BUF[r & 1]
        L = []
        for u in range(8):
            q = 8*u - r
            L.append(f"ds_read_b128 v[{Bb+4*u}:{Bb+4*u+3}], v18 offset:{64*(q+7)}")
        for aa in range(8):
            m = r + 8*aa
            L.append(f"ds_read_b64_tr_b16 v[{Ab+4*aa}:{Ab+4*aa+1}], v19 offset:{64*m+8}")
            L.append(f"ds_read_b64_tr_b16 v[{Ab+4*aa+2}:{Ab+4*aa+3}], v19 offset:{64*m}")
        return L
    for s in loads(0): a(s)
    for r in range(8):
        a.wait_all(vm=False)
        Bb, Ab = BUF[r & 1]
        nxt = loads(r+1) if r < 7 else [f"ds_read_b64 v[{216+2*jt}:{217+2*jt}], v20 offset:{512*jt}" for jt in range(8)]
        for aa in range(8):
            for jt in range(aa, 8):
                u = jt - aa
                a(f"v_mfma_f32_16x16x32_bf16 v[{ACC+4*jt}:{ACC+4*jt+3}], v[{Ab+4*aa}:{Ab+4*aa+3}], v[{Bb+4*u}:{Bb+4*u+3}], v[{ACC+4*jt}:{ACC+4*jt+3}]")
                if nxt: a(nxt.pop(0))
    a.wait_all()
    stamp(a, 3)
    a(f"s_add_u32 s24, s23, {OFF_X1T}")
    for jt in range(8):
        for h in range(2):
            y0 = ACC+4*jt+2*h; y1 = y0+1
            rnd2(a, y0, y1, 64)
            unpack(a, 65, 66, 216+2*jt+h)
            a("v_mul_f32 v65, v65, v57"); a("v_mul_f32 v66, v66, v57")
            rnd2(a, 65, 66, 64)
            a(f"v_add_f32 v{y0}, v{y0}, v65"); a(f"v_add_f32 v{y1}, v{y1}, v66")
            rnd2(a, y0, y1, 64)
            a(f"v_mul_f32 v{y0}, v{y0}, v56"); a(f"v_mul_f32 v{y1}, v{y1}, v56")
            rnd2(a, y0, y1, 64)
            unpack(a, 65, 66, XR+2*jt+h)
            a(f"v_add_f32 v{y0}, v{y0}, v65"); a(f"v_add_f32 v{y1}, v{y1}, v66")
            a(f"v_cvt_pk_bf16_f32 v{XR+2*jt+h}, v{y0}, v{y1}")
        a(f"buffer_store_dwordx2 v[{XR+2*jt}:{XR+2*jt+1}], v14, s[8:11], s24 offen")
        if jt < 7: a(f"s_add_u32 s24, s24, {16*18432}")
    if STAMP:
        stamp(a, 4); a.wait_all(); stamp(a, 5); stamp_store(a, 6, 2)
    a("s_endpgm")
    a.label("K2_MODF"); a.hist = []; a.vm = []; a.lg = []
    a.wait_all()
    srd(a, 8, 6, WS_REC)
    a("v_lshlrev_b32 v1, 2, v0")
    a("v_lshlrev_b32 v2, 4, v0")
    for q in range(4): a(f"v_mov_b32 v{4+q}, 0")
    a(f"s_mov_b32 s20, {OFF_FLG}")
    a(f"s_mov_b32 s21, {OFF_FLG + 8192}")
    for q in range(4):
        a(f"buffer_store_dwordx4 v[4:7], v2, s[8:11], s{20 + q//2} offen" + (" offset:0" if q % 2 == 0 else ""))
        if q % 2 == 0: a("v_add_u32 v2, 4096, v2")
        else: a("v_subrev_u32 v2, 4096, v2")
    for i in range(7):
        for ks in range(3):
            a(f"s_mov_b32 s20, {OFF_MODP + ks*3456*4 + 1728*4 + 1024*i}")
            a(f"buffer_load_dword v{10+3*i+ks}, v1, s[8:11], s20 offen")
    a.wait_all()
    for i in range(7):
        b = 10+3*i
        a(f"v_add_f32 v{b}, v{b}, v{b+1}"); a(f"v_add_f32 v{b}, v{b}, v{b+2}")
        rnd1(a, b)
        a(f"v_add_f32 v{b+1}, 1.0, v{b}")
        rnd1(a, b+1)
        a(f"v_add_u32 v2, {256*i}, v0")
        a("v_subrev_u32 v3, 576, v2")
        a("v_cmp_gt_u32 vcc, 576, v3")
        a(f"v_cndmask_b32 v{b}, v{b}, v{b+1}, vcc")
        a(f"s_mov_b32 s20, {OFF_MODF + 1024*i}")
        if i == 6:
            a("v_cmp_gt_u32 vcc, 1728, v2")
            a("s_and_saveexec_b64 s[22:23], vcc")
            a("s_cbranch_execz K2_END")
        a(f"buffer_store_dword v{b}, v1, s[8:11], s20 offen")
    a.label("K2_END")
    a("s_endpgm")
    return a.text(), dict(vgpr=232, sgpr=40, accum=232), f"grid=(145,1,1) block=(256,1,1) lds={HB0+4*HS}"

def k3():
    a = Asm()
    RED = 18432
    a("s_load_dwordx2 s[6:7], s[0:1], 136")
    a("s_cmp_ge_u32 s2, 128")
    a("s_cbranch_scc1 K3_END")
    stamp(a, 0)
    a("v_and_b32 v1, 63, v0")
    a("v_lshrrev_b32 v2, 6, v0")
    a("v_readfirstlane_b32 s16, v2")
    a("v_lshlrev_b32 v3, 4, v1")
    a("v_and_b32 v4, 15, v1")
    a("v_lshrrev_b32 v5, 4, v1")
    a("s_mul_i32 s17, s16, 3072")
    a("s_mul_i32 s18, s2, 18432")
    a("s_add_u32 s18, s18, s17")
    a(f"s_add_u32 s18, s18, {OFF_X1T}")
    a.wait_all()
    srd(a, 8, 6, WS_REC)
    a("s_mov_b32 m0, s17")
    for i in range(3):
        a(f"buffer_load_dwordx4 v3, s[8:11], s18 offen offset:{1024*i} lds", tag="x")
    a("s_mul_i32 s19, s16, 384")
    a(f"s_add_u32 s19, s19, {OFF_MODF}")
    a("v_lshlrev_b32 v6, 5, v5")
    SB = 40; CB = 64
    for i in range(3):
        for h in range(2):
            a(f"buffer_load_dwordx4 v[{SB+8*i+4*h}:{SB+8*i+4*h+3}], v6, s[8:11], s19 offen offset:{128*i+16*h}", tag="m")
            a(f"buffer_load_dwordx4 v[{CB+8*i+4*h}:{CB+8*i+4*h+3}], v6, s[8:11], s19 offen offset:{2304+128*i+16*h}", tag="m")
    a("v_bfe_u32 v7, v1, 2, 2"); a("v_lshlrev_b32 v7, 5, v7")
    a("v_and_b32 v8, 3, v1"); a("v_lshl_add_u32 v7, v8, 3, v7")
    a("v_lshl_add_u32 v7, v5, 8, v7")
    a("v_add_u32 v7, s17, v7")
    a.wait_vm("x")
    stamp(a, 1)
    X = 10
    for i in range(3):
        a(f"ds_read_b64_tr_b16 v[{X+4*i}:{X+4*i+1}], v7 offset:{1024*i}", tag=("t", i))
        a(f"ds_read_b64_tr_b16 v[{X+4*i+2}:{X+4*i+3}], v7 offset:{1024*i+128}", tag=("t", i))
    a("v_mul_u32_u24 v8, 1152, v4"); a("v_lshl_add_u32 v8, v5, 4, v8")
    a("s_mul_i32 s20, s2, 18432"); a("s_mul_i32 s21, s16, 192"); a("s_add_u32 s20, s20, s21")
    a(f"s_add_u32 s20, s20, {OFF_X1R}")
    F = 88
    for i in range(3):
        a.wait_lg(("t", i))
        a(f"buffer_store_dwordx4 v[{X+4*i}:{X+4*i+3}], v8, s[8:11], s20 offen offset:{64*i}")
        for q in range(4): unpack(a, F+8*i+2*q, F+8*i+2*q+1, X+4*i+q)
    def xreduce(r, off):
        a(f"v_mov_b32 v24, v{r}")
        a(f"v_permlane32_swap_b32 v24, v{r}")
        a(f"v_add_f32 v{r}, v{r}, v24")
        a(f"v_mov_b32 v24, v{r}")
        a(f"v_permlane16_swap_b32 v24, v{r}")
        a(f"v_add_f32 v{r}, v{r}, v24")
        a(f"ds_write_b32 v22, v{r} offset:{off}")
        a.wait_all(vm=False)
        a("s_barrier")
        a(f"ds_read_b128 v[24:27], v23 offset:{off}")
        a(f"ds_read_b64 v[28:29], v23 offset:{off+16}")
        a.wait_all(vm=False)
        a("v_add_f32 v24, v24, v25"); a("v_add_f32 v26, v26, v27"); a("v_add_f32 v28, v28, v29")
        a("v_add_f32 v24, v24, v26"); a(f"v_add_f32 v{r}, v24, v28")
    a("v_lshlrev_b32 v23, 5, v4")
    a("v_lshl_add_u32 v22, v2, 2, v23")
    a(f"v_add_f32 v30, v{F}, v{F+1}"); a(f"v_add_f32 v31, v{F+2}, v{F+3}")
    for i in range(4, 24, 2):
        a(f"v_add_f32 v30, v30, v{F+i}"); a(f"v_add_f32 v31, v31, v{F+i+1}")
    a("v_add_f32 v30, v30, v31")
    xreduce(30, RED)
    a(f"v_mul_f32 v30, {f32(1.0/576):#x}, v30")
    a("v_mov_b32 v31, 0"); a("v_mov_b32 v32, 0")
    for i in range(0, 24, 2):
        a(f"v_sub_f32 v33, v{F+i}, v30"); a(f"v_sub_f32 v34, v{F+i+1}, v30")
        a("v_fmac_f32 v31, v33, v33"); a("v_fmac_f32 v32, v34, v34")
    a("v_add_f32 v31, v31, v32")
    xreduce(31, RED + 512)
    a(f"v_mul_f32 v31, {f32(1.0/576):#x}, v31")
    rnd1(a, 31)
    a(f"v_add_f32 v31, {f32(1e-5):#x}, v31")
    rnd1(a, 31)
    a("v_sqrt_f32 v31, v31")
    rnd1(a, 31)
    a("v_rcp_f32 v32, v31")
    rnd1(a, 30)
    if G16:
        a("v_lshlrev_b32 v9, 4, v1")
        a("s_mul_i32 s20, s2, 18432"); a("s_add_u32 s20, s20, s17")
    else:
        a("v_lshlrev_b32 v9, 9, v5"); a("v_lshl_add_u32 v9, v4, 4, v9")
        a("s_lshr_b32 s20, s2, 1"); a("s_mul_i32 s20, s20, 36864")
        a("s_and_b32 s21, s2, 1"); a("s_lshl_b32 s21, s21, 8"); a("s_add_u32 s20, s20, s21")
        a("s_mul_i32 s21, s16, 6144"); a("s_add_u32 s20, s20, s21")
    a(f"s_add_u32 s20, s20, {OFF_H2P}")
    a("s_add_u32 s21, s20, 4096")
    stamp(a, 2)
    a.wait_vm("m")
    for i in range(3):
        for q in range(4):
            r0 = F+8*i+2*q; r1 = r0+1
            a(f"v_sub_f32 v{r0}, v{r0}, v30"); a(f"v_sub_f32 v{r1}, v{r1}, v30")
            rnd2(a, r0, r1, 33)
            a(f"v_mul_f32 v33, v{r0}, v32"); a(f"v_mul_f32 v34, v{r1}, v32")
            a(f"v_fma_f32 v{r0}, -v33, v31, v{r0}"); a(f"v_fma_f32 v{r1}, -v34, v31, v{r1}")
            a(f"v_fmac_f32 v33, v{r0}, v32"); a(f"v_fmac_f32 v34, v{r1}, v32")
            rnd2(a, 33, 34, 35)
            a(f"v_mul_f32 v33, v33, v{CB+8*i+2*q}"); a(f"v_mul_f32 v34, v34, v{CB+8*i+2*q+1}")
            rnd2(a, 33, 34, 35)
            a(f"v_add_f32 v33, v33, v{SB+8*i+2*q}"); a(f"v_add_f32 v34, v34, v{SB+8*i+2*q+1}")
            a(f"v_cvt_pk_bf16_f32 v{112+4*i+q}, v33, v34")
        o = (1024 if G16 else 2048)*i
        a(f"buffer_store_dwordx4 v[{112+4*i}:{112+4*i+3}], v9, s[8:11], s{20 + o//4096} offen offset:{o%4096}")
    if STAMP:
        stamp(a, 3); a.wait_all(); stamp(a, 4); stamp_store(a, 5, 3)
    a.label("K3_END")
    a("s_endpgm")
    return a.text(), dict(vgpr=124, sgpr=40, accum=124), f"grid=(128,1,1) block=(384,1,1) lds={RED+1024}"

def dma_voffsets(a, base, pitch, swap23=False):
    t0, t1 = base+9, base+10
    for i in range(9):
        a(f"v_add_u32 v{t0}, {64*i}, v1")
        a(f"v_mul_u32_u24 v{t1}, 3641, v{t0}")
        a(f"v_lshrrev_b32 v{t1}, 16, v{t1}")
        a(f"v_mul_u32_u24 v{base+i}, 18, v{t1}")
        a(f"v_sub_u32 v{t0}, v{t0}, v{base+i}")
        if swap23:
            a(f"v_lshrrev_b32 v{base+i}, 1, v{t1}")
            a(f"v_xor_b32 v{base+i}, v{base+i}, v{t1}")
            a(f"v_and_b32 v{base+i}, 4, v{base+i}")
            a(f"v_mul_u32_u24 v{base+i}, 3, v{base+i}")
            a(f"v_xor_b32 v{t1}, v{t1}, v{base+i}")
        a(f"v_mul_u32_u24 v{base+i}, {pitch}, v{t1}")
        a(f"v_lshl_add_u32 v{base+i}, v{t0}, 4, v{base+i}")

def rot_soffsets(a, rho_s, sD, sT0, sT1, dbase, tb0, tb1, dstage, tmp):
    for j in range(9):
        a(f"s_add_u32 s{tmp}, s{rho_s}, {j}")
        a(f"s_sub_u32 s{tmp+1}, s{tmp}, 9")
        a(f"s_cmp_ge_u32 s{tmp}, 9")
        a(f"s_cselect_b32 s{tmp}, s{tmp+1}, s{tmp}")
        a(f"s_mul_i32 s{tmp+1}, s{tmp}, {dstage}")
        a(f"s_add_u32 s{sD+j}, s{dbase}, s{tmp+1}")
        a(f"s_lshl_b32 s{tmp+1}, s{tmp}, 12")
        a(f"s_add_u32 s{sT0+j}, s{tb0}, s{tmp+1}")
        a(f"s_add_u32 s{sT1+j}, s{tb1}, s{tmp+1}")

def kloop(a, dma, tok, trd, mfma, PF, pro_tok, slots, between=None):
    for i in range(9): dma(0, i)
    for ks in range(pro_tok):
        for b in range(2): tok(ks, b)
    if between: between()
    ops = []
    for st in range(1, 9):
        for i in range(9):
            avail = -1 if st <= 3 else 4*(st-3)+3
            ops.append((4*st-1-0.5, i, avail, dma, (st, i)))
    for ks in range(pro_tok, 36):
        for b in range(2):
            avail = -1 if ks < PF else ks-PF+1
            ops.append((ks, b, avail, tok, (ks, b)))
    ops.sort(key=lambda o: (o[0], o[1]))
    stamp(a, 3)
    a.wait_vm(("d", 0))
    a("s_barrier")
    stamp(a, 4)
    for aa in range(9): trd(0, aa)
    for ks in range(36):
        st, kk = divmod(ks, 4)
        if kk == 3 and st < 8:
            assert not any(o[3] is dma and o[4][0] == st+1 for o in ops), (ks,)
            a.wait_vm(("d", st+1))
            a("s_barrier")
        assert not any(o[3] is tok and o[4][0] == ks for o in ops), (ks,)
        a.wait_vm(("t", ks))
        for aa in range(9):
            a.wait_lg(("a", ks, aa))
            for b in range(2): mfma(ks, aa, b)
            if ks < 35: trd(ks+1, aa)
            if aa in slots:
                for o in ops:
                    if o[2] <= ks:
                        ops.remove(o); o[3](*o[4]); break
    assert not ops

def k4():
    a = Asm()
    SLOT = 37120; UPO = 18560; NSLOT = 4; PF = 8
    a("s_load_dwordx2 s[6:7], s[0:1], 136")
    a("s_load_dwordx4 s[12:15], s[0:1], 80")
    a("s_cmp_ge_u32 s2, 256")
    a("s_cbranch_scc1 K4_END")
    stamp(a, 0)
    M = 224
    a(f"v_and_b32 v{M}, 63, v0")
    a(f"v_lshrrev_b32 v{M+1}, 6, v0")
    a(f"v_readfirstlane_b32 s16, v{M+1}")
    a(f"v_mov_b32 v1, v{M}")
    a("s_and_b32 s17, s2, 7"); a("s_lshr_b32 s18, s2, 3")
    a("s_and_b32 s19, s18, 3"); a("s_lshl_b32 s17, s17, 2"); a("s_add_u32 s17, s17, s19")
    a("s_lshr_b32 s18, s18, 2")
    a("s_lshl_b32 s19, s19, 1"); a("s_add_u32 s19, s19, s18")
    a("s_sub_u32 s20, s19, 9"); a("s_cmp_ge_u32 s19, 9"); a("s_cselect_b32 s19, s20, s19")
    if EXP == "norot": a("s_mov_b32 s19, 0")
    DV = M+2
    dma_voffsets(a, DV, 9216)
    a("s_and_b32 s22, s16, 1"); a("s_lshr_b32 s23, s16, 1")
    a(f"s_mul_i32 s28, s22, {32*9216}"); a("s_mul_i32 s30, s17, 288"); a("s_add_u32 s28, s28, s30")
    a(f"s_mul_i32 s29, s23, {UPO}"); a("s_mul_i32 s30, s22, 9216"); a("s_add_u32 s29, s29, s30")
    VT = M+13
    a(f"v_lshlrev_b32 v{VT}, 4, v{M}")
    a("s_lshl_b32 s31, s18, 3"); a("s_lshl_b32 s30, s16, 1"); a("s_add_u32 s31, s31, s30")
    a("s_mul_i32 s31, s31, 36864"); a(f"s_add_u32 s31, s31, {OFF_H2P}")
    a("s_add_u32 s32, s31, 36864")
    SD, ST0, ST1 = 33, 42, 51
    rot_soffsets(a, 19, SD, ST0, ST1, 28, 31, 32, 64*9216, 22)
    a.wait_all()
    stamp(a, 1)
    srd(a, 8, 6, WS_REC)
    a("s_cmp_ge_u32 s16, 2")
    a("s_cselect_b32 s20, s14, s12"); a("s_cselect_b32 s21, s15, s13")
    srd(a, 24, 20, 576*9216)
    AF = 64; BR = 100
    VA = M+14; VS = M+16
    def dma(st, i):
        a(f"s_add_u32 m0, s29, {(st % NSLOT)*SLOT + i*1024}")
        a(f"buffer_load_dwordx4 v{DV+i}, s[24:27], s{SD+st} offen lds", tag=("d", st))
    def tok(ks, b):
        rb = BR + 8 * (ks % PF) + 4*b
        a(f"buffer_load_dwordx4 a[{rb}:{rb+3}], v{VT}, s[8:11], s{(ST0, ST1)[b] + ks//4} offen offset:{(ks % 4)*1024}", tag=("t", ks))
    def acc(t):
        return f"v[{16*t}:{16*t+15}]" if t < 14 else f"a[{16*(t-14)}:{16*(t-14)+15}]"
    def trd(ks, aa):
        if EXP == "notr" and ks > 1: return
        st, kk = divmod(ks, 4); slot = st % NSLOT
        off = (slot & 1)*SLOT + kk*4608 + aa*32
        va = VA + (slot >> 1)
        a(f"ds_read_b64_tr_b16 a[{AF+4*aa}:{AF+4*aa+1}], v{va} offset:{off}", tag=("a", ks, aa))
        a(f"ds_read_b64_tr_b16 a[{AF+4*aa+2}:{AF+4*aa+3}], v{va} offset:{off+1152}", tag=("a", ks, aa))
    def mfma(ks, aa, b):
        t = 2*aa + b; rb = BR + 8 * (ks % PF) + 4*b
        if EXP == "m16":
            for hh in range(2):
                o = 8*(ks & 1) + 4*hh
                c = f"v[{16*t+o}:{16*t+o+3}]" if t < 14 else f"a[{16*(t-14)+o}:{16*(t-14)+o+3}]"
                a(f"v_mfma_f32_16x16x32_bf16 {c}, a[{AF+4*aa}:{AF+4*aa+3}], a[{rb}:{rb+3}], {c if ks > 1 else 0}")
                if a.defer: a.defer.pop(0)()
            return
        a(f"v_mfma_f32_32x32x16_bf16 {acc(t)}, a[{AF+4*aa}:{AF+4*aa+3}], a[{rb}:{rb+3}], {acc(t) if ks else 0}")
    def between():
        stamp(a, 2)
        a(f"v_bfe_u32 v2, v{M}, 4, 1"); a(f"v_mul_u32_u24 v{VA}, {UPO}, v2")
        a(f"v_lshrrev_b32 v2, 5, v{M}"); a(f"v_bfe_u32 v3, v{M}, 2, 2"); a("v_lshl_add_u32 v2, v2, 3, v3")
        a("v_mul_u32_u24 v2, 288, v2"); a(f"v_add_u32 v{VA}, v{VA}, v2")
        a(f"v_and_b32 v2, 3, v{M}"); a(f"v_lshl_add_u32 v{VA}, v2, 3, v{VA}")
        a(f"v_add_u32 v{VA+1}, {2*SLOT}, v{VA}")
        a(f"v_bfe_u32 v2, v{M}, 4, 1"); a(f"v_mul_u32_u24 v{VS}, 147456, v2")
        a(f"v_lshrrev_b32 v2, 5, v{M}"); a(f"v_lshl_add_u32 v{VS}, v2, 8, v{VS}")
        a(f"v_and_b32 v2, 15, v{M}"); a(f"v_lshl_add_u32 v{VS}, v2, 4, v{VS}")
        a("s_lshl_b32 s20, s18, 4"); a("s_lshl_b32 s21, s16, 2"); a("s_add_u32 s20, s20, s21")
        a("s_mul_i32 s20, s20, 147456"); a("s_mul_i32 s21, s17, 4608"); a("s_add_u32 s20, s20, s21")
        a(f"s_add_u32 s20, s20, {OFF_HM}")
        a("s_add_u32 s21, s20, 4096")
        a(f"s_add_u32 s22, s20, {2*147456}")
        a("s_add_u32 s23, s22, 4096")
    kloop(a, dma, tok, trd, mfma, PF, 3, (0, 2, 3, 5, 6, 8), between)
    stamp(a, 5)
    T = M+18
    for t in range(18):
        aa, b = divmod(t, 2)
        if t < 14:
            g = 16*t
        else:
            g = 0
            for r in range(16): a(f"v_accvgpr_read_b32 v{g+r}, a{16*(t-14)+r}")
        o = T + 4*(t % 3)
        for q in range(4):
            a(f"v_pk_mul_f32 v[{g+2*q}:{g+2*q+1}], v[{g+2*q}:{g+2*q+1}], v[{g+8+2*q}:{g+8+2*q+1}]")
        for q in range(4):
            a(f"v_cvt_pk_bf16_f32 v{o+q}, v{g+2*q}, v{g+2*q+1}")
        so = 20 + 2*b + (1 if aa == 8 else 0)
        a(f"buffer_store_dwordx4 v[{o}:{o+3}], v{VS}, s[8:11], s{so} offen offset:{(aa*512) % 4096}")
    if STAMP:
        stamp(a, 6); a.wait_all(); stamp(a, 7); stamp_store(a, 8, 4)
    a.label("K4_END")
    a("s_endpgm")
    return a.text(), dict(vgpr=256+BR+8*PF, sgpr=60, accum=256), f"grid=(256,1,1) block=(256,1,1) lds={NSLOT*SLOT}"

def k4b():
    a = Asm()
    SLOT = 36864; UPO = 18432; NSLOT = 4; PF = 4; NA = 6
    a("s_load_dwordx2 s[6:7], s[0:1], 136")
    a("s_load_dwordx4 s[12:15], s[0:1], 80")
    a("s_cmp_ge_u32 s2, 256")
    a("s_cbranch_scc1 K4_END")
    stamp(a, 0)
    M = 224
    a(f"v_and_b32 v{M}, 63, v0")
    a(f"v_lshrrev_b32 v{M+1}, 6, v0")
    a(f"v_readfirstlane_b32 s16, v{M+1}")
    a(f"v_mov_b32 v1, v{M}")
    a("s_and_b32 s17, s2, 7"); a("s_lshr_b32 s18, s2, 3")
    a("s_and_b32 s19, s18, 3"); a("s_lshl_b32 s17, s17, 2"); a("s_add_u32 s17, s17, s19")
    a("s_lshr_b32 s18, s18, 2")
    a("s_lshl_b32 s19, s19, 1"); a("s_add_u32 s19, s19, s18")
    a("s_sub_u32 s20, s19, 9"); a("s_cmp_ge_u32 s19, 9"); a("s_cselect_b32 s19, s20, s19")
    if EXP == "norot": a("s_mov_b32 s19, 0")
    DV = M+2
    dma_voffsets(a, DV, 9216, swap23=True)
    a("s_and_b32 s22, s16, 1"); a("s_lshr_b32 s23, s16, 1")
    a(f"s_mul_i32 s28, s22, {32*9216}"); a("s_mul_i32 s30, s17, 288"); a("s_add_u32 s28, s28, s30")
    a(f"s_mul_i32 s29, s23, {UPO}"); a("s_mul_i32 s30, s22, 9216"); a("s_add_u32 s29, s29, s30")
    VT = M+13
    a(f"v_lshlrev_b32 v{VT}, 4, v{M}")
    for b in range(1, 4): a(f"v_add_u32 v{VT+b}, {18432*b}, v{VT}")
    a("s_lshl_b32 s31, s18, 4"); a("s_lshl_b32 s30, s16, 2"); a("s_add_u32 s31, s31, s30")
    a("s_mul_i32 s32, s31, 18432"); a(f"s_add_u32 s32, s32, {OFF_H2P}")
    SD, ST = 33, 42
    for j in range(9):
        a(f"s_add_u32 s22, s19, {j}"); a("s_sub_u32 s23, s22, 9"); a("s_cmp_ge_u32 s22, 9"); a("s_cselect_b32 s22, s23, s22")
        a(f"s_mul_i32 s23, s22, {64*9216}"); a(f"s_add_u32 s{SD+j}, s28, s23")
        a("s_lshl_b32 s23, s22, 11"); a(f"s_add_u32 s{ST+j}, s32, s23")
    a.wait_all()
    stamp_n(a, 1)
    srd(a, 8, 6, WS_REC)
    a("s_cmp_ge_u32 s16, 2")
    a("s_cselect_b32 s20, s14, s12"); a("s_cselect_b32 s21, s15, s13")
    srd(a, 24, 20, 576*9216)
    AF = 64; BR = AF + 4*NA
    VA = M+17
    def dma(st, i):
        a(f"s_add_u32 m0, s29, {(st % NSLOT)*SLOT + i*1024}")
        a(f"buffer_load_dwordx4 v{DV+i}, s[24:27], s{SD+st} offen lds", tag=("d", st))
    def tok(ks, b):
        rb = BR + 16 * (ks % PF) + 4*b
        a(f"buffer_load_dwordx4 a[{rb}:{rb+3}], v{VT+b}, s[8:11], s{ST + ks//2} offen offset:{(ks % 2)*1024}", tag=("t", ks))
    def accr(mat, aa, b):
        if aa < 7: return ("v", 32*aa + 16*mat + 4*b)
        return ("a", 32*(aa-7) + 16*mat + 4*b)
    def acc(mat, aa, b):
        k, r = accr(mat, aa, b); return f"{k}[{r}:{r+3}]"
    def trd(n, q):
        if EXP == "notr" and n > 40: return
        ks, fi = divmod(n, 18); aa, mat = divmod(fi, 2)
        st, kk = divmod(ks, 2); slot = st % NSLOT
        off = mat*UPO + kk*9216 + aa*32 + q*2304
        r = AF + 4*(n % NA) + 2*q
        a(f"ds_read_b64_tr_b16 a[{r}:{r+1}], v{VA+slot} offset:{off}", tag=("a", n))
    for i in range(9): dma(0, i)
    for b in range(4): tok(0, b)
    stamp_n(a, 2)
    a(f"v_lshrrev_b32 v2, 5, v{M}"); a("v_lshlrev_b32 v2, 4, v2")
    a(f"v_bfe_u32 v3, v{M}, 4, 1"); a("v_lshl_add_u32 v2, v3, 2, v2")
    a(f"v_bfe_u32 v3, v{M}, 2, 2"); a("v_add_u32 v2, v2, v3")
    a(f"v_mul_u32_u24 v{VA}, 288, v2")
    a(f"v_and_b32 v2, 3, v{M}"); a(f"v_lshl_add_u32 v{VA}, v2, 3, v{VA}")
    for sl in range(1, 4): a(f"v_add_u32 v{VA+sl}, {sl*SLOT}, v{VA}")
    a("s_mul_i32 s20, s31, 147456"); a("s_mul_i32 s21, s17, 9"); a("s_lshr_b32 s21, s21, 1"); a("s_lshl_b32 s21, s21, 10")
    a("s_add_u32 s20, s20, s21"); a(f"s_add_u32 s52, s20, {OFF_HM}")
    for b in range(1, 4): a(f"s_add_u32 s{52+b}, s52, {147456*b}")
    for b in range(4): a(f"s_add_u32 s{56+b}, s{52+b}, 4096")
    NF = 18*18
    D = NA - 1
    ops = []
    for st in range(1, 9):
        for i in range(9):
            ops.append((36*st - D - 0.5, i, -1 if st <= 3 else 36*(st-2) - D, dma, (st, i)))
    for ks in range(1, 18):
        for b in range(4):
            ops.append((18*ks, b, -1 if ks < PF else 18*(ks-PF+1), tok, (ks, b)))
    ops.sort(key=lambda o: (o[0], o[1]))
    stamp_n(a, 3)
    a.wait_vm(("d", 0))
    a("s_barrier")
    if EXP == "stages": stamp(a, 1)
    stamp_n(a, 4)
    for n in range(D):
        trd(n, 0); trd(n, 1)
    for n in range(NF):
        ks, fi = divmod(n, 18); aa, mat = divmod(fi, 2)
        if (n + D) % 36 == 0 and n + D < NF:
            st1 = (n + D)//36
            assert not any(o[3] is dma and o[4][0] == st1 for o in ops)
            a.wait_vm(("d", st1))
            a("s_barrier")
            if EXP == "stages" and st1 in (1, 2, 3, 5, 7): lg = list(a.lg); stamp(a, {1:2, 2:3, 3:4, 5:5, 7:6}[st1])
        if fi == 0:
            assert not any(o[3] is tok and o[4][0] == ks for o in ops)
            a.wait_vm(("t", ks))
        a.wait_lg(("a", n))
        ar = AF + 4*(n % NA)
        for b in range(4):
            rb = BR + 16 * (ks % PF) + 4*b
            c = acc(mat, aa, b)
            a(f"v_mfma_f32_16x16x32_bf16 {c}, a[{ar}:{ar+3}], a[{rb}:{rb+3}], {c if ks else 0}")
            if b < 2 and n + D < NF: trd(n + D, b)
            if b == 2 and (n % 3 != 2):
                for o in ops:
                    if o[2] <= n:
                        ops.remove(o); o[3](*o[4]); break
    assert not ops
    stamp_n(a, 5)
    T = M+21
    T = 246
    def prod(aa, b, o):
        (k, g), (_, u) = accr(0, aa, b), accr(1, aa, b)
        if k == "a":
            for r in range(4):
                a(f"v_accvgpr_read_b32 v{0+r}, a{g+r}"); a(f"v_accvgpr_read_b32 v{4+r}, a{u+r}")
            g, u = 0, 4
        for q in range(2):
            a(f"v_pk_mul_f32 v[{g+2*q}:{g+2*q+1}], v[{g+2*q}:{g+2*q+1}], v[{u+2*q}:{u+2*q+1}]")
        for q in range(2):
            a(f"v_cvt_pk_bf16_f32 v{o+q}, v{g+2*q}, v{g+2*q+1}")
    def epi(par):
        cnt = 0
        groups = [(0, 1), (2, 3), (4, 5), (6, 7), (8,)] if par == 0 else [(0,), (1, 2), (3, 4), (5, 6), (7, 8)]
        for gr in groups:
            for b in range(4):
                o = T + 4*(cnt % 2); cnt += 1
                L = gr[0] + par; kap = L >> 1
                so = (52 if kap < 4 else 56) + b; im = (kap % 4)*1024
                if len(gr) == 2:
                    prod(gr[0], b, o); prod(gr[1], b, o+2)
                    a(f"buffer_store_dwordx4 v[{o}:{o+3}], v{VT}, s[8:11], s{so} offen offset:{im}")
                else:
                    prod(gr[0], b, o)
                    a(f"buffer_store_dwordx2 v[{o}:{o+1}], v{VT}, s[8:11], s{so} offen offset:{im + 8*(L & 1)}")
    a("s_bitcmp1_b32 s17, 0")
    a("s_cbranch_scc1 K4_ODD")
    h = list(a.hist); vm = list(a.vm)
    epi(0)
    a("s_branch K4_FIN")
    a.label("K4_ODD"); a.hist = h; a.vm = vm
    epi(1)
    a.label("K4_FIN")
    if STAMP:
        stamp_n(a, 6); a.wait_all(); stamp(a, 7); stamp_store(a, 8, 4)
    a.label("K4_END")
    a("s_endpgm")
    return a.text(), dict(vgpr=256+BR+16*PF, sgpr=60, accum=256), f"grid=(256,1,1) block=(256,1,1) lds={NSLOT*SLOT}"

F_LN1, F_MOD, F_FIN, F_CH, F_WARM, F_END = 0, 128, 236, 240, 816, 924
def poll_dbg(a, label, vflag, vaddr, lo, hi, tmp_s, depth=2):
    msk = ((1 << hi) - 1) ^ ((1 << lo) - 1)
    a(f"s_mov_b32 s{tmp_s}, 0x8000")
    a(f"s_mov_b32 s{tmp_s+2}, {msk & 0xffffffff:#x}"); a(f"s_mov_b32 s{tmp_s+3}, {msk >> 32:#x}")
    a(f"s_mov_b32 s{tmp_s+1}, 0x01010101")
    a.label(label)
    a(f"buffer_load_dword v{vflag}, v{vaddr}, s[24:27], 0 offen sc1")
    a("s_waitcnt vmcnt(0)")
    a(f"v_cmp_eq_u32 vcc, s{tmp_s+1}, v{vflag}")
    a(f"s_and_b64 s[{tmp_s+4}:{tmp_s+5}], vcc, s[{tmp_s+2}:{tmp_s+3}]")
    a(f"s_cmp_eq_u64 s[{tmp_s+4}:{tmp_s+5}], s[{tmp_s+2}:{tmp_s+3}]")
    a(f"s_cbranch_scc1 {label}_X")
    a(f"s_sub_u32 s{tmp_s}, s{tmp_s}, 1")
    a(f"s_cbranch_scc0 {label}")
    a.label(label + "_X")
    a.vm = []

def kf():
    a = Asm()
    stamp(a, 0)
    a("s_load_dwordx2 s[6:7], s[0:1], 136")
    a("s_load_dwordx2 s[34:35], s[0:1], 128")
    a("s_cmp_lg_u32 s2, 0")
    a("s_cbranch_scc1 KF_NM")
    a("v_and_b32 v3, 63, v0"); a("v_lshlrev_b32 v44, 6, v3"); a("v_mov_b32 v4, 0")
    a("v_lshrrev_b32 v9, 6, v0"); a("v_lshl_add_u32 v45, v9, 12, v44")
    a(f"s_mov_b32 s44, {OFF_PF}")
    a.wait_all()
    srd(a, 8, 6, WS_REC)
    a("buffer_store_dword v4, v45, s[8:11], s44 offen sc1")
    a("s_branch KF_FIN")
    a.label("KF_NM"); a.hist = []; a.vm = []; a.lg = []
    a(f"s_cmp_ge_u32 s2, {F_CH}")
    a("s_cbranch_scc1 KF_CH")
    a("s_sub_u32 s2, s2, 1")
    a(f"s_cmp_ge_u32 s2, {F_FIN}")
    a("s_cbranch_scc1 KF_END")
    a(f"s_cmp_ge_u32 s2, {F_MOD}")
    a("s_cbranch_scc1 KF_MOD")
    def signal():
        a("v_mov_b32 v1, s2"); a("v_mov_b32 v2, 1"); a("v_lshlrev_b32 v3, 6, v1")
        a(f"s_mov_b32 s20, {OFF_PF}")
        a("s_mov_b64 exec, 1")
        a("buffer_store_dword v2, v3, s[8:11], s20 offen sc1")
        a("buffer_store_byte v2, v1, s[24:27], 0 offen sc1")
    PITCH = 1216; LN_N = 0; LN_X = 16 * PITCH
    a("s_setprio 3")
    a("s_load_dwordx2 s[4:5], s[0:1], 0")
    a("v_lshrrev_b32 v1, 4, v0")
    a("v_and_b32 v2, 15, v0")
    a("v_mul_u32_u24 v3, 1152, v1")
    a("v_lshl_add_u32 v3, v2, 3, v3")
    a("s_mul_i32 s3, s2, 18432")
    a.wait_all()
    srd(a, 12, 4, 2048*1152)
    srd(a, 8, 6, WS_REC)
    srd(a, 24, 34, 256)
    X = 10
    for k in range(9):
        a(f"buffer_load_dwordx2 v[{X+2*k}:{X+2*k+1}], v3, s[12:15], s3 offen offset:{128*k}", tag=("x", k))
    if EXP == "touch":
        a("s_lshl_b32 s21, s3, 1"); a("v_lshlrev_b32 v64, 7, v0")
        a("buffer_load_dword v65, v64, s[8:11], s21 offen")
    a(f"v_mul_u32_u24 v4, {PITCH}, v1")
    a("v_lshl_add_u32 v4, v2, 3, v4")
    F = 28
    for k in range(9):
        a.wait_vm(("x", k))
        for h in range(2):
            unpack(a, F+4*k+2*h, F+4*k+2*h+1, X+2*k+h)
        a(f"ds_write_b64 v4, v[{X+2*k}:{X+2*k+1}] offset:{LN_X+128*k}")
    stamp(a, 1)
    a(f"v_add_f32 v5, v{F}, v{F+1}")
    a(f"v_add_f32 v6, v{F+2}, v{F+3}")
    for i in range(4, 36, 2):
        a(f"v_add_f32 v5, v5, v{F+i}")
        a(f"v_add_f32 v6, v6, v{F+i+1}")
    a("v_add_f32 v5, v5, v6")
    row16_sum(a, 5)
    a(f"v_mul_f32 v5, {f32(1.0/576):#x}, v5")
    a("v_mov_b32 v6, 0"); a("v_mov_b32 v7, 0")
    for i in range(0, 36, 2):
        a(f"v_sub_f32 v8, v{F+i}, v5"); a(f"v_sub_f32 v9, v{F+i+1}, v5")
        a("v_fmac_f32 v6, v8, v8"); a("v_fmac_f32 v7, v9, v9")
    a("v_add_f32 v6, v6, v7")
    row16_sum(a, 6)
    a(f"v_mul_f32 v6, {f32(1.0/576):#x}, v6")
    rnd1(a, 6)
    a(f"v_add_f32 v6, {f32(1e-5):#x}, v6")
    rnd1(a, 6)
    a("v_sqrt_f32 v6, v6")
    rnd1(a, 6)
    a("v_rcp_f32 v7, v6")
    rnd1(a, 5)
    for k in range(9):
        for h in range(2):
            r0 = F+4*k+2*h; r1 = r0+1
            a(f"v_sub_f32 v{r0}, v{r0}, v5"); a(f"v_sub_f32 v{r1}, v{r1}, v5")
            rnd2(a, r0, r1, 8)
            a(f"v_mul_f32 v8, v{r0}, v7"); a(f"v_mul_f32 v9, v{r1}, v7")
            a(f"v_fma_f32 v{r0}, -v8, v6, v{r0}"); a(f"v_fma_f32 v{r1}, -v9, v6, v{r1}")
            a(f"v_fmac_f32 v8, v{r0}, v7"); a(f"v_fmac_f32 v9, v{r1}, v7")
            a(f"v_cvt_pk_bf16_f32 v{X+2*k+h}, v8, v9")
        a(f"ds_write_b64 v4, v[{X+2*k}:{X+2*k+1}] offset:{LN_N+128*k}")
    a("v_and_b32 v1, 63, v0")
    a("v_lshrrev_b32 v2, 6, v0")
    a("v_readfirstlane_b32 s16, v2")
    a("v_bfe_u32 v5, v1, 4, 1")
    a("v_lshrrev_b32 v6, 5, v1")
    a("v_bfe_u32 v7, v1, 2, 2")
    a("v_and_b32 v8, 3, v1")
    a("v_lshl_add_u32 v7, v5, 3, v7")
    a("v_lshl_add_u32 v7, v6, 4, v7")
    a(f"v_mul_u32_u24 v7, {PITCH}, v7")
    a("v_lshl_add_u32 v7, v8, 3, v7")
    a("s_mul_i32 s19, s16, 288")
    a("v_add_u32 v7, s19, v7")
    a("v_and_b32 v9, 15, v1"); a("v_lshlrev_b32 v9, 6, v9")
    a("v_lshrrev_b32 v3, 4, v1"); a("v_lshl_add_u32 v9, v3, 4, v9")
    a("s_lshl_b32 s21, s3, 1"); a("s_mul_i32 s22, s16, 9216"); a("s_add_u32 s21, s21, s22")
    if OFF_NT: a(f"s_add_u32 s21, s21, {OFF_NT}")
    a("s_add_u32 s22, s21, 4096")
    a("s_add_u32 s23, s21, 8192")
    a.wait_all(vm=False)
    a("s_barrier")
    stamp(a, 2)
    for i in range(9):
        a(f"ds_read_b64_tr_b16 v[{F+4*i}:{F+4*i+1}], v7 offset:{32*i}", tag=("t", i))
        a(f"ds_read_b64_tr_b16 v[{F+4*i+2}:{F+4*i+3}], v7 offset:{32*i+4*PITCH}", tag=("t", i))
    for i in range(9):
        a.wait_lg(("t", i))
        a(f"buffer_store_dwordx4 v[{F+4*i}:{F+4*i+3}], v9, s[8:11], s{21+i//4} offen offset:{1024*(i%4)} sc1")
    a.wait_all()
    a("s_barrier")
    stamp(a, 3)
    a("s_cmp_lg_u32 s16, 0")
    a("s_cbranch_scc1 KF_LE")
    signal()
    a.label("KF_LE")
    stamp_store(a, 4, 1)
    a("s_endpgm")
    a.label("KF_MOD"); a.hist = []; a.vm = []; a.lg = []
    a("s_setprio 3")
    a("s_load_dwordx2 s[4:5], s[0:1], 112")
    a("s_load_dwordx2 s[16:17], s[0:1], 104")
    a(f"s_sub_u32 s3, s2, {F_MOD}")
    a("s_cmp_ge_u32 s3, 54"); a("s_cselect_b32 s20, 1, 0")
    a("s_mul_i32 s21, s20, 54"); a("s_sub_u32 s21, s3, s21")
    a("v_lshrrev_b32 v1, 3, v0")
    a("v_and_b32 v2, 7, v0")
    a("v_mul_u32_u24 v3, 6912, v1")
    a("v_lshl_add_u32 v3, v2, 4, v3")
    a("v_lshlrev_b32 v4, 1, v1")
    a(f"s_mul_i32 s22, s20, {288*6912}")
    a("s_lshl_b32 s23, s21, 7")
    a("s_add_u32 s22, s22, s23")
    a("s_mul_i32 s23, s20, 576")
    a.wait_all()
    srd(a, 12, 4, 576*6912)
    srd(a, 28, 16, 1152)
    srd(a, 8, 6, WS_REC)
    srd(a, 24, 34, 256)
    for i in range(9):
        a(f"buffer_load_ushort v{10+i}, v4, s[28:31], s23 offen offset:{64*i}", tag="c")
    for i in range(9):
        a(f"buffer_load_dwordx4 v[{20+4*i}:{23+4*i}], v3, s[12:15], s22 offen", tag=("w", i))
        if i < 8: a(f"s_add_u32 s22, s22, {32*6912}")
    for j in range(8): a(f"v_mov_b32 v{56+j}, 0")
    a.wait_vm("c")
    for i in range(9):
        r = 10+i
        a(f"v_lshlrev_b32 v{r}, 16, v{r}")
        a(f"v_mul_f32 v5, {(LOG2E|0x80000000):#x}, v{r}")
        a("v_exp_f32 v5, v5")
        a("v_add_f32 v5, 1.0, v5")
        a("v_rcp_f32 v5, v5")
        a(f"v_mul_f32 v{r}, v{r}, v5")
        rnd1(a, r)
    for i in range(9):
        a.wait_vm(("w", i))
        for q in range(4):
            unpack(a, 5, 6, 20+4*i+q)
            a(f"v_fmac_f32 v{56+2*q}, v{10+i}, v5")
            a(f"v_fmac_f32 v{57+2*q}, v{10+i}, v6")
    stamp(a, 1)
    a("v_lshlrev_b32 v5, 8, v1")
    a("v_lshl_add_u32 v5, v2, 5, v5")
    a("ds_write_b128 v5, v[56:59]")
    a("ds_write_b128 v5, v[60:63] offset:16")
    a("v_lshlrev_b32 v6, 2, v0")
    a("v_lshrrev_b32 v7, 6, v0")
    a("v_readfirstlane_b32 s16, v7")
    a.wait_all(vm=False)
    a("s_barrier")
    stamp(a, 2)
    a("s_cmp_lg_u32 s16, 0")
    a("s_cbranch_scc1 KF_END")
    for i in range(32):
        a(f"ds_read_b32 v{10+i}, v6 offset:{256*i}", tag=("r", i))
    a.wait_all(vm=False)
    for st in (16, 8, 4, 2, 1):
        for i in range(st):
            a(f"v_add_f32 v{10+i}, v{10+i}, v{10+i+st}")
    a(f"s_mul_i32 s22, s20, {3456*4}")
    a("s_lshl_b32 s23, s21, 8")
    a("s_add_u32 s22, s22, s23")
    a(f"s_add_u32 s22, s22, {OFF_MODP}")
    a("buffer_store_dword v10, v6, s[8:11], s22 offen sc1")
    a.wait_all()
    stamp(a, 3)
    signal()
    stamp_store(a, 4, 1)
    a("s_endpgm")
    a.label("KF_FIN"); a.hist = []; a.vm = []; a.lg = []
    a("s_setprio 3")
    a("v_lshlrev_b32 v1, 2, v0")
    a("v_lshlrev_b32 v3, 2, v3")
    a("v_lshlrev_b32 v2, 4, v0")
    for q in range(1, 4): a(f"v_mov_b32 v{4+q}, 0")
    srd(a, 24, 34, 256)
    a("v_readfirstlane_b32 s16, v9")
    for q in range(1, 4): a(f"s_mov_b32 s{44+q}, {OFF_PF + 4096*q}")
    a("s_mov_b32 s36, 0x8000")
    a(f"s_mov_b32 s38, {(1 << 32) - 1:#x}"); a(f"s_mov_b32 s39, {(1 << (F_FIN - 192 - 32)) - 1:#x}")
    a(f"s_mov_b32 s40, {(1 << 32) - 1:#x}"); a(f"s_mov_b32 s41, {(1 << 27) - 1:#x}")
    a("s_mov_b32 s37, 0x01010101")
    a.wait_all()
    a("s_barrier")
    a("s_cmp_lg_u32 s16, 0")
    a("s_cbranch_scc1 KF_FB")
    a.label("KF_PF")
    for q in range(4): a(f"buffer_load_dword v{45+q}, v44, s[8:11], s{44+q} offen sc1")
    a("s_waitcnt vmcnt(0)")
    a("v_min_u32 v45, v45, v46"); a("v_min_u32 v45, v45, v47")
    a("v_cmp_eq_u32 vcc, 0, v48")
    a("s_and_b64 s[42:43], vcc, s[38:39]")
    a("v_cmp_eq_u32 vcc, 0, v45")
    a("s_or_b64 s[42:43], s[42:43], vcc")
    a("s_cbranch_scc0 KF_PF_X")
    a("s_sub_u32 s36, s36, 1")
    a("s_cbranch_scc1 KF_PF_X")
    a("s_and_b32 s42, s36, 15")
    a("s_cbranch_scc1 KF_PF")
    a("buffer_load_dword v49, v3, s[24:27], 0 offen sc1")
    a("s_waitcnt vmcnt(0)")
    a("v_cmp_ne_u32 vcc, s37, v49")
    a("s_and_b64 s[42:43], vcc, s[40:41]")
    a("s_cbranch_scc1 KF_PF")
    a.label("KF_PF_X"); a.hist = []; a.vm = []
    a("v_mov_b32 v8, 252"); a("v_mov_b32 v9, 1")
    a("s_mov_b64 exec, 1")
    a("buffer_store_dword v9, v8, s[24:27], 0 offen sc1")
    a("s_mov_b64 exec, -1")
    a.label("KF_FB"); a.hist = []
    a("s_barrier")
    a("v_mov_b32 v40, 1"); a("v_lshlrev_b32 v41, 6, v0")
    for q in range(2):
        a(f"s_mov_b32 s20, {OFF_REP + 16384*q}")
        a("buffer_store_dword v40, v41, s[8:11], s20 offen sc1")
    a(f"s_mov_b32 s20, {OFF_REP + 32768}")
    a("s_cmp_lg_u32 s16, 0")
    a("s_cbranch_scc1 KF_FC")
    a("buffer_store_dword v40, v41, s[8:11], s20 offen sc1")
    a.label("KF_FC")
    for q in range(4):
        a(f"s_mov_b32 s20, {OFF_FLG + 4096*q}")
        a("buffer_store_dwordx4 v[4:7], v2, s[8:11], s20 offen")
    for i in range(7):
        for ks in range(2):
            a(f"s_mov_b32 s20, {OFF_MODP + ks*3456*4 + 1728*4 + 1024*i}")
            a(f"buffer_load_dword v{10+2*i+ks}, v1, s[8:11], s20 offen sc1")
    a.wait_all()
    for i in range(7):
        b = 10+2*i
        a(f"v_add_f32 v{b}, v{b}, v{b+1}")
        rnd1(a, b)
        a(f"v_add_f32 v{b+1}, 1.0, v{b}")
        rnd1(a, b+1)
        a(f"v_add_u32 v2, {256*i}, v0")
        a("v_subrev_u32 v3, 576, v2")
        a("v_cmp_gt_u32 vcc, 576, v3")
        a(f"v_cndmask_b32 v{b}, v{b}, v{b+1}, vcc")
        a(f"s_mov_b32 s20, {OFF_MODF + 1024*i}")
        if i == 6:
            a("v_cmp_gt_u32 vcc, 1728, v2")
            a("s_and_saveexec_b64 s[22:23], vcc")
            a("s_cbranch_execz KF_END")
        a(f"buffer_store_dword v{b}, v1, s[8:11], s20 offen")
    a("s_endpgm")
    a.label("KF_CH"); a.hist = []; a.vm = []; a.lg = []
    a(f"s_cmp_ge_u32 s2, {F_WARM}")
    a("s_cbranch_scc1 KF_WARM")
    RB = 24576; HT = RB; T16 = RB + 256; PT = RB + 4608; RH = RB + 6656; CS = 4160
    a("s_load_dwordx8 s[16:23], s[0:1], 8")
    a("s_load_dwordx8 s[24:31], s[0:1], 40")
    a(f"s_sub_u32 s3, s2, {F_CH}")
    a("s_and_b32 s4, s3, 7"); a("s_lshr_b32 s3, s3, 3"); a("s_mul_i32 s4, s4, 72"); a("s_add_u32 s3, s3, s4")
    a("v_and_b32 v1, 63, v0")
    a("v_lshrrev_b32 v2, 6, v0")
    a("v_lshrrev_b32 v3, 4, v1")
    a("v_and_b32 v4, 15, v0")
    a("v_and_b32 v5, 31, v0")
    a("v_lshl_add_u32 v5, v2, 5, v5")
    a("v_lshlrev_b32 v6, 4, v5")
    a("v_lshlrev_b32 v5, 1, v5")
    a("s_lshl_b32 s4, s3, 8")
    a("v_add_u32 v5, s4, v5")
    a("s_lshl_b32 s5, s3, 1")
    a("v_mov_b32 v15, s5")
    a.wait_all()
    srd(a, 8, 6, WS_REC)
    a(f"s_sub_u32 s42, s2, {F_CH}"); a("s_lshl_b32 s42, s42, 6"); a(f"s_add_u32 s42, s42, {OFF_REP}")
    a("v_mov_b32 v62, 0")
    a("v_cmp_eq_u32 vcc, 192, v0")
    a("s_and_saveexec_b64 s[44:45], vcc")
    a("s_cbranch_execz KF_CH_R")
    a("buffer_store_dword v62, v62, s[8:11], s42 offen sc1", tag="p")
    a.label("KF_CH_R")
    a("s_mov_b64 exec, -1")
    a("global_load_ushort v7, v15, s[28:29]", tag="p")
    for q in range(6):
        a(f"global_load_ushort v{28+q}, v5, s[{16+2*q}:{17+2*q}]", tag="p")
    a("global_load_ushort v63, v15, s[30:31]", tag="dsk")
    a("v_and_b32 v12, 7, v4")
    a("v_lshrrev_b32 v13, 3, v4")
    a("v_lshl_add_u32 v8, v13, 7, v12")
    a("v_lshrrev_b32 v12, 2, v4"); a("v_lshlrev_b32 v12, 7, v12")
    a("v_and_b32 v13, 3, v4"); a("v_lshl_add_u32 v12, v13, 1, v12")
    a("v_add_u32 v12, 256, v12")
    a("v_subrev_u32 v13, 8, v4"); a("v_lshrrev_b32 v13, 1, v13"); a("v_lshlrev_b32 v13, 7, v13")
    a("v_and_b32 v14, 1, v4"); a("v_lshl_add_u32 v13, v14, 2, v13")
    a("v_add_u32 v13, 512, v13")
    a("v_cmp_gt_u32 vcc, 8, v4")
    a("v_cndmask_b32 v9, v13, v12, vcc")
    a("v_lshlrev_b32 v12, 7, v4"); a("v_add_u32 v12, 1024, v12")
    a("v_mov_b32 v13, 2048")
    a("v_cndmask_b32 v10, v13, v12, vcc")
    a("v_lshlrev_b32 v11, 3, v4")
    a("v_lshlrev_b32 v12, 2, v4")
    for T in range(3):
        a(f"ds_write_b32 v12, v{8+T} offset:{HT+64*T}")
    for T in range(4):
        a(f"v_cvt_f32_u32 v{8+T}, v{8+T}")
    a("v_lshlrev_b32 v12, 9, v2"); a("v_lshl_add_u32 v12, v3, 6, v12")
    a("s_mov_b32 s33, 0x07060302")
    a.wait_vm("p")
    stamp(a, 1)
    a("v_lshlrev_b32 v7, 16, v7")
    a(f"v_mul_f32 v7, {LOG2E:#x}, v7")
    a("v_exp_f32 v7, v7")
    rnd1(a, 7)
    for q in range(6): a(f"v_lshlrev_b32 v{28+q}, 16, v{28+q}")
    for q in range(4): a(f"v_mul_f32 v{28+q}, v7, v{28+q}")
    a(f"v_mul_f32 v36, {LOG2E:#x}, v28")
    a(f"v_mul_f32 v37, {INV2PI:#x}, v29")
    a("v_mul_f32 v38, v32, v30"); a("v_mul_f32 v39, v32, v31")
    a("v_fma_f32 v38, -v33, v31, v38")
    a("v_fmac_f32 v39, v33, v30")
    a(f"ds_write_b128 v6, v[36:39] offset:{PT}")
    P = 64
    for st in range(8):
        a(f"ds_read_b128 v[{P+4*st}:{P+4*st+3}], v12 offset:{PT+256*(st >> 2)+16*(st & 3)}", tag=("pp", st))
    srd(a, 24, 34, 256)
    FR = 96
    def fr(T, lo): return FR + 8*T + 4*lo
    def valu(st):
        kp, e2 = divmod(st, 4)
        pr = P + 4*st; E = 36; Er = 48
        L = []
        for T in (3, 0, 1, 2):
            L.append(f"v_mul_f32 v{E+3*T}, v{pr}, v{8+T}")
            L.append(f"v_mul_f32 v{E+3*T+1}, v{pr+1}, v{8+T}")
        for T in (3, 0, 1, 2):
            L.append(f"v_exp_f32 v{E+3*T}, v{E+3*T}")
            L.append(f"v_fract_f32 v{E+3*T+1}, v{E+3*T+1}")
        for T in (3, 0, 1, 2):
            L.append(f"v_cos_f32 v{E+3*T+2}, v{E+3*T+1}")
            L.append(f"v_sin_f32 v{E+3*T+1}, v{E+3*T+1}")
        for T in (3, 0, 1, 2):
            L.append(f"v_mul_f32 v{E+3*T+1}, v{E+3*T}, v{E+3*T+1}")
            L.append(f"v_mul_f32 v{E+3*T}, v{E+3*T}, v{E+3*T+2}")
        L.append(f"v_mul_f32 v{Er}, v{pr+2}, v{E+9}")
        L.append(f"v_mul_f32 v{Er+1}, v{pr+2}, v{E+10}")
        L.append(f"v_fma_f32 v{Er}, -v{pr+3}, v{E+10}, v{Er}")
        L.append(f"v_fma_f32 v{Er+1}, -v{pr+3}, v{E+9}, -v{Er+1}")
        for T in range(4):
            r = Er if T == 3 else E+3*T
            L.append(f"v_perm_b32 v{fr(T,0)+e2}, v{r+1}, v{r}, s33")
            L.append(f"v_and_b32 v50, 0xffff0000, v{r}")
            L.append(f"v_and_b32 v51, 0xffff0000, v{r+1}")
            L.append(f"v_sub_f32 v50, v{r}, v50")
            L.append(f"v_sub_f32 v51, v{r+1}, v51")
            L.append(f"v_perm_b32 v{fr(T,1)+e2}, v51, v50, s33")
        return L
    def mf(kp):
        L = []
        for pi, (al, bl) in enumerate(((1, 0), (0, 1), (0, 0))):
            for T in range(3):
                c = f"v[{16+4*T}:{19+4*T}]"
                A = fr(T, al); B = fr(3, bl)
                L.append(f"v_mfma_f32_16x16x32_bf16 {c}, v[{A}:{A+3}], v[{B}:{B+3}], {c if (kp or pi) else 0}")
        return L
    for st in range(8):
        a.wait_lg(("pp", st))
        Mf = mf(0) if st == 4 else []
        for idx, ins in enumerate(valu(st)):
            if Mf and idx % 3 == 2: a(Mf.pop(0))
            a(ins)
    for ins in mf(1): a(ins)
    stamp(a, 2)
    a("v_mul_u32_u24 v12, 3072, v2")
    a("v_lshl_add_u32 v12, v1, 4, v12")
    for T in range(3):
        a(f"ds_write_b128 v12, v[{16+4*T}:{19+4*T}] offset:{1024*T}")
    a("v_readfirstlane_b32 s16, v2")
    a("v_lshlrev_b32 v13, 4, v0")
    a("v_lshlrev_b32 v14, 6, v2")
    a("v_lshl_add_u32 v14, v3, 4, v14")
    a("v_lshlrev_b32 v12, 3, v0")
    G = 64
    a(f"v_subrev_u32 v{G}, 1, v12"); a(f"v_max_i32 v{G}, 0, v{G}")
    for e in range(8): a(f"v_add_u32 v{G+1+e}, {e}, v12")
    a(f"v_mov_b32 v{G+9}, 0")
    for e in range(10): a(f"v_cvt_f32_u32 v{G+e}, v{G+e}")
    for e in range(0, 10, 2): rnd2(a, G+e, G+e+1, 15)
    for e in range(9):
        a(f"v_cvt_u32_f32 v{G+e}, v{G+e}")
        a(f"v_lshlrev_b32 v{G+e}, 1, v{G+e}")
    a.wait_all(vm=False)
    a("s_barrier")
    a("s_cmp_eq_u32 s16, 3")
    a("s_cbranch_scc1 KF_CH_P")
    for w in range(4):
        a(f"ds_read_b128 v[{16+4*w}:{19+4*w}], v13 offset:{3072*w}")
    a(f"ds_read_b128 v[32:35], v14 offset:{HT}")
    a.wait_all(vm=False)
    for r in range(4):
        a(f"v_add_f32 v{16+r}, v{16+r}, v{20+r}")
        a(f"v_add_f32 v{24+r}, v{24+r}, v{28+r}")
        a(f"v_lshl_add_u32 v{32+r}, v4, 3, v{32+r}")
    for r in range(4):
        a(f"v_add_f32 v{16+r}, v{16+r}, v{24+r}")
        a(f"v_lshlrev_b32 v{32+r}, 1, v{32+r}")
    for r in range(4):
        a(f"v_cvt_pk_bf16_f32 v{16+r}, v{16+r}, v{16+r}")
    for r in range(4):
        a(f"ds_write_b16 v{32+r}, v{16+r} offset:{T16}")
    a("s_branch KF_CH_C")
    a.label("KF_CH_P"); a.hist = []
    a("v_mov_b32 v16, 252")
    a("s_mov_b32 s36, 0x8000")
    a.label("KF_PC")
    a("buffer_load_dword v17, v62, s[8:11], s42 offen sc1")
    a("s_waitcnt vmcnt(0)")
    a("v_cmp_ne_u32 vcc, 0, v17")
    a("s_sub_u32 s36, s36, 1")
    a("s_cbranch_scc1 KF_CH_C")
    a("s_cbranch_vccnz KF_CH_C")
    a("s_sleep 4")
    a("s_and_b32 s37, s36, 31")
    a("s_cbranch_scc1 KF_PC")
    a("buffer_load_dword v17, v16, s[24:27], 0 offen sc1")
    a("s_waitcnt vmcnt(0)")
    a("v_cmp_ne_u32 vcc, 0, v17")
    a("s_cbranch_vccz KF_PC")
    a.label("KF_CH_C"); a.hist = []; a.vm = ["dsk"]
    a("v_lshrrev_b32 v16, 1, v0"); a("v_mul_u32_u24 v16, 36864, v16")
    a("v_and_b32 v17, 1, v0"); a("v_lshl_add_u32 v16, v17, 4, v16")
    a("v_mul_u32_u24 v17, 36864, v4"); a("v_lshl_add_u32 v17, v3, 3, v17")
    a("s_lshl_b32 s17, s3, 6")
    if OFF_NT: a(f"s_add_u32 s17, s17, {OFF_NT}")
    a(f"s_mul_i32 s18, s16, {32*36864}"); a("s_add_u32 s18, s18, s17"); a(f"s_add_u32 s19, s18, {16*36864}")
    a("s_lshl_b32 s20, s3, 2"); a("v_mov_b32 v18, s20")
    a(f"s_mov_b32 s21, {OFF_MODP}"); a(f"s_mov_b32 s22, {OFF_MODP + 3456*4}")
    a(f"s_mov_b32 s23, {OFF_MODP + 4608}"); a(f"s_mov_b32 s32, {OFF_MODP + 3456*4 + 4608}")
    a.wait_all(vm=False)
    a("s_barrier")
    stamp(a, 3)
    a("buffer_load_dwordx4 v[20:23], v16, s[8:11], s17 offen sc1", tag="n")
    a("buffer_load_dword v24, v18, s[8:11], s21 offen sc1", tag="n")
    a("buffer_load_dword v25, v18, s[8:11], s22 offen sc1", tag="n")
    a("buffer_load_dword v26, v18, s[8:11], s21 offen offset:2304 sc1", tag="n")
    a("buffer_load_dword v27, v18, s[8:11], s22 offen offset:2304 sc1", tag="n")
    a("buffer_load_dword v60, v18, s[8:11], s23 offen sc1", tag="x")
    a("buffer_load_dword v61, v18, s[8:11], s32 offen sc1", tag="x")
    a("buffer_load_dwordx2 v[56:57], v17, s[8:11], s18 offen offset:32 sc1", tag="x")
    a("buffer_load_dwordx2 v[58:59], v17, s[8:11], s19 offen offset:32 sc1", tag="x")
    for e in range(9):
        a(f"ds_read_u16 v{80+e}, v{G+e} offset:{T16}")
    a("v_mov_b32 v28, 0"); a("v_mov_b32 v29, 0")
    a(f"v_mul_u32_u24 v30, {CS}, v3"); a("v_lshl_add_u32 v30, v4, 1, v30"); a("v_and_b32 v30, -4, v30")
    a("ds_write_b32 v30, v28")
    a("v_lshlrev_b32 v31, 3, v1")
    a(f"ds_write_b64 v31, v[28:29] offset:{RH}")
    a(f"v_add_u32 v31, {2*CS + 32}, v28"); a(f"ds_write_b32 v31, v28"); a(f"ds_write_b32 v31, v28 offset:{CS}")
    a("v_cmp_eq_u32 vcc, 0, v0")
    a.wait_all(vm=False)
    a("v_cndmask_b32 v80, v80, v28, vcc")
    for q in range(4):
        a(f"v_lshl_or_b32 v{32+q}, v{82+2*q}, 16, v{81+2*q}")
        a(f"v_lshl_or_b32 v{36+q}, v{81+2*q}, 16, v{80+2*q}")
    a(f"v_add_u32 v30, {32 + 2*CS + 4}, v13"); a(f"v_add_u32 v31, {32 + 3*CS + 4}, v13")
    a("ds_write_b128 v13, v[32:35] offset:32")
    a(f"ds_write_b128 v13, v[36:39] offset:{32 + CS}")
    a("ds_write2_b32 v30, v32, v33 offset0:0 offset1:1"); a("ds_write2_b32 v30, v34, v35 offset0:2 offset1:3")
    a("ds_write2_b32 v31, v36, v37 offset0:0 offset1:1"); a("ds_write2_b32 v31, v38, v39 offset0:2 offset1:3")
    a("s_lshl_b32 s20, s16, 7")
    a("v_lshlrev_b32 v18, 5, v4"); a("v_lshl_add_u32 v18, v3, 4, v18"); a(f"v_add_u32 v18, {RH + 32 - 64}, v18"); a("v_subrev_u32 v18, s20, v18")
    a("v_bfe_u32 v19, v1, 2, 2"); a(f"v_mul_u32_u24 v19, {CS}, v19")
    a("v_and_b32 v14, 3, v1"); a("v_lshl_add_u32 v19, v14, 3, v19")
    a("v_lshlrev_b32 v14, 4, v3"); a("v_sub_u32 v19, v19, v14"); a("v_add_u32 v19, 56, v19"); a("v_add_u32 v19, s20, v19")
    a("s_lshl_b32 s20, s16, 10")
    a("v_lshlrev_b32 v14, 5, v4"); a("v_lshl_add_u32 v14, v3, 3, v14"); a(f"v_add_u32 v14, {RH + 512}, v14"); a("v_add_u32 v14, s20, v14")
    a.wait_vm("n")
    a("v_add_f32 v24, v24, v25"); rnd1(a, 24)
    a("v_add_f32 v26, v26, v27"); rnd1(a, 26); a("v_add_f32 v26, 1.0, v26"); rnd1(a, 26)
    for q in range(4):
        unpack(a, 28, 29, 20+q)
        a("v_mul_f32 v28, v28, v26"); a("v_mul_f32 v29, v29, v26")
        rnd2(a, 28, 29, 30)
        a("v_add_f32 v28, v28, v24"); a("v_add_f32 v29, v29, v24")
        a(f"v_cvt_pk_bf16_f32 v{20+q}, v28, v29")
    a(f"ds_write_b128 v13, v[20:23] offset:{RH + 512}")
    a.wait_all(vm=False)
    a("s_barrier")
    stamp(a, 4)
    ACC = 20; Bb = 64; Ab = 96
    def ldB(rr, u): a(f"ds_read_b128 v[{Bb+4*u}:{Bb+4*u+3}], v18 offset:{64*(8*u+7) + 64 - 64*rr}", tag=("B", rr, u))
    def ldA(rr, aa):
        a(f"ds_read_b64_tr_b16 v[{Ab+4*aa}:{Ab+4*aa+1}], v19 offset:{64*rr + 512*aa + 8}", tag=("A", rr, aa))
        a(f"ds_read_b64_tr_b16 v[{Ab+4*aa+2}:{Ab+4*aa+3}], v19 offset:{64*rr + 512*aa}", tag=("A", rr, aa))
    ldA(0, 0)
    for u in range(8): ldB(0, u)
    for aa in range(1, 8): ldA(0, aa)
    for rr in range(2):
        for aa in range(8):
            a.wait_lg(("A", rr, aa))
            for jt in range(7, aa-1, -1) if rr else range(aa, 8):
                u = jt - aa
                a.wait_lg(("B", rr, u))
                c = f"v[{ACC+4*jt}:{ACC+4*jt+3}]"
                a(f"v_mfma_f32_16x16x32_bf16 {c}, v[{Ab+4*aa}:{Ab+4*aa+3}], v[{Bb+4*u}:{Bb+4*u+3}], {c if (rr or aa) else 0}")
            if rr == 0:
                ldB(1, 7-aa); ldA(1, aa)
    a("ds_read_b64 v[52:53], v14"); a("ds_read_b64 v[54:55], v14 offset:512")
    a("s_lshl_b32 s20, s16, 13"); a("v_lshlrev_b32 v15, 4, v1"); a("v_add_u32 v16, s20, v15")
    a("s_lshl_b32 s20, s16, 11"); a("v_add_u32 v15, s20, v15")
    a.wait_all(vm=False)
    stamp(a, 5)
    a("s_barrier")
    for jt in range(8):
        a(f"ds_write_b128 v16, v[{ACC+4*jt}:{ACC+4*jt+3}] offset:{1024*jt}")
    a.wait_vm("x")
    a("v_add_f32 v60, v60, v61"); rnd1(a, 60)
    a("v_lshlrev_b32 v63, 16, v63")
    for q in range(4):
        unpack(a, 64+2*q, 65+2*q, 52+q)
        a(f"v_mul_f32 v{64+2*q}, v{64+2*q}, v63"); a(f"v_mul_f32 v{65+2*q}, v{65+2*q}, v63")
        rnd2(a, 64+2*q, 65+2*q, 62)
    a("v_mul_u32_u24 v17, 18432, v4"); a("v_lshl_add_u32 v17, v3, 3, v17")
    a("s_lshl_b32 s17, s3, 5"); a(f"s_mul_i32 s18, s16, {32*18432}"); a("s_add_u32 s18, s18, s17"); a(f"s_add_u32 s18, s18, {OFF_X1T}")
    a(f"s_add_u32 s19, s18, {16*18432}")
    a.wait_all(vm=False)
    a("s_barrier")
    for q in range(2):
        for sw in range(4):
            a(f"ds_read_b128 v[{72+16*q+4*sw}:{75+16*q+4*sw}], v15 offset:{8192*sw + 1024*q}", tag=("r", q))
    for q in range(2):
        a.wait_lg(("r", q))
        y = 72 + 16*q
        for e in range(4):
            a(f"v_add_f32 v{y+e}, v{y+e}, v{y+4+e}"); a(f"v_add_f32 v{y+8+e}, v{y+8+e}, v{y+12+e}")
        for e in range(4): a(f"v_add_f32 v{y+e}, v{y+e}, v{y+8+e}")
        for h in range(2):
            y0 = y+2*h; y1 = y0+1
            rnd2(a, y0, y1, 62)
            a(f"v_add_f32 v{y0}, v{y0}, v{64+4*q+2*h}"); a(f"v_add_f32 v{y1}, v{y1}, v{65+4*q+2*h}")
            rnd2(a, y0, y1, 62)
            a(f"v_mul_f32 v{y0}, v{y0}, v60"); a(f"v_mul_f32 v{y1}, v{y1}, v60")
            rnd2(a, y0, y1, 62)
            unpack(a, 61, 62, 56+2*q+h)
            a(f"v_add_f32 v{y0}, v{y0}, v61"); a(f"v_add_f32 v{y1}, v{y1}, v62")
            a(f"v_cvt_pk_bf16_f32 v{56+2*q+h}, v{y0}, v{y1}")
        a(f"buffer_store_dwordx2 v[{56+2*q}:{57+2*q}], v17, s[8:11], s{18+q} offen")
    if STAMP:
        stamp(a, 6); a.wait_all(); stamp(a, 7); stamp_store(a, 8, 1)
    a.label("KF_END")
    a("s_endpgm")
    a.label("KF_WARM"); a.hist = []; a.vm = []; a.lg = []
    a(f"s_cmp_ge_u32 s2, {F_END}")
    a("s_cbranch_scc1 KF_END")
    a("s_load_dwordx4 s[12:15], s[0:1], 80")
    a("s_load_dwordx2 s[16:17], s[0:1], 96")
    a(f"s_sub_u32 s3, s2, {F_WARM}")
    a("v_lshlrev_b32 v1, 4, v0")
    a.wait_all()
    a("s_cmp_ge_u32 s3, 36"); a("s_cselect_b32 s12, s14, s12"); a("s_cselect_b32 s13, s15, s13")
    a("s_cselect_b32 s18, 36, 0")
    a("s_cmp_ge_u32 s3, 72"); a("s_cselect_b32 s12, s16, s12"); a("s_cselect_b32 s13, s17, s13")
    a("s_cselect_b32 s18, 72, s18")
    a("s_sub_u32 s3, s3, s18"); a("s_mul_i32 s3, s3, 147456")
    srd(a, 8, 12, 576*9216)
    if EXP != "nocp":
        a.label("KF_CP")
        a("s_getpc_b64 s[20:21]")
        a.raw("    s_sub_u32 s20, s20, KF_CP+4-front_kernel"); a("s_subb_u32 s21, s21, 0")
        a("v_lshlrev_b32 v2, 7, v0")
        for i in range(3):
            a.raw("    v_min_u32 v3, GG_END-front_kernel-8, v2")
            a(f"global_load_dword v{90+i}, v3, s[20:21]")
            a("v_add_u32 v2, 32768, v2")
    for i in range(36):
        a(f"buffer_load_dwordx4 v[{4+4*(i % 18)}:{7+4*(i % 18)}], v1, s[8:11], s3 offen")
        a("s_add_u32 s3, s3, 4096")
        if i % 6 == 5: a("s_waitcnt vmcnt(2)")
    a("s_endpgm")
    return a.text(), dict(vgpr=128, sgpr=50, accum=128), f"grid=({F_WARM if EXP == 'nowarm' else F_END},1,1) block=(256,1,1) lds=38912"

def poll(a, label, vflag, vaddr, soff, nl, tmp_s, depth=4):
    msk = (1 << nl) - 1
    a(f"s_mov_b32 s{tmp_s}, 0x8000")
    for d in range(depth - 1):
        a(f"buffer_load_dword v{vflag+d}, v{vaddr}, s[8:11], s{soff} offen sc1")
    a.label(label)
    for d in range(depth):
        a(f"buffer_load_dword v{vflag+(d+depth-1) % depth}, v{vaddr}, s[8:11], s{soff} offen sc1")
        a(f"s_waitcnt vmcnt({depth-1})")
        a(f"v_cmp_ne_u32 vcc, 0, v{vflag+d}")
        a(f"s_and_b32 s{tmp_s+1}, vcc_lo, {msk:#x}")
        a(f"s_cmp_eq_u32 s{tmp_s+1}, {msk:#x}")
        a(f"s_cbranch_scc1 {label}_X")
    a(f"s_sub_u32 s{tmp_s}, s{tmp_s}, 1")
    a(f"s_cbranch_scc0 {label}")
    a.label(label + "_X")
    a.vm = [None] * (depth - 1)

def kgg():
    a = Asm()
    SLOT = 36864; UPO = 18432; NSLOT = 4; PF = 6; NA = 6
    L2B = 3*SLOT; RED = L2B + 18432
    CODE_PF = 7
    HS = '' if EXP in ('local', 'localwb', 'localp') else ' sc1'
    a("s_load_dwordx2 s[6:7], s[0:1], 136")
    a("s_load_dwordx4 s[12:15], s[0:1], 80")
    a("s_load_dwordx2 s[4:5], s[0:1], 96")
    a("s_load_dwordx2 s[62:63], s[0:1], 120")
    a("s_cmp_ge_u32 s2, 256")
    a("s_cbranch_scc1 GG_END")
    stamp(a, 0)
    M = 224; DV = M+2; VT = M+13; VA = M+17
    a(f"v_and_b32 v{M}, 63, v0")
    a(f"v_lshrrev_b32 v{M+1}, 6, v0")
    a(f"v_readfirstlane_b32 s16, v{M+1}")
    a(f"v_lshlrev_b32 v{VT}, 4, v{M}")
    a(f"v_lshrrev_b32 v5, 4, v{M}")
    a("v_lshlrev_b32 v6, 5, v5")
    a("s_lshr_b32 s17, s2, 1"); a("s_mul_i32 s17, s17, 18432")
    a("s_and_b32 s18, s2, 1")
    a("s_mul_i32 s19, s16, 6144")
    a("s_add_u32 s20, s17, s19"); a(f"s_add_u32 s20, s20, {OFF_X1T}"); a("s_add_u32 s21, s20, 4096")
    a("s_mul_i32 s22, s16, 768"); a("s_mul_i32 s23, s18, 384"); a("s_add_u32 s22, s22, s23"); a(f"s_add_u32 s22, s22, {OFF_MODF}")
    a(f"s_add_u32 s19, s19, {L2B}")
    a("s_mul_i32 s3, s16, 384"); a("s_mul_i32 s23, s18, 192"); a("s_add_u32 s3, s3, s23"); a("s_add_u32 s3, s3, s17"); a(f"s_add_u32 s3, s3, {OFF_X1R}")
    a("s_mul_i32 s51, s18, 3072")
    a("s_mul_i32 s60, s16, 6144"); a("s_add_u32 s60, s60, s51"); a("s_add_u32 s60, s60, s17"); a(f"s_add_u32 s60, s60, {OFF_H2P}")
    a("s_mov_b32 s61, s19")
    a.wait_all()
    srd(a, 8, 6, WS_REC)
    a("s_cmp_eq_u32 s16, 3")
    a("s_cbranch_scc1 GG_S1")
    a("s_mov_b32 m0, s19")
    for i in range(4): a(f"buffer_load_dwordx4 v{VT}, s[8:11], s20 offen offset:{1024*i} lds", tag="x")
    a("s_add_u32 m0, s19, 4096")
    for i in range(2): a(f"buffer_load_dwordx4 v{VT}, s[8:11], s21 offen offset:{1024*i} lds", tag="x")
    SB = 100; CB = 124
    for i in range(3):
        for h in range(2):
            a(f"buffer_load_dwordx4 v[{SB+8*i+4*h}:{SB+8*i+4*h+3}], v6, s[8:11], s22 offen offset:{128*i+16*h}", tag="m")
            a(f"buffer_load_dwordx4 v[{CB+8*i+4*h}:{CB+8*i+4*h+3}], v6, s[8:11], s22 offen offset:{2304+128*i+16*h}", tag="m")
    a.label("GG_S1")
    a(f"v_mov_b32 v1, v{M}")
    a("s_and_b32 s17, s2, 7"); a("s_lshr_b32 s18, s2, 3")
    a("s_and_b32 s19, s18, 3"); a("s_lshl_b32 s17, s17, 2"); a("s_add_u32 s17, s17, s19")
    a("s_lshr_b32 s18, s18, 2")
    a("s_lshl_b32 s19, s19, 1"); a("s_add_u32 s19, s19, s18")
    a("s_sub_u32 s20, s19, 9"); a("s_cmp_ge_u32 s19, 9"); a("s_cselect_b32 s19, s20, s19")
    dma_voffsets(a, DV, 9216, swap23=True)
    a("s_and_b32 s22, s16, 1"); a("s_lshr_b32 s23, s16, 1")
    a(f"s_mul_i32 s28, s22, {32*9216}"); a("s_mul_i32 s30, s17, 288"); a("s_add_u32 s28, s28, s30")
    a(f"s_mul_i32 s29, s23, {UPO}"); a("s_mul_i32 s30, s22, 9216"); a("s_add_u32 s29, s29, s30")
    a("s_lshl_b32 s31, s18, 4"); a("s_lshl_b32 s30, s16, 2"); a("s_add_u32 s31, s31, s30")
    a("s_mul_i32 s32, s31, 18432"); a(f"s_add_u32 s32, s32, {OFF_H2P}")
    SD, ST = 33, 42
    for j in range(9):
        a(f"s_add_u32 s22, s19, {j}"); a("s_sub_u32 s23, s22, 9"); a("s_cmp_ge_u32 s22, 9"); a("s_cselect_b32 s22, s23, s22")
        a(f"s_mul_i32 s23, s22, {64*9216}"); a(f"s_add_u32 s{SD+j}, s28, s23")
        a("s_lshl_b32 s23, s22, 11"); a(f"s_add_u32 s{ST+j}, s32, s23")
    a("s_cmp_ge_u32 s16, 2")
    a("s_cselect_b32 s20, s14, s12"); a("s_cselect_b32 s21, s15, s13")
    srd(a, 24, 20, 576*9216)
    srd(a, 12, 4, 4608*1152)
    AF = 64; BR = AF + 4*NA; DV2A = BR + 16*PF
    def dma(st, i):
        a(f"s_add_u32 m0, s29, {(st % NSLOT)*SLOT + i*1024}")
        a(f"buffer_load_dwordx4 v{DV+i}, s[24:27], s{SD+st} offen lds", tag=("d", st))
    def tok(ks, b):
        rb = BR + 16 * (ks % PF) + 4*b
        a(f"buffer_load_dwordx4 a[{rb}:{rb+3}], v{VT+b}, s[8:11], s{ST + ks//2} offen offset:{(ks % 2)*1024} sc1", tag=("t", ks))
    def accr(mat, aa, b):
        if aa < 7: return ("v", 32*aa + 16*mat + 4*b)
        return ("a", 32*(aa-7) + 16*mat + 4*b)
    def acc(mat, aa, b):
        k, r = accr(mat, aa, b); return f"{k}[{r}:{r+3}]"
    def trd(n, q, seq):
        ks, aa, mat = seq[n]
        st, kk = divmod(ks, 2); slot = st % NSLOT
        off = mat*UPO + kk*9216 + aa*32 + q*2304
        r = AF + 4*(n % NA) + 2*q
        a(f"ds_read_b64_tr_b16 a[{r}:{r+1}], v{VA+slot} offset:{off}", tag=("a", n))
    for i in range(9): dma(0, i)
    def late_setup():
        for b in range(1, 4): a(f"v_add_u32 v{VT+b}, {18432*b}, v{VT}")
        a(f"v_lshrrev_b32 v2, 5, v{M}"); a("v_lshlrev_b32 v2, 4, v2")
        a(f"v_bfe_u32 v3, v{M}, 4, 1"); a("v_lshl_add_u32 v2, v3, 2, v2")
        a(f"v_bfe_u32 v3, v{M}, 2, 2"); a("v_add_u32 v2, v2, v3")
        a(f"v_mul_u32_u24 v{VA}, 288, v2")
        a(f"v_and_b32 v2, 3, v{M}"); a(f"v_lshl_add_u32 v{VA}, v2, 3, v{VA}")
        for sl in range(1, 4): a(f"v_add_u32 v{VA+sl}, {sl*SLOT}, v{VA}")
        a("s_mul_i32 s20, s31, 147456"); a("s_mul_i32 s21, s17, 9"); a("s_lshr_b32 s21, s21, 1"); a("s_lshl_b32 s21, s21, 10")
        a("s_add_u32 s20, s20, s21"); a(f"s_add_u32 s52, s20, {OFF_HM}")
        for b in range(1, 4): a(f"s_add_u32 s{52+b}, s52, {147456*b}")
        for b in range(4): a(f"s_add_u32 s{56+b}, s{52+b}, 4096")
        dma_voffsets(a, 10, 1152)
        for i in range(9): a(f"v_accvgpr_write_b32 a{DV2A+i}, v{10+i}")
        a("s_and_b32 s20, s2, 7"); a("s_lshr_b32 s21, s2, 3")
        a("s_and_b32 s5, s21, 3"); a("s_lshr_b32 s4, s21, 2")
        a("s_and_b32 s22, s20, 1"); a("s_lshl_b32 s22, s22, 3"); a("s_add_u32 s4, s4, s22")
        a("s_lshr_b32 s3, s20, 1")
        a(f"s_mul_i32 s60, s3, {1152*1152}"); a(f"s_mul_i32 s20, s16, {32*1152}"); a("s_add_u32 s60, s60, s20")
        a("s_mul_i32 s20, s5, 288"); a("s_add_u32 s60, s60, s20")
        a(f"s_add_u32 s61, s60, {128*1152}")
        a("s_mul_i32 s51, s16, 9216")
        a("s_lshl_b32 s30, s18, 5"); a("s_add_u32 s30, s30, s17"); a("s_mul_i32 s30, s30, 36864"); a("s_add_u32 s30, s30, s51")
        a(f"s_add_u32 s30, s30, {OFF_PART}"); a("s_add_u32 s32, s30, 4096"); a("s_add_u32 s28, s30, 8192")
        for q in range(4): a(f"v_mov_b32 v{246+q}, -1")
    a("s_cmp_eq_u32 s16, 3")
    a("s_cbranch_scc1 GG_W3")
    vm_w3 = [t for t in a.vm if t not in ("x", "m")]
    a(f"v_and_b32 v4, 15, v{M}")
    a(f"v_bfe_u32 v7, v{M}, 2, 2"); a("v_lshlrev_b32 v7, 5, v7")
    a(f"v_and_b32 v8, 3, v{M}"); a("v_lshl_add_u32 v7, v8, 3, v7")
    a("v_lshl_add_u32 v7, v5, 8, v7")
    a("v_add_u32 v7, s61, v7")
    a("v_subrev_u32 v8, s51, v7")
    a("v_add_u32 v7, s51, v7")
    a("v_mul_u32_u24 v9, 1152, v4"); a("v_lshl_add_u32 v9, v5, 4, v9")
    a("v_lshlrev_b32 v23, 4, v4"); a(f"v_add_u32 v23, {RED}, v23")
    a(f"v_lshl_add_u32 v22, v{M+1}, 2, v23")
    stamp_x(a, 1)
    a.wait_vm("x")
    stamp_x(a, 2)
    X = 24; F = 48
    for i in range(6):
        va = 7 if i < 3 else 8
        a(f"ds_read_b64_tr_b16 v[{X+4*i}:{X+4*i+1}], v{va} offset:{1024*i}", tag=("t", i))
        a(f"ds_read_b64_tr_b16 v[{X+4*i+2}:{X+4*i+3}], v{va} offset:{1024*i+128}", tag=("t", i))
    for i in range(6):
        a.wait_lg(("t", i))
        if i < 3: a(f"buffer_store_dwordx4 v[{X+4*i}:{X+4*i+3}], v9, s[8:11], s3 offen offset:{64*i} sc1", tag="st")
        for q in range(4): unpack(a, F+8*i+2*q, F+8*i+2*q+1, X+4*i+q)
    def xreduce(r, off):
        a(f"v_mov_b32 v10, v{r}")
        a(f"v_permlane32_swap_b32 v10, v{r}")
        a(f"v_add_f32 v{r}, v{r}, v10")
        a(f"v_mov_b32 v10, v{r}")
        a(f"v_permlane16_swap_b32 v10, v{r}")
        a(f"v_add_f32 v{r}, v{r}, v10")
        a(f"ds_write_b32 v22, v{r} offset:{off}")
        a.wait_all(vm=False)
        a("s_barrier")
        a(f"ds_read_b96 v[10:12], v23 offset:{off}")
        a.wait_all(vm=False)
        a("v_add_f32 v10, v10, v11"); a(f"v_add_f32 v{r}, v10, v12")
    for c in range(4): a(f"v_add_f32 v{14+c}, v{F+c}, v{F+4+c}")
    for i in range(8, 48, 4):
        for c in range(4): a(f"v_add_f32 v{14+c}, v{14+c}, v{F+i+c}")
    a("v_add_f32 v14, v14, v15"); a("v_add_f32 v16, v16, v17"); a("v_add_f32 v14, v14, v16")
    xreduce(14, 0)
    a(f"v_mul_f32 v14, {f32(1.0/576):#x}, v14")
    for i in range(0, 48, 2):
        a(f"v_sub_f32 v18, v{F+i}, v14"); a(f"v_sub_f32 v19, v{F+i+1}, v14")
        if i == 0: a("v_mul_f32 v15, v18, v18"); a("v_mul_f32 v16, v19, v19")
        else: a("v_fmac_f32 v15, v18, v18"); a("v_fmac_f32 v16, v19, v19")
    a("v_add_f32 v15, v15, v16")
    xreduce(15, 256)
    a(f"v_mul_f32 v15, {f32(1.0/576):#x}, v15")
    rnd1(a, 15)
    a(f"v_add_f32 v15, {f32(1e-5):#x}, v15")
    rnd1(a, 15)
    a("v_sqrt_f32 v15, v15")
    rnd1(a, 15)
    a("v_rcp_f32 v16, v15")
    rnd1(a, 14)
    stamp_x(a, 3)
    a.wait_vm("m")
    for i in range(3):
        for q in range(4):
            r0 = F+8*i+2*q; r1 = r0+1
            a(f"v_sub_f32 v{r0}, v{r0}, v14"); a(f"v_sub_f32 v{r1}, v{r1}, v14")
            rnd2(a, r0, r1, 17)
            a(f"v_mul_f32 v18, v{r0}, v16"); a(f"v_mul_f32 v19, v{r1}, v16")
            a(f"v_fma_f32 v{r0}, -v18, v15, v{r0}"); a(f"v_fma_f32 v{r1}, -v19, v15, v{r1}")
            a(f"v_fmac_f32 v18, v{r0}, v16"); a(f"v_fmac_f32 v19, v{r1}, v16")
            rnd2(a, 18, 19, 17)
            a(f"v_mul_f32 v18, v18, v{CB+8*i+2*q}"); a(f"v_mul_f32 v19, v19, v{CB+8*i+2*q+1}")
            rnd2(a, 18, 19, 17)
            a(f"v_add_f32 v18, v18, v{SB+8*i+2*q}"); a(f"v_add_f32 v19, v19, v{SB+8*i+2*q+1}")
            a(f"v_cvt_pk_bf16_f32 v{X+12+4*i+q}, v18, v19")
        a(f"buffer_store_dwordx4 v[{X+12+4*i}:{X+12+4*i+3}], v{VT}, s[8:11], s60 offen offset:{1024*i} sc1", tag="st")
    stamp_x(a, 4)
    a.wait_vm("st")
    a("s_barrier")
    stamp_x(a, 5)
    def code_pf(lab, n, vd):
        if EXP == "nocp": return
        a.label(lab)
        a("s_getpc_b64 s[0:1]")
        a(f"v_lshlrev_b32 v{vd}, 7, v{M}"); a("s_lshl_b32 s20, s16, 13"); a(f"v_add_u32 v{vd}, s20, v{vd}")
        for i in range(n):
            a.raw(f"    v_min_u32 v{vd+1}, GG_END-{lab}-8, v{vd}")
            a(f"global_load_dword v{vd+2}, v{vd+1}, s[0:1]")
            if i < n-1: a(f"v_add_u32 v{vd}, {8192*3}, v{vd}")
    code_pf("GG_CP0", 2, 2)
    late_setup()
    for i in range(9): dma(1, i)
    vm_main = list(a.vm)
    a("s_branch GG_R4")
    a.label("GG_W3"); a.hist = []; a.vm = vm_w3; a.lg = []
    late_setup()
    for i in range(9): dma(1, i)
    a("s_lshr_b32 s20, s2, 5"); a("s_lshl_b32 s20, s20, 7"); a("s_and_b32 s21, s2, 31"); a("s_lshl_b32 s21, s21, 2")
    a("s_add_u32 s20, s20, s21"); a(f"s_add_u32 s20, s20, {OFF_FLG + 12288}")
    a("s_lshl_b32 s21, s18, 7"); a(f"s_add_u32 s21, s21, {OFF_FLG + 12288}")
    a(f"v_lshlrev_b32 v3, 2, v{M}"); a("v_mov_b32 v4, 1")
    a("s_barrier"); a("s_barrier")
    a.wait_all()
    a("s_barrier")
    a("s_mov_b64 exec, 1")
    a("buffer_store_dword v4, v3, s[8:11], s20 offen sc1")
    a("s_mov_b64 exec, -1")
    poll(a, "GG_P0", 6, 3, 21, 32, 22)
    a.label("GG_R4"); a.hist = []; a.vm = vm_main; a.lg = []
    a("s_barrier")
    stamp_x(a, 6)
    stamp_m(a, 1)
    for b in range(4): tok(0, b)
    def slot2(st): return (st + 1) % NSLOT
    def dma2(st, i, so=None):
        a(f"s_add_u32 m0, s51, {slot2(st)*SLOT + i*1024}")
        a(f"buffer_load_dwordx4 v{DV+i}, s[12:15], s{so if so is not None else SD+st} offen lds", tag=("d2", st))
    def swapdv():
        for i in range(9): a(f"v_accvgpr_read_b32 v{DV+i}, a{DV2A+i}")
    NF = 18*18
    D = NA - 1
    TM = 4
    KM = 18 - TM
    base = [(ks, aa, mat) for ks in range(KM) for aa in range(9) for mat in range(2)]
    def barrier_at(st1): return min(36*st1, 18*KM) - D
    ops = []
    for st in range(2, 9):
        for i in range(9):
            ops.append((barrier_at(st) - 0.5 + 0.01*st, i, -1 if st <= 3 else 36*(st-2) - D, dma, (st, i)))
    for ks in range(1, 18):
        for b in range(4):
            ops.append((min(18*ks, 18*KM + 2*(ks - KM)), b, -1 if ks < PF else 18*(ks-PF+1), tok, (ks, b)))
    def poison(i):
        a(f"buffer_store_dwordx4 v[246:249], v{VT}, s[8:11], s{(30, 32, 28)[i//4]} offen offset:{(i % 4)*1024} sc1", tag="po")
    for i in range(9): ops.append((NF-1, i, 40 + 22*i, poison, (i,)))
    ops.append((NF+1, 0, 18*KM - D, swapdv, ()))
    for st in range(2):
        for i in range(9):
            ops.append((NF+2+st, i, (18*KM - D) if st == 0 else (18*KM + 2), dma2, (st, i, 60+st)))
    ops.sort(key=lambda o: (o[0], o[1]))
    T = 246
    def prod(aa, b, o):
        L = []
        (k_, g), (_, u) = accr(0, aa, b), accr(1, aa, b)
        if k_ == "a":
            for r in range(4):
                L.append(f"v_accvgpr_read_b32 v{32+r}, a{g+r}"); L.append(f"v_accvgpr_read_b32 v{36+r}, a{u+r}")
            g, u = 32, 36
        for q in range(4):
            L.append(f"v_mul_f32 v{g+q}, v{g+q}, v{u+q}")
        for q in range(2):
            L.append(f"v_cvt_pk_bf16_f32 v{o+q}, v{g+2*q}, v{g+2*q+1}")
        return L
    def epi_group(gr, par, cnt0):
        L = []
        for b in range(4):
            o = T + 4*((cnt0 + b) % 2)
            Lf = gr[0] + par; kap = Lf >> 1
            so = (52 if kap < 4 else 56) + b; im = (kap % 4)*1024
            if len(gr) == 2:
                L += prod(gr[0], b, o) + prod(gr[1], b, o+2)
                L.append(f"buffer_store_dwordx4 v[{o}:{o+3}], v{VT}, s[8:11], s{so} offen offset:{im}" + HS)
            else:
                L += prod(gr[0], b, o)
                L.append(f"buffer_store_dwordx2 v[{o}:{o+1}], v{VT}, s[8:11], s{so} offen offset:{im + 8*(Lf & 1)}" + HS)
        return L
    def run(seq, n0, n1, ops, done_at=None):
        epq = []
        seen_t = set()
        for n in range(n0, n1):
            ks, aa, mat = seq[n]
            for st1 in range(1, 9):
                if barrier_at(st1) == n:
                    assert not any(o[3] is dma and o[4][0] == st1 for o in ops)
                    a.wait_vm(("d", st1))
            if any(barrier_at(st1) == n for st1 in range(1, 9)) or n == 18*KM + 2: a("s_barrier")
            if EXP == "g1st" and n in (31, 103, 175, 247, 288): stamp(a, {31: 2, 103: 3, 175: 4, 247: 5, 288: 6}[n])
            assert not any(o[3] is tok and o[4][0] == ks for o in ops)
            a.wait_vm(("t", ks))
            a.wait_lg(("a", n))
            ar = AF + 4*(n % NA)
            for b in range(4):
                rb = BR + 16 * (ks % PF) + 4*b
                c = acc(mat, aa, b)
                a(f"v_mfma_f32_16x16x32_bf16 {c}, a[{ar}:{ar+3}], a[{rb}:{rb+3}], {c if ks else 0}")
                if b < 2 and n + D < NF: trd(n + D, b, seq)
                issued = False
                if b == 2 and (n % 3 != 2 or n >= 18*KM):
                    for o in ops:
                        if o[2] <= n:
                            if o[3] is swapdv: assert not any(p[3] is dma for p in ops)
                            if o[3] is poison: assert not epq
                            ops.remove(o); o[3](*o[4]); issued = True; break
                for _ in range(1 if b < 2 else (0 if issued else 2)):
                    if epq: a(epq.pop(0), tag="hm")
            if done_at and n in done_at: epq += done_at[n]
        for ins in epq: a(ins, tag="hm")
        assert n1 < NF or not ops
    for n in range(D):
        trd(n, 0, base); trd(n, 1, base)
    NC = 18*KM - D - D
    run(base + [None]*NF, 0, NC, ops)
    a("s_bitcmp1_b32 s17, 0")
    a("s_cbranch_scc1 GG_ODD")
    h = list(a.hist); vm = list(a.vm); lg = list(a.lg)
    for par in range(2):
        groups = [(0, 1), (2, 3), (4, 5), (6, 7), (8,)] if par == 0 else [(1, 2), (3, 4), (5, 6), (7, 8), (0,)]
        seq = list(base); done = {}; cnt = 0
        for gr in groups:
            for aa in gr:
                seq += [(ks, aa, mat) for ks in range(KM, 18) for mat in range(2)]
            done[min(len(seq) + 1, NF - 1)] = done.get(min(len(seq) + 1, NF - 1), []) + epi_group(gr, par, cnt); cnt += 4
        if par == 1:
            a.label("GG_ODD"); a.hist = h; a.vm = vm; a.lg = lg
        run(seq, NC, NF, list(ops), done)
        if par == 0: a("s_branch GG_FIN")
    a.label("GG_FIN"); a.hist = []
    if EXP == "g1st":
        stamp(a, 7); stamp_store(a, 8, 4); a("s_mov_b64 exec, -1")
    stamp_m(a, 2)
    a("s_lshl_b32 s20, s18, 2"); a("s_lshr_b32 s21, s17, 3"); a("s_add_u32 s20, s20, s21"); a("s_lshl_b32 s20, s20, 7")
    a("s_and_b32 s21, s17, 7"); a("s_lshl_b32 s21, s21, 2"); a("s_add_u32 s20, s20, s21"); a(f"s_add_u32 s20, s20, {OFF_FLG}")
    a("s_lshr_b32 s21, s4, 1"); a("s_lshl_b32 s21, s21, 2"); a("s_add_u32 s21, s21, s3"); a("s_lshl_b32 s21, s21, 7"); a(f"s_add_u32 s21, s21, {OFF_FLG}")
    ST0, ST1 = 42, 52
    a("s_lshl_b32 s31, s4, 3"); a("s_lshl_b32 s30, s16, 1"); a("s_add_u32 s31, s31, s30")
    a("s_mul_i32 s31, s31, 147456"); a("s_mul_i32 s30, s3, 36864"); a("s_add_u32 s31, s31, s30")
    a(f"s_add_u32 s31, s31, {OFF_HM}")
    for j in range(9):
        a(f"s_add_u32 s{SD+j}, s60, {j*128*1152}")
    for j in range(9):
        a(f"s_add_u32 s{ST0+j}, s31, {j*4096}")
    a(f"v_add_u32 v{VT+1}, 147456, v{VT}")
    a(f"v_lshrrev_b32 v2, 2, v{M}")
    a(f"v_mul_u32_u24 v{VA}, 288, v2")
    a(f"v_and_b32 v2, 3, v{M}"); a(f"v_lshl_add_u32 v{VA}, v2, 3, v{VA}")
    for sl in range(1, 4): a(f"v_add_u32 v{VA+sl}, {sl*SLOT}, v{VA}")
    a(f"v_lshlrev_b32 v{VT+2}, 2, v{M}")
    a(f"v_mov_b32 v{VT+3}, 1")
    a.wait_all()
    stamp_m(a, 3)
    a("s_barrier")
    a("s_cmp_lg_u32 s16, 0")
    a("s_cbranch_scc1 GG_W1")
    a("s_mov_b64 exec, 1")
    a(f"buffer_store_dword v{VT+3}, v{VT+2}, s[8:11], s20 offen sc1")
    a("s_mov_b64 exec, -1")
    poll(a, "GG_P1", 2, VT+2, 21, 8, 22)
    a.label("GG_W1"); a.hist = []; a.vm = []
    for st in (2, 3):
        for i in range(9): dma2(st, i)
    a("s_barrier")
    stamp_m(a, 4)
    a("s_and_b32 s22, s4, 1"); a("s_lshl_b32 s22, s22, 2"); a("s_add_u32 s22, s22, s5"); a("s_lshl_b32 s22, s22, 2")
    a("s_lshr_b32 s23, s4, 1"); a("s_lshl_b32 s23, s23, 7"); a("s_add_u32 s23, s23, s22")
    a("s_lshl_b32 s28, s3, 5"); a("s_add_u32 s28, s28, s23"); a("s_add_u32 s28, s28, s16")
    a("s_mul_i32 s28, s28, 9216"); a(f"s_add_u32 s28, s28, {OFF_PART}")
    for q in range(1, 3): a(f"s_add_u32 s{28+q}, s28, {4096*q}")
    a("s_add_u32 s23, s23, s3")
    a("s_lshl_b32 s17, s16, 11"); a(f"s_add_u32 s17, s17, {OFF_PART}")
    for i in range(1, 4):
        a(f"s_add_u32 s18, s3, {i}"); a("s_and_b32 s18, s18, 3"); a("s_lshl_b32 s18, s18, 5"); a("s_add_u32 s18, s18, s23")
        a("s_mul_i32 s18, s18, 9216"); a(f"s_add_u32 s{52+i}, s18, s17")
    a("s_lshl_b32 s56, s4, 7"); a("s_lshl_b32 s18, s3, 5"); a("s_add_u32 s56, s56, s18"); a("s_mul_i32 s56, s56, 1152")
    a("s_mul_i32 s18, s5, 288"); a("s_add_u32 s56, s56, s18"); a("s_lshl_b32 s18, s16, 6"); a("s_add_u32 s56, s56, s18")
    a("s_mul_i32 s57, s5, 576"); a("s_lshl_b32 s18, s16, 7"); a("s_add_u32 s57, s57, s18"); a(f"s_add_u32 s57, s57, {OFF_MODF + 4608}")
    a(f"s_add_u32 s58, s56, {OFF_X1R}")
    a("s_lshl_b32 s59, s16, 12"); a(f"s_add_u32 s59, s59, {2*SLOT}")
    if EXP == "localwb": a("buffer_wbl2 sc1")
    stamp_g(a, 1)
    PF2 = 12; AF2 = 72; BR2 = 108
    def tok2(ks, b):
        if EXP == "g2not" and ks >= 12: return
        rb = BR2 + 8 * (ks % PF2) + 4*b
        a(f"buffer_load_dwordx4 v[{rb}:{rb+3}], v{VT+b}, s[8:11], s{ST0 + ks//4} offen offset:{(ks % 4)*1024}" + ("" if EXP in ("g2plain", "localp") else " sc1"), tag=("t2", ks))
    def trd2(n, q):
        ks, aa = divmod(n, 9); st, kk = divmod(ks, 4)
        off = kk*9216 + aa*32 + q*16*288
        a(f"ds_read_b64_tr_b16 v[{AF2+4*aa+2*q}:{AF2+4*aa+2*q+1}], v{VA+slot2(st)} offset:{off}", tag=("a2", n))
    def dm0(st, i): a(f"s_add_u32 m0, s51, {slot2(st)*SLOT + i*1024}")
    def dld(st, i):
        if EXP == "g2now": return
        a(f"buffer_load_dwordx4 v{DV+i}, s[12:15], s{SD+st} offen lds", tag=("d2", st))
    PRO2 = 4
    for ks in range(PRO2):
        for b in range(2): tok2(ks, b)
    N2 = 36*9; D2 = 8
    ops = []
    for st in range(4, 9):
        for i in range(9): ops.append((36*st - D2 - 0.5, i, 36*(st-2) - D2, dld, (st, i)))
    for ks in range(PRO2, 36):
        for b in range(2): ops.append((9*ks, b, -1 if ks < PF2 else 9*(ks-PF2+1), tok2, (ks, b)))
    ops.sort(key=lambda o: (o[0], o[1]))
    for n in range(D2):
        trd2(n, 0); trd2(n, 1)
    armed = None
    for n in range(N2):
        ks, aa = divmod(n, 9)
        if (n + D2) % 36 == 0 and n + D2 < N2:
            st1 = (n + D2)//36
            assert not any(o[3] is dld and o[4][0] == st1 for o in ops) and not (armed and armed[0] == st1)
            a.wait_vm(("d2", st1))
            a("s_barrier")
        if aa == 0:
            assert not any(o[3] is tok2 and o[4][0] == ks for o in ops)
            a.wait_vm(("t2", ks))
            if ks in (0, 6, 12, 24): stamp_g(a, {0: 2, 6: 3, 12: 4, 24: 5}[ks])
        if n == 200: code_pf("GG_CP1", 1, 204)
        if n % 2 == 0: a.wait_lg(("a2", min(n+1, N2-1)))
        for b in range(2):
            t = 2*aa + b; rb = BR2 + 8 * (ks % PF2) + 4*b
            c = f"v[{4*t}:{4*t+3}]"
            a(f"v_mfma_f32_16x16x32_bf16 {c}, v[{AF2+4*aa}:{AF2+4*aa+3}], v[{rb}:{rb+3}], {c if ks else 0}")
            if n + D2 < N2: trd2(n + D2, b)
            if b == 0 or n % 2 == 1:
                if armed:
                    dld(*armed); armed = None
                else:
                    for o in ops:
                        if o[2] <= n:
                            ops.remove(o)
                            if o[3] is dld: dm0(*o[4]); armed = o[4]
                            else: o[3](*o[4])
                            break
    assert not ops and not armed
    stamp_m(a, 5)
    a(f"v_add_u32 v{VA}, {2*SLOT}, v{VT}")
    stamp_g(a, 6)
    OWN = 2 * SLOT
    a("s_cmp_eq_u32 s16, s3")
    a("s_cbranch_scc1 GG_OWN")
    h = list(a.hist)
    for aa in range(9):
        o = 72 + 4*(aa % 3)
        for q in range(4): a(f"v_cvt_pk_bf16_f32 v{o+q}, v{8*aa+2*q}, v{8*aa+2*q+1}")
        a(f"buffer_store_dwordx4 v[{o}:{o+3}], v{VT}, s[8:11], s{28 + aa//4} offen offset:{(aa % 4)*1024} sc1")
    a("s_branch GG_PUB")
    a.label("GG_OWN"); a.hist = h
    for t in range(18):
        a(f"ds_write_b128 v{VA}, v[{4*t}:{4*t+3}] offset:{1024*t}")
    a.label("GG_PUB"); a.hist = []
    a(f"v_and_b32 v140, 15, v{M}"); a("v_mul_u32_u24 v144, 1152, v140")
    a(f"v_lshrrev_b32 v140, 4, v{M}"); a("v_lshl_add_u32 v144, v140, 3, v144")
    a("v_lshlrev_b32 v145, 4, v140")
    a(f"v_add_u32 v146, {16*1152}, v144")
    a(f"v_add_u32 v147, s59, v{VT}")
    for i in range(3):
        for b in range(2):
            a(f"buffer_load_dwordx2 v[{108+2*(2*i+b)}:{109+2*(2*i+b)}], v{144 if b == 0 else 146}, s[8:11], s58 offen offset:{32*i} sc1")
        a(f"buffer_load_dwordx4 v[{120+4*i}:{123+4*i}], v145, s[8:11], s57 offen offset:{64*i}")
    for q in range(3): a(f"s_mov_b32 s{48+q}, s{53+q}")
    a("s_mov_b32 s34, s56")
    srd(a, 24, 62, 2048*1152)
    a.wait_all(vm=False)
    stamp_m(a, 6)
    a("s_barrier")
    for i in range(6):
        a(f"ds_read_b128 v[{4*i}:{4*i+3}], v147 offset:{1024*i}")
    R = 24
    a("s_mov_b32 s22, 0x8000")
    a.label("GG_P2")
    for i in range(3):
        for q in range(3):
            r = R + 4*(3*i + q)
            a(f"buffer_load_dwordx4 v[{r}:{r+3}], v{VT}, s[8:11], s{48+q} offen offset:{i*1024} sc1")
    a("s_waitcnt vmcnt(0)"); a.vm = []
    a(f"v_max3_u32 v60, v{R}, v{R+1}, v{R+2}")
    a(f"v_max3_u32 v61, v{R+3}, v{R+4}, v{R+5}")
    for r in range(R+6, R+36, 4):
        if r + 3 < R + 36:
            a(f"v_max3_u32 v60, v60, v{r}, v{r+1}"); a(f"v_max3_u32 v61, v61, v{r+2}, v{r+3}")
        else:
            a(f"v_max3_u32 v60, v60, v{r}, v{r+1}")
    a("v_max_u32 v60, v60, v61")
    a("v_cmp_eq_u32 vcc, -1, v60")
    a("s_sub_u32 s22, s22, 1")
    a("s_cbranch_scc1 GG_P2X")
    a("s_cbranch_vccnz GG_P2")
    a.label("GG_P2X"); a.hist = []
    a.wait_all(vm=False)
    for i in range(3):
        for b in range(2):
            r = 4*(2*i + b)
            for q in range(3):
                for e in range(2):
                    unpack(a, 60, 61, R + 4*(3*i+q) + 2*b + e)
                    a(f"v_add_f32 v{r+2*e}, v{r+2*e}, v60"); a(f"v_add_f32 v{r+2*e+1}, v{r+2*e+1}, v61")
            xr = 108 + 2*(2*i + b)
            for e in range(0, 4, 2):
                rnd2(a, r+e, r+e+1, 62)
                a(f"v_mul_f32 v{r+e}, v{r+e}, v{120+4*i+e}"); a(f"v_mul_f32 v{r+e+1}, v{r+e+1}, v{120+4*i+e+1}")
                rnd2(a, r+e, r+e+1, 62)
                unpack(a, 62, 63, xr+e//2)
                a(f"v_add_f32 v{r+e}, v{r+e}, v62"); a(f"v_add_f32 v{r+e+1}, v{r+e+1}, v63")
                a(f"v_cvt_pk_bf16_f32 v{xr+e//2}, v{r+e}, v{r+e+1}")
            a(f"buffer_store_dwordx2 v[{xr}:{xr+1}], v{144 if b == 0 else 146}, s[24:27], s34 offen offset:{32*i}")
    if STAMP and EXP != "g1st":
        a.wait_all(); stamp(a, 7); stamp_store(a, 8, 4)
    a.label("GG_END")
    a("s_endpgm")
    return a.text(), dict(vgpr=256+DV2A+12, sgpr=64, accum=256), f"grid=(256,1,1) block=(256,1,1) lds={NSLOT*SLOT}"

def voffs(a, base, n, ppr, pitch, t0, t1, swap23=False):
    magic = -(-65536 // ppr)
    assert all((P * magic) >> 16 == P // ppr for P in range(64*n))
    for i in range(n):
        a(f"v_add_u32 v{t0}, {64*i}, v1")
        a(f"v_mul_u32_u24 v{t1}, {magic}, v{t0}")
        a(f"v_lshrrev_b32 v{t1}, 16, v{t1}")
        a(f"v_mul_u32_u24 v{base+i}, {ppr}, v{t1}")
        a(f"v_sub_u32 v{t0}, v{t0}, v{base+i}")
        if swap23:
            a(f"v_lshrrev_b32 v{base+i}, 1, v{t1}")
            a(f"v_xor_b32 v{base+i}, v{base+i}, v{t1}")
            a(f"v_and_b32 v{base+i}, 4, v{base+i}")
            a(f"v_mul_u32_u24 v{base+i}, 3, v{base+i}")
            a(f"v_xor_b32 v{t1}, v{t1}, v{base+i}")
        a(f"v_mul_u32_u24 v{base+i}, {pitch}, v{t1}")
        a(f"v_lshl_add_u32 v{base+i}, v{t0}, 4, v{base+i}")

def kgg2():
    a = Asm()
    SLOT = 36864; NSLOT = 4
    S1 = 20480; NS1 = 6; PF = 4; NA = 6
    L2B = NS1*S1; RED = L2B + 18432
    a("s_load_dwordx2 s[6:7], s[0:1], 136")
    a("s_load_dwordx4 s[12:15], s[0:1], 80")
    a("s_load_dwordx2 s[4:5], s[0:1], 96")
    a("s_load_dwordx2 s[62:63], s[0:1], 120")
    a("s_cmp_ge_u32 s2, 256")
    a("s_cbranch_scc1 GG_END")
    stamp(a, 0)
    M = 224; DV = 226; DV2 = 231; VT = 240; VP = 244; VSG = 247; T = 250; VA = 244
    a(f"v_and_b32 v{M}, 63, v0")
    a(f"v_lshrrev_b32 v{M+1}, 6, v0")
    a(f"v_readfirstlane_b32 s16, v{M+1}")
    a(f"v_lshlrev_b32 v{VT}, 4, v{M}")
    a(f"v_lshrrev_b32 v5, 4, v{M}")
    a("v_lshlrev_b32 v6, 5, v5")
    a("s_lshr_b32 s17, s2, 1"); a("s_mul_i32 s17, s17, 18432")
    a("s_and_b32 s18, s2, 1")
    a("s_mul_i32 s19, s16, 6144")
    a("s_add_u32 s20, s17, s19"); a(f"s_add_u32 s20, s20, {OFF_X1T}"); a("s_add_u32 s21, s20, 4096")
    a("s_mul_i32 s22, s16, 768"); a("s_mul_i32 s23, s18, 384"); a("s_add_u32 s22, s22, s23"); a(f"s_add_u32 s22, s22, {OFF_MODF}")
    a(f"s_add_u32 s19, s19, {L2B}")
    a("s_mul_i32 s3, s16, 384"); a("s_mul_i32 s23, s18, 192"); a("s_add_u32 s3, s3, s23"); a("s_add_u32 s3, s3, s17"); a(f"s_add_u32 s3, s3, {OFF_X1R}")
    a("s_mul_i32 s51, s18, 3072")
    a("s_mul_i32 s60, s16, 6144"); a("s_add_u32 s60, s60, s51"); a("s_add_u32 s60, s60, s17"); a(f"s_add_u32 s60, s60, {OFF_H2P}")
    a("s_mov_b32 s61, s19")
    a.wait_all()
    srd(a, 8, 6, WS_REC)
    a("s_cmp_eq_u32 s16, 3")
    a("s_cbranch_scc1 GG_S1")
    a("s_mov_b32 m0, s19")
    for i in range(4): a(f"buffer_load_dwordx4 v{VT}, s[8:11], s20 offen offset:{1024*i} lds", tag="x")
    a("s_add_u32 m0, s19, 4096")
    for i in range(2): a(f"buffer_load_dwordx4 v{VT}, s[8:11], s21 offen offset:{1024*i} lds", tag="x")
    SB = 100; CB = 124
    for i in range(3):
        for h in range(2):
            a(f"buffer_load_dwordx4 v[{SB+8*i+4*h}:{SB+8*i+4*h+3}], v6, s[8:11], s22 offen offset:{128*i+16*h}", tag="m")
            a(f"buffer_load_dwordx4 v[{CB+8*i+4*h}:{CB+8*i+4*h+3}], v6, s[8:11], s22 offen offset:{2304+128*i+16*h}", tag="m")
    a.label("GG_S1")
    a(f"v_mov_b32 v1, v{M}")
    a("s_and_b32 s17, s2, 7"); a("s_lshr_b32 s18, s2, 3")
    a("s_and_b32 s19, s18, 3"); a("s_lshl_b32 s17, s17, 2"); a("s_add_u32 s17, s17, s19")
    a("s_lshr_b32 s18, s18, 2")
    a("s_lshl_b32 s19, s19, 1"); a("s_add_u32 s19, s19, s18")
    a("s_sub_u32 s20, s19, 9"); a("s_cmp_ge_u32 s19, 9"); a("s_cselect_b32 s19, s20, s19")
    voffs(a, DV, 5, 10, 9216, 254, 255, swap23=True)
    a("s_and_b32 s22, s16, 1"); a("s_lshr_b32 s23, s16, 1")
    a(f"s_mul_i32 s28, s22, {32*9216}"); a("s_mul_i32 s30, s17, 288"); a("s_add_u32 s28, s28, s30")
    a("s_and_b32 s30, s17, 1"); a("s_lshl_b32 s30, s30, 7"); a("s_add_u32 s28, s28, s30")
    a("s_mul_i32 s29, s23, 10240"); a("s_mul_i32 s30, s22, 5120"); a("s_add_u32 s29, s29, s30")
    a("s_lshl_b32 s31, s18, 4"); a("s_lshl_b32 s30, s16, 2"); a("s_add_u32 s31, s31, s30")
    a("s_mul_i32 s32, s31, 18432"); a(f"s_add_u32 s32, s32, {OFF_H2P}")
    SD, ST = 33, 42
    for j in range(9):
        a(f"s_add_u32 s22, s19, {j}"); a("s_sub_u32 s23, s22, 9"); a("s_cmp_ge_u32 s22, 9"); a("s_cselect_b32 s22, s23, s22")
        a(f"s_mul_i32 s23, s22, {64*9216}"); a(f"s_add_u32 s{SD+j}, s28, s23")
        a("s_lshl_b32 s23, s22, 11"); a(f"s_add_u32 s{ST+j}, s32, s23")
    a("s_cmp_ge_u32 s16, 2")
    a("s_cselect_b32 s20, s14, s12"); a("s_cselect_b32 s21, s15, s13")
    srd(a, 24, 20, 576*9216)
    srd(a, 12, 4, 4608*1152)
    AF = 64; BR = AF + 4*NA; PO = BR + 16*PF
    def dma(st, i):
        a(f"s_add_u32 m0, s29, {(st % NS1)*S1 + i*1024}")
        a(f"buffer_load_dwordx4 v{DV+i}, s[24:27], s{SD + st % 9} offen lds", tag=("d", st))
    def tok(ks, b):
        rb = BR + 16 * (ks % PF) + 4*b
        a(f"buffer_load_dwordx4 a[{rb}:{rb+3}], v{VT+b}, s[8:11], s{ST + (ks % 18)//2} offen offset:{(ks % 2)*1024} sc1", tag=("t", ks))
    def accr(ps, mat, pos, b):
        if ps == 0: return ("v", 32*pos + 16*mat + 4*b)
        if pos < 3: return ("v", 128 + 32*pos + 16*mat + 4*b)
        return ("a", 32*(pos-3) + 16*mat + 4*b)
    seq = [(ks, pos, mat) for ks in range(18) for pos in range(4) for mat in range(2)] + \
          [(ks, pos, mat) for ks in range(18, 36) for pos in range(5) for mat in range(2)]
    first = {}
    for n, (ks, _, _) in enumerate(seq): first.setdefault(ks, n)
    first[36] = len(seq)
    def trd(n, q):
        ks, pos, mat = seq[n]
        st, kk = divmod(ks, 2); slot = st % NS1
        off = (slot & 1)*S1 + mat*10240 + kk*5120 + q*1280 + (32*pos if pos < 4 else 0)
        r = AF + 4*(n % NA) + 2*q
        a(f"ds_read_b64_tr_b16 a[{r}:{r+1}], v{(VP if pos < 4 else VSG) + (slot >> 1)} offset:{off}", tag=("a", n))
    for st in range(2):
        for i in range(5): dma(st, i)
    def late_setup():
        for b in range(1, 4): a(f"v_add_u32 v{VT+b}, {18432*b}, v{VT}")
        a(f"v_lshrrev_b32 v2, 5, v{M}"); a("v_lshlrev_b32 v2, 4, v2")
        a(f"v_bfe_u32 v3, v{M}, 4, 1"); a("v_lshl_add_u32 v2, v3, 2, v2")
        a(f"v_bfe_u32 v3, v{M}, 2, 2"); a("v_add_u32 v2, v2, v3")
        a("v_mul_u32_u24 v2, 160, v2")
        a(f"v_and_b32 v3, 3, v{M}"); a("v_lshl_add_u32 v2, v3, 3, v2")
        a("s_and_b32 s19, s17, 1")
        a("s_lshl_b32 s20, s19, 5"); a(f"v_add_u32 v{VP}, s20, v2")
        a("s_lshl_b32 s20, s19, 7"); a("s_sub_u32 s20, 128, s20"); a(f"v_add_u32 v{VSG}, s20, v2")
        for sl in range(1, 3):
            a(f"v_add_u32 v{VP+sl}, {2*sl*S1}, v{VP}"); a(f"v_add_u32 v{VSG+sl}, {2*sl*S1}, v{VSG}")
        a("s_mul_i32 s52, s31, 147456"); a(f"s_add_u32 s52, s52, {OFF_HM}")
        for b in range(1, 4): a(f"s_add_u32 s{52+b}, s52, {147456*b}")
        a("s_mul_i32 s20, s17, 9")
        a("s_mul_i32 s21, s19, 5"); a("s_add_u32 s21, s21, s20"); a("s_lshl_b32 s21, s21, 9")
        a("s_mul_i32 s22, s19, 3"); a("s_sub_u32 s22, s20, s22"); a("s_add_u32 s22, s22, 4"); a("s_lshl_b32 s22, s22, 9")
        a("s_mul_i32 s23, s19, 9"); a("s_sub_u32 s23, s20, s23"); a("s_add_u32 s23, s23, 8"); a("s_lshl_b32 s23, s23, 9")
        a("s_lshl_b32 s20, s19, 3"); a("s_add_u32 s23, s23, s20")
        voffs(a, DV2, 9, 18, 1152, 254, 255)
        a("s_and_b32 s20, s2, 7"); a("s_lshr_b32 s28, s2, 3")
        a("s_and_b32 s5, s28, 3"); a("s_lshr_b32 s4, s28, 2")
        a("s_and_b32 s28, s20, 1"); a("s_lshl_b32 s28, s28, 3"); a("s_add_u32 s4, s4, s28")
        a("s_lshr_b32 s3, s20, 1")
        a(f"s_mul_i32 s61, s3, {1152*1152}"); a("s_mul_i32 s20, s5, 288"); a("s_add_u32 s61, s61, s20")
        a("s_lshr_b32 s20, s16, 1"); a("s_mul_i32 s20, s20, 5"); a("s_add_u32 s20, s20, s16"); a(f"s_mul_i32 s20, s20, {32*1152}")
        a("s_add_u32 s60, s61, s20")
        a("s_mul_i32 s51, s16, 9216")
        a("s_lshl_b32 s30, s18, 5"); a("s_add_u32 s30, s30, s17"); a("s_mul_i32 s30, s30, 36864"); a("s_add_u32 s30, s30, s51")
        a(f"s_add_u32 s30, s30, {OFF_PART}"); a("s_add_u32 s31, s30, 4096"); a("s_add_u32 s32, s30, 8192")
        for q in range(4): a(f"v_accvgpr_write_b32 a{PO+q}, -1")
        a("s_lshl_b32 s56, s18, 2"); a("s_lshr_b32 s20, s17, 3"); a("s_add_u32 s56, s56, s20"); a("s_lshl_b32 s56, s56, 7")
        a("s_and_b32 s20, s17, 7"); a("s_lshl_b32 s20, s20, 2"); a("s_add_u32 s56, s56, s20"); a(f"s_add_u32 s56, s56, {OFF_FLG}")
        a("s_add_u32 s57, s56, 4096")
        a("s_lshr_b32 s58, s4, 1"); a("s_lshl_b32 s58, s58, 2"); a("s_add_u32 s58, s58, s3"); a("s_lshl_b32 s58, s58, 7"); a(f"s_add_u32 s58, s58, {OFF_FLG}")
        a("s_add_u32 s59, s58, 4096")
        a("s_lshl_b32 s28, s19, 8"); a("s_sub_u32 s28, 128, s28")
    a("s_cmp_eq_u32 s16, 3")
    a("s_cbranch_scc1 GG_W3")
    vm_w3 = [t for t in a.vm if t not in ("x", "m")]
    a(f"v_and_b32 v4, 15, v{M}")
    a(f"v_bfe_u32 v7, v{M}, 2, 2"); a("v_lshlrev_b32 v7, 5, v7")
    a(f"v_and_b32 v8, 3, v{M}"); a("v_lshl_add_u32 v7, v8, 3, v7")
    a("v_lshl_add_u32 v7, v5, 8, v7")
    a("v_add_u32 v7, s61, v7")
    a("v_subrev_u32 v8, s51, v7")
    a("v_add_u32 v7, s51, v7")
    a("v_mul_u32_u24 v9, 1152, v4"); a("v_lshl_add_u32 v9, v5, 4, v9")
    a("v_lshlrev_b32 v23, 4, v4"); a(f"v_add_u32 v23, {RED}, v23")
    a(f"v_lshl_add_u32 v22, v{M+1}, 2, v23")
    stamp_x(a, 1)
    a.wait_vm("x")
    stamp_x(a, 2)
    X = 24; F = 48
    for i in range(6):
        va = 7 if i < 3 else 8
        a(f"ds_read_b64_tr_b16 v[{X+4*i}:{X+4*i+1}], v{va} offset:{1024*i}", tag=("t", i))
        a(f"ds_read_b64_tr_b16 v[{X+4*i+2}:{X+4*i+3}], v{va} offset:{1024*i+128}", tag=("t", i))
    for i in range(6):
        a.wait_lg(("t", i))
        if i < 3: a(f"buffer_store_dwordx4 v[{X+4*i}:{X+4*i+3}], v9, s[8:11], s3 offen offset:{64*i} sc1", tag="st")
        for q in range(4): unpack(a, F+8*i+2*q, F+8*i+2*q+1, X+4*i+q)
    def xreduce(r, off):
        a(f"v_mov_b32 v10, v{r}")
        a(f"v_permlane32_swap_b32 v10, v{r}")
        a(f"v_add_f32 v{r}, v{r}, v10")
        a(f"v_mov_b32 v10, v{r}")
        a(f"v_permlane16_swap_b32 v10, v{r}")
        a(f"v_add_f32 v{r}, v{r}, v10")
        a(f"ds_write_b32 v22, v{r} offset:{off}")
        a.wait_all(vm=False)
        a("s_barrier")
        a(f"ds_read_b96 v[10:12], v23 offset:{off}")
        a.wait_all(vm=False)
        a("v_add_f32 v10, v10, v11"); a(f"v_add_f32 v{r}, v10, v12")
    for c in range(4): a(f"v_add_f32 v{14+c}, v{F+c}, v{F+4+c}")
    for i in range(8, 48, 4):
        for c in range(4): a(f"v_add_f32 v{14+c}, v{14+c}, v{F+i+c}")
    a("v_add_f32 v14, v14, v15"); a("v_add_f32 v16, v16, v17"); a("v_add_f32 v14, v14, v16")
    xreduce(14, 0)
    a(f"v_mul_f32 v14, {f32(1.0/576):#x}, v14")
    for i in range(0, 48, 2):
        a(f"v_sub_f32 v18, v{F+i}, v14"); a(f"v_sub_f32 v19, v{F+i+1}, v14")
        if i == 0: a("v_mul_f32 v15, v18, v18"); a("v_mul_f32 v16, v19, v19")
        else: a("v_fmac_f32 v15, v18, v18"); a("v_fmac_f32 v16, v19, v19")
    a("v_add_f32 v15, v15, v16")
    xreduce(15, 256)
    a(f"v_mul_f32 v15, {f32(1.0/576):#x}, v15")
    rnd1(a, 15)
    a(f"v_add_f32 v15, {f32(1e-5):#x}, v15")
    rnd1(a, 15)
    a("v_sqrt_f32 v15, v15")
    rnd1(a, 15)
    a("v_rcp_f32 v16, v15")
    rnd1(a, 14)
    stamp_x(a, 3)
    a.wait_vm("m")
    for i in range(3):
        for q in range(4):
            r0 = F+8*i+2*q; r1 = r0+1
            a(f"v_sub_f32 v{r0}, v{r0}, v14"); a(f"v_sub_f32 v{r1}, v{r1}, v14")
            rnd2(a, r0, r1, 17)
            a(f"v_mul_f32 v18, v{r0}, v16"); a(f"v_mul_f32 v19, v{r1}, v16")
            a(f"v_fma_f32 v{r0}, -v18, v15, v{r0}"); a(f"v_fma_f32 v{r1}, -v19, v15, v{r1}")
            a(f"v_fmac_f32 v18, v{r0}, v16"); a(f"v_fmac_f32 v19, v{r1}, v16")
            rnd2(a, 18, 19, 17)
            a(f"v_mul_f32 v18, v18, v{CB+8*i+2*q}"); a(f"v_mul_f32 v19, v19, v{CB+8*i+2*q+1}")
            rnd2(a, 18, 19, 17)
            a(f"v_add_f32 v18, v18, v{SB+8*i+2*q}"); a(f"v_add_f32 v19, v19, v{SB+8*i+2*q+1}")
            a(f"v_cvt_pk_bf16_f32 v{X+12+4*i+q}, v18, v19")
        a(f"buffer_store_dwordx4 v[{X+12+4*i}:{X+12+4*i+3}], v{VT}, s[8:11], s60 offen offset:{1024*i} sc1", tag="st")
    a.wait_vm("st")
    a("s_barrier")
    late_setup()
    for st in (2, 3):
        for i in range(5): dma(st, i)
    vm_main = list(a.vm)
    a("s_branch GG_R4")
    a.label("GG_W3"); a.hist = []; a.vm = vm_w3; a.lg = []
    for st in (2, 3):
        for i in range(5): dma(st, i)
    late_setup()
    a("s_lshr_b32 s20, s2, 5"); a("s_lshl_b32 s20, s20, 7"); a("s_and_b32 s0, s2, 31"); a("s_lshl_b32 s0, s0, 2")
    a("s_add_u32 s20, s20, s0"); a(f"s_add_u32 s20, s20, {OFF_FLG + 12288}")
    a("s_lshl_b32 s0, s18, 7"); a(f"s_add_u32 s0, s0, {OFF_FLG + 12288}")
    a(f"v_lshlrev_b32 v3, 2, v{M}"); a("v_mov_b32 v4, 1")
    a("s_barrier"); a("s_barrier")
    a.wait_all()
    a("s_barrier")
    a("s_mov_b64 exec, 1")
    a("buffer_store_dword v4, v3, s[8:11], s20 offen sc1")
    a("s_mov_b64 exec, -1")
    poll(a, "GG_P0", 6, 3, 0, 32, 6)
    a.label("GG_R4"); a.hist = []; a.vm = vm_main; a.lg = []
    a("s_barrier")
    stamp_m(a, 1)
    for b in range(4): tok(0, b)
    a(f"v_lshlrev_b32 v254, 2, v{M}"); a("v_mov_b32 v255, 1")
    def dma2(st, i, so=None):
        a(f"s_add_u32 m0, s51, {(st % NSLOT)*SLOT + i*1024}")
        a(f"buffer_load_dwordx4 v{DV2+i}, s[12:15], s{so if so is not None else SD+st} offen lds", tag=("d2", st))
    def switch():
        for j in range(9): a(f"s_add_u32 s{SD+j}, s{SD+j}, s28")
    def next2(): a(f"s_add_u32 s60, s60, {9*32*1152}")
    def poison(i):
        a(f"buffer_store_dwordx4 a[{PO}:{PO+3}], v{VT}, s[8:11], s{30 + i//4} offen offset:{(i % 4)*1024} sc1", tag="hmA")
    def flag(sreg):
        a("s_cmp_lg_u32 s16, 0")
        lab = f"GG_F{sreg}"
        a(f"s_cbranch_scc1 {lab}")
        a("s_mov_b64 exec, 1")
        a(f"buffer_store_dword v255, v254, s[8:11], s{sreg} offen sc1")
        a("s_mov_b64 exec, -1")
        a.label(lab)
        a.vm.pop()
    NF = len(seq); D = NA - 1
    bar = {first[2*st] - D: st for st in range(1, 18)}
    ops = []
    for st in range(4, 18):
        if st == 9: ops.append((first[18] - D - 0.6, -1, first[2*(st-4)] - D, switch, ()))
        for i in range(5):
            ops.append((first[2*st] - D - 0.5, i, -1 if st < NS1 else first[2*(st-4)] - D, dma, (st, i)))
    for ks in range(1, 36):
        for b in range(4):
            ops.append((first[ks], b, -1 if ks < PF else first[ks-PF+1], tok, (ks, b)))
    for i in range(9): ops.append((NF-1, i, 30 + 12*i, poison, (i,)))
    for i in range(9): ops.append((NF+2, i, first[30] - D, dma2, (0, i, 60)))
    ops.append((NF+3, -1, first[34] - D, next2, ()))
    for i in range(9): ops.append((NF+3, i, first[34] - D, dma2, (1, i, 60)))
    ops.sort(key=lambda o: (o[0], o[1]))
    def pk(g, u, o):
        return [f"v_pk_mul_f32 v[{g+2*q}:{g+2*q+1}], v[{g+2*q}:{g+2*q+1}], v[{u+2*q}:{u+2*q+1}]" for q in range(2)] + \
               [f"v_cvt_pk_bf16_f32 v{o+q}, v{g+2*q}, v{g+2*q+1}" for q in range(2)]
    rel = {}
    for p in range(2):
        for b in range(4):
            L = []
            for e in range(2):
                L += pk(accr(0, 0, 2*p+e, b)[1], accr(0, 1, 2*p+e, b)[1], T + 2*e)
            L.append(f"s_add_u32 s20, s{52+b}, s21")
            L.append(f"buffer_store_dwordx4 v[{T}:{T+3}], v{VT}, s[8:11], s20 offen offset:{1024*p} sc1")
            rel[first[18] + 4 + 14*(4*p+b)] = L
    for n in range(D):
        trd(n, 0); trd(n, 1)
    epq = []
    for n in range(NF):
        ks, pos, mat = seq[n]
        if n in bar:
            st1 = bar[n]
            assert not any(o[3] is dma and o[4][0] == st1 for o in ops), st1
            a.wait_vm(("d", st1))
            if st1 == 16:
                assert not epq and max(rel) < n
                a.wait_vm("hmA")
            a("s_barrier")
            if st1 == 16: flag(56)
        assert not any(o[3] is tok and o[4][0] == ks for o in ops), ks
        a.wait_vm(("t", ks))
        a.wait_lg(("a", n))
        ar = AF + 4*(n % NA)
        for b in range(4):
            rb = BR + 16 * (ks % PF) + 4*b
            k_, r = accr(ks // 18, mat, pos, b); c = f"{k_}[{r}:{r+3}]"
            a(f"v_mfma_f32_16x16x32_bf16 {c}, a[{ar}:{ar+3}], a[{rb}:{rb+3}], {c if ks % 18 else 0}")
            if b < 2 and n + D < NF: trd(n + D, b)
            issued = False
            if b == 2:
                for o in ops:
                    if o[2] <= n:
                        if o[3] is switch: assert not any(q[3] is dma and q[4][0] < 9 for q in ops)
                        if o[3] is next2: assert not any(q[3] is dma2 and q[4][0] == 0 for q in ops)
                        ops.remove(o); o[3](*o[4]); issued = True; break
            if b >= 2 and not issued and epq: a(epq.pop(0), tag="hmA")
        if n in rel: epq += rel[n]
    assert not ops and not epq
    stamp_m(a, 2)
    a(f"buffer_load_dword v{T}, v254, s[8:11], s58 offen sc1", tag="fa")
    for b in range(4):
        g0, u0, g1, u1, g2, u2 = [accr(1, m_, p_, b)[1] for p_ in range(3) for m_ in range(2)]
        for ins in pk(g0, u0, u0)[:2] + pk(g1, u1, u0+2) + pk(g0, u0, u0)[2:]: a(ins)
        for (p_, o) in ((3, None), (4, u1)):
            ga, ua = accr(1, 0, p_, b)[1], accr(1, 1, p_, b)[1]
            for r in range(4):
                a(f"v_accvgpr_read_b32 v{g0+r}, a{ga+r}"); a(f"v_accvgpr_read_b32 v{g1+r}, a{ua+r}")
            if p_ == 3:
                for ins in pk(g2, u2, u2)[:2] + pk(g0, g1, u2+2) + pk(g2, u2, u2)[2:]: a(ins)
            else:
                for ins in pk(g0, g1, u1): a(ins)
    def hmB(i):
        kind, b = divmod(i, 4)
        u = accr(1, 1, (0, 2, 1)[kind], b)[1]
        a(f"s_add_u32 s20, s{52+b}, s{22 if kind < 2 else 23}")
        if kind < 2: a(f"buffer_store_dwordx4 v[{u}:{u+3}], v{VT}, s[8:11], s20 offen offset:{1024*kind} sc1", tag="hmB")
        else: a(f"buffer_store_dwordx2 v[{u}:{u+1}], v{VT}, s[8:11], s20 offen sc1", tag="hmB")
    ST0 = 42
    a("s_lshl_b32 s31, s4, 3"); a("s_lshl_b32 s30, s16, 1"); a("s_add_u32 s31, s31, s30")
    a("s_mul_i32 s31, s31, 147456"); a("s_mul_i32 s30, s3, 36864"); a("s_add_u32 s31, s31, s30")
    a(f"s_add_u32 s31, s31, {OFF_HM}")
    for j in range(9): a(f"s_add_u32 s{ST0+j}, s31, {j*4096}")
    for st in (2, 3): a(f"s_add_u32 s{SD+st}, s60, {(st-1)*9*32*1152}")
    for st in range(4, 9):
        a(f"s_add_u32 s30, s16, {4*(st-4)}"); a("s_mul_i32 s31, s30, 13"); a("s_lshr_b32 s31, s31, 6"); a("s_lshl_b32 s31, s31, 2")
        a("s_add_u32 s30, s30, s31"); a("s_add_u32 s30, s30, 2"); a(f"s_mul_i32 s30, s30, {32*1152}"); a(f"s_add_u32 s{SD+st}, s61, s30")
    a(f"v_add_u32 v{VT+1}, 147456, v{VT}")
    a(f"v_lshrrev_b32 v2, 2, v{M}")
    a(f"v_mul_u32_u24 v{VA}, 288, v2")
    a(f"v_and_b32 v2, 3, v{M}"); a(f"v_lshl_add_u32 v{VA}, v2, 3, v{VA}")
    for sl in range(1, 4): a(f"v_add_u32 v{VA+sl}, {sl*SLOT}, v{VA}")
    def check(lab, sreg, tag):
        a.wait_vm(tag)
        a("s_mov_b32 s30, 0x8000")
        a.label(lab)
        a(f"v_cmp_ne_u32 vcc, 0, v{T}")
        a("s_and_b32 s31, vcc_lo, 0xff"); a("s_cmp_eq_u32 s31, 0xff")
        a(f"s_cbranch_scc1 {lab}_X")
        a(f"buffer_load_dword v{T}, v254, s[8:11], s{sreg} offen sc1"); a.vm.pop()
        a("s_waitcnt vmcnt(0)")
        a("s_sub_u32 s30, s30, 1")
        a(f"s_cbranch_scc0 {lab}")
        a.label(lab + "_X")
    check("GG_CA", 58, "fa")
    PF2 = 12; AF2 = 72; BR2 = 64
    kap = [9*(ks // 4) + (0, 1, 7, 8)[ks % 4] for ks in range(16)] + [9*(q // 5) + 2 + q % 5 for q in range(20)]
    def tok2(ks, b):
        rb = BR2 + 8 * (ks % PF2) + 4*b
        a(f"buffer_load_dwordx4 a[{rb}:{rb+3}], v{VT+b}, s[8:11], s{ST0 + kap[ks]//4} offen offset:{(kap[ks] % 4)*1024} sc1", tag=("t2", ks))
    PRO2 = 4
    for ks in range(PRO2):
        for b in range(2): tok2(ks, b)
    a.wait_vm(("d2", 1))
    a.wait_all(vm=False)
    stamp_m(a, 3)
    a("s_barrier")
    stamp_m(a, 4)
    def trd2(n, q):
        ks, aa = divmod(n, 9); st, kk = divmod(ks, 4)
        off = kk*9216 + aa*32 + q*16*288
        a(f"ds_read_b64_tr_b16 v[{AF2+4*aa+2*q}:{AF2+4*aa+2*q+1}], v{VA + st % NSLOT} offset:{off}", tag=("a2", n))
    def dm0(st, i): a(f"s_add_u32 m0, s51, {(st % NSLOT)*SLOT + i*1024}")
    def dld(st, i): a(f"buffer_load_dwordx4 v{DV2+i}, s[12:15], s{SD+st} offen lds", tag=("d2", st))
    def fbl(): a(f"buffer_load_dword v{T}, v254, s[8:11], s59 offen sc1", tag="fb")
    def fbc(): check("GG_CB", 59, "fb")
    N2 = 36*9; D2 = 8
    NCHK = 104
    ops = []
    for st in range(2, 9):
        for i in range(9): ops.append((36*st - D2 - 0.5, i, -1 if st < 4 else 36*(st-2) - D2, dld, (st, i)))
    for ks in range(PRO2, 36):
        for b in range(2): ops.append((9*ks, b, max(-1 if ks < PF2 else 9*(ks-PF2+1), NCHK + 1 if ks >= 16 else -1), tok2, (ks, b)))
    for i in range(12): ops.append((4*i + 6, 0, 4*i + 2, hmB, (i,)))
    ops.append((NCHK - 12, 0, NCHK - 14, fbl, ()))
    ops.append((NCHK, 0, NCHK, fbc, ()))
    ops.sort(key=lambda o: (o[0], o[1]))
    for n in range(D2):
        trd2(n, 0); trd2(n, 1)
    armed = None
    for n in range(N2):
        ks, aa = divmod(n, 9)
        if (n + D2) % 36 == 0 and n + D2 < N2:
            st1 = (n + D2)//36
            assert not any(o[3] is dld and o[4][0] == st1 for o in ops) and not (armed and armed[0] == st1), st1
            a.wait_vm(("d2", st1))
            if st1 == 2:
                assert not any(o[3] is hmB for o in ops)
                a.wait_vm("hmB")
            a("s_barrier")
            if st1 == 2: flag(57)
        if aa == 0:
            assert not any(o[3] is tok2 and o[4][0] == ks for o in ops), ks
            a.wait_vm(("t2", ks))
        if n % 2 == 0: a.wait_lg(("a2", min(n+1, N2-1)))
        for b in range(2):
            t = 2*aa + b; rb = BR2 + 8 * (ks % PF2) + 4*b
            c = f"v[{4*t}:{4*t+3}]"
            a(f"v_mfma_f32_16x16x32_bf16 {c}, v[{AF2+4*aa}:{AF2+4*aa+3}], a[{rb}:{rb+3}], {c if ks else 0}")
            if n + D2 < N2: trd2(n + D2, b)
            if b == 0 or n % 2 == 1:
                if armed:
                    dld(*armed); armed = None
                else:
                    for o in ops:
                        if o[2] <= n:
                            ops.remove(o)
                            if o[3] is dld: dm0(*o[4]); armed = o[4]
                            else: o[3](*o[4])
                            break
        if n == 200:
            a("s_and_b32 s22, s4, 1"); a("s_lshl_b32 s22, s22, 2"); a("s_add_u32 s22, s22, s5"); a("s_lshl_b32 s22, s22, 2")
            a("s_lshr_b32 s23, s4, 1"); a("s_lshl_b32 s23, s23, 7"); a("s_add_u32 s23, s23, s22")
            a("s_lshl_b32 s28, s3, 5"); a("s_add_u32 s28, s28, s23"); a("s_add_u32 s28, s28, s16")
            a("s_mul_i32 s28, s28, 9216"); a(f"s_add_u32 s28, s28, {OFF_PART}")
            for q in range(1, 3): a(f"s_add_u32 s{28+q}, s28, {4096*q}")
            a("s_add_u32 s23, s23, s3")
            a("s_lshl_b32 s17, s16, 11"); a(f"s_add_u32 s17, s17, {OFF_PART}")
        if n == 206:
            for i in range(1, 4):
                a(f"s_add_u32 s18, s3, {i}"); a("s_and_b32 s18, s18, 3"); a("s_lshl_b32 s18, s18, 5"); a("s_add_u32 s18, s18, s23")
                a("s_mul_i32 s18, s18, 9216"); a(f"s_add_u32 s{52+i}, s18, s17")
        if n == 212:
            a("s_lshl_b32 s56, s4, 7"); a("s_lshl_b32 s18, s3, 5"); a("s_add_u32 s56, s56, s18"); a("s_mul_i32 s56, s56, 1152")
            a("s_mul_i32 s18, s5, 288"); a("s_add_u32 s56, s56, s18"); a("s_lshl_b32 s18, s16, 6"); a("s_add_u32 s56, s56, s18")
            a("s_mul_i32 s57, s5, 576"); a("s_lshl_b32 s18, s16, 7"); a("s_add_u32 s57, s57, s18"); a(f"s_add_u32 s57, s57, {OFF_MODF + 4608}")
            a(f"s_add_u32 s58, s56, {OFF_X1R}")
            a("s_lshl_b32 s59, s16, 12"); a(f"s_add_u32 s59, s59, {SLOT}")
    assert not ops and not armed
    stamp_m(a, 5)
    a(f"v_add_u32 v{VA}, {SLOT}, v{VT}")
    OWN = 2 * SLOT
    a("s_cmp_eq_u32 s16, s3")
    a("s_cbranch_scc1 GG_OWN")
    h = list(a.hist)
    for aa in range(9):
        o = 72 + 4*(aa % 3)
        for q in range(4): a(f"v_cvt_pk_bf16_f32 v{o+q}, v{8*aa+2*q}, v{8*aa+2*q+1}")
        a(f"buffer_store_dwordx4 v[{o}:{o+3}], v{VT}, s[8:11], s{28 + aa//4} offen offset:{(aa % 4)*1024} sc1")
    a("s_branch GG_PUB")
    a.label("GG_OWN"); a.hist = h
    for t in range(18):
        a(f"ds_write_b128 v{VA}, v[{4*t}:{4*t+3}] offset:{1024*t}")
    a.label("GG_PUB"); a.hist = []
    a(f"v_and_b32 v140, 15, v{M}"); a("v_mul_u32_u24 v144, 1152, v140")
    a(f"v_lshrrev_b32 v140, 4, v{M}"); a("v_lshl_add_u32 v144, v140, 3, v144")
    a("v_lshlrev_b32 v145, 4, v140")
    a(f"v_add_u32 v146, {16*1152}, v144")
    a(f"v_add_u32 v147, s59, v{VT}")
    for i in range(3):
        for b in range(2):
            a(f"buffer_load_dwordx2 v[{108+2*(2*i+b)}:{109+2*(2*i+b)}], v{144 if b == 0 else 146}, s[8:11], s58 offen offset:{32*i} sc1")
        a(f"buffer_load_dwordx4 v[{120+4*i}:{123+4*i}], v145, s[8:11], s57 offen offset:{64*i}")
    for q in range(3): a(f"s_mov_b32 s{48+q}, s{53+q}")
    a("s_mov_b32 s34, s56")
    srd(a, 24, 62, 2048*1152)
    a.wait_all(vm=False)
    stamp_m(a, 6)
    a("s_barrier")
    for i in range(6):
        a(f"ds_read_b128 v[{4*i}:{4*i+3}], v147 offset:{1024*i}")
    R = 24
    a("s_mov_b32 s22, 0x8000")
    a.label("GG_P2")
    for i in range(3):
        for q in range(3):
            r = R + 4*(3*i + q)
            a(f"buffer_load_dwordx4 v[{r}:{r+3}], v{VT}, s[8:11], s{48+q} offen offset:{i*1024} sc1")
    a("s_waitcnt vmcnt(0)"); a.vm = []
    a(f"v_max3_u32 v60, v{R}, v{R+1}, v{R+2}")
    a(f"v_max3_u32 v61, v{R+3}, v{R+4}, v{R+5}")
    for r in range(R+6, R+36, 4):
        if r + 3 < R + 36:
            a(f"v_max3_u32 v60, v60, v{r}, v{r+1}"); a(f"v_max3_u32 v61, v61, v{r+2}, v{r+3}")
        else:
            a(f"v_max3_u32 v60, v60, v{r}, v{r+1}")
    a("v_max_u32 v60, v60, v61")
    a("v_cmp_eq_u32 vcc, -1, v60")
    a("s_sub_u32 s22, s22, 1")
    a("s_cbranch_scc1 GG_P2X")
    a("s_cbranch_vccnz GG_P2")
    a.label("GG_P2X"); a.hist = []
    a.wait_all(vm=False)
    for i in range(3):
        for b in range(2):
            r = 4*(2*i + b)
            for q in range(3):
                for e in range(2):
                    unpack(a, 60, 61, R + 4*(3*i+q) + 2*b + e)
                    a(f"v_add_f32 v{r+2*e}, v{r+2*e}, v60"); a(f"v_add_f32 v{r+2*e+1}, v{r+2*e+1}, v61")
            xr = 108 + 2*(2*i + b)
            for e in range(0, 4, 2):
                rnd2(a, r+e, r+e+1, 62)
                a(f"v_mul_f32 v{r+e}, v{r+e}, v{120+4*i+e}"); a(f"v_mul_f32 v{r+e+1}, v{r+e+1}, v{120+4*i+e+1}")
                rnd2(a, r+e, r+e+1, 62)
                unpack(a, 62, 63, xr+e//2)
                a(f"v_add_f32 v{r+e}, v{r+e}, v62"); a(f"v_add_f32 v{r+e+1}, v{r+e+1}, v63")
                a(f"v_cvt_pk_bf16_f32 v{xr+e//2}, v{r+e}, v{r+e+1}")
            a(f"buffer_store_dwordx2 v[{xr}:{xr+1}], v{144 if b == 0 else 146}, s[24:27], s34 offen offset:{32*i}")
    if STAMP:
        a.wait_all(); stamp(a, 7); stamp_store(a, 8, 4)
    a.label("GG_END")
    a("s_endpgm")
    return a.text(), dict(vgpr=256+160, sgpr=64, accum=256), f"grid=(256,1,1) block=(256,1,1) lds={NSLOT*SLOT}"

def k5():
    a = Asm()
    SLOT = 36864; NSLOT = 4; PF = 12
    a("s_load_dwordx2 s[6:7], s[0:1], 136")
    a("s_load_dwordx2 s[12:13], s[0:1], 96")
    a("s_cmp_ge_u32 s2, 256")
    a("s_cbranch_scc1 K5_END")
    stamp(a, 0)
    M = 208
    a(f"v_and_b32 v{M}, 63, v0")
    a(f"v_lshrrev_b32 v{M+1}, 6, v0")
    a(f"v_readfirstlane_b32 s16, v{M+1}")
    a(f"v_mov_b32 v1, v{M}")
    a("s_and_b32 s17, s2, 7"); a("s_lshr_b32 s18, s2, 3")
    a("s_and_b32 s19, s18, 3")
    a("s_lshr_b32 s18, s18, 2")
    a("s_lshl_b32 s14, s19, 1"); a("s_add_u32 s14, s14, s18")
    a("s_sub_u32 s20, s14, 9"); a("s_cmp_ge_u32 s14, 9"); a("s_cselect_b32 s14, s20, s14")
    if EXP == "norot": a("s_mov_b32 s14, 0")
    a("s_and_b32 s20, s17, 1"); a("s_lshl_b32 s20, s20, 3"); a("s_add_u32 s18, s18, s20")
    a("s_lshr_b32 s17, s17, 1")
    DV = M+2
    dma_voffsets(a, DV, 1152)
    a(f"s_mul_i32 s28, s17, {1152*1152}"); a(f"s_mul_i32 s30, s16, {32*1152}"); a("s_add_u32 s28, s28, s30")
    a("s_mul_i32 s30, s19, 288"); a("s_add_u32 s28, s28, s30")
    a("s_mul_i32 s29, s16, 9216")
    VT = M+13
    a(f"v_lshlrev_b32 v{VT}, 4, v{M}")
    a("s_lshl_b32 s31, s18, 3"); a("s_lshl_b32 s30, s16, 1"); a("s_add_u32 s31, s31, s30")
    a("s_mul_i32 s31, s31, 147456"); a("s_mul_i32 s30, s17, 36864"); a("s_add_u32 s31, s31, s30")
    a(f"s_add_u32 s31, s31, {OFF_HM}")
    a("s_add_u32 s32, s31, 147456")
    SD, ST0, ST1 = 33, 42, 51
    rot_soffsets(a, 14, SD, ST0, ST1, 28, 31, 32, 128*1152, 22)
    a.wait_all()
    stamp_m(a, 1)
    srd(a, 8, 6, WS_REC)
    srd(a, 24, 12, 4608*1152)
    AF = 72; BR = 108
    VA = M+14; VS = M+18
    def dma(st, i):
        a(f"s_add_u32 m0, s29, {(st % NSLOT)*SLOT + i*1024}")
        a(f"buffer_load_dwordx4 v{DV+i}, s[24:27], s{SD+st} offen lds", tag=("d", st))
    def tok(ks, b):
        rb = BR + 8 * (ks % PF) + 4*b
        a(f"buffer_load_dwordx4 v[{rb}:{rb+3}], v{VT}, s[8:11], s{(ST0, ST1)[b] + ks//4} offen offset:{(ks % 4)*1024}", tag=("t", ks))
    def trd(ks, aa):
        st, kk = divmod(ks, 4); slot = st % NSLOT
        off = kk*9216 + aa*32
        a(f"ds_read_b64_tr_b16 v[{AF+4*aa}:{AF+4*aa+1}], v{VA+slot} offset:{off}", tag=("a", ks, aa))
        a(f"ds_read_b64_tr_b16 v[{AF+4*aa+2}:{AF+4*aa+3}], v{VA+slot} offset:{off+(16 if G16 else 8)*288}", tag=("a", ks, aa))
    def mfma(ks, aa, b):
        t = 2*aa + b; rb = BR + 8 * (ks % PF) + 4*b
        c = f"v[{4*t}:{4*t+3}]"
        a(f"v_mfma_f32_16x16x32_bf16 {c}, v[{AF+4*aa}:{AF+4*aa+3}], v[{rb}:{rb+3}], {c if ks else 0}")
    def between():
        stamp_m(a, 2)
        if G16:
            a(f"v_lshrrev_b32 v2, 2, v{M}")
        else:
            a(f"v_lshrrev_b32 v2, 5, v{M}"); a("v_lshlrev_b32 v2, 4, v2")
            a(f"v_bfe_u32 v3, v{M}, 4, 1"); a("v_lshl_add_u32 v2, v3, 2, v2")
            a(f"v_bfe_u32 v3, v{M}, 2, 2"); a("v_add_u32 v2, v2, v3")
        a(f"v_mul_u32_u24 v{VA}, 288, v2")
        a(f"v_and_b32 v2, 3, v{M}"); a(f"v_lshl_add_u32 v{VA}, v2, 3, v{VA}")
        a(f"v_add_u32 v{VA+1}, {SLOT}, v{VA}")
        a(f"v_add_u32 v{VA+2}, {2*SLOT}, v{VA}")
        a(f"v_add_u32 v{VA+3}, {3*SLOT}, v{VA}")
        a(f"v_and_b32 v2, 15, v{M}"); a(f"v_mul_u32_u24 v{VS}, 2304, v2")
        a(f"v_lshrrev_b32 v2, 4, v{M}"); a(f"v_lshl_add_u32 v{VS}, v2, 4, v{VS}")
        a("s_lshl_b32 s20, s17, 11"); a("s_lshl_b32 s21, s18, 7"); a("s_add_u32 s20, s20, s21")
        a("s_lshl_b32 s21, s16, 5"); a("s_add_u32 s20, s20, s21")
        a("s_mul_i32 s20, s20, 2304"); a("s_mul_i32 s21, s19, 576"); a("s_add_u32 s20, s20, s21")
        a(f"s_add_u32 s20, s20, {OFF_PART}")
        a(f"s_add_u32 s21, s20, {16*2304}")
    kloop(a, dma, tok, trd, mfma, PF, 4, (0, 1, 2, 3, 4, 5, 6, 7, 8), between)
    stamp_m(a, 5)
    for t in range(18):
        aa, b = divmod(t, 2)
        a(f"buffer_store_dwordx4 v[{4*t}:{4*t+3}], v{VS}, s[8:11], s{20+b} offen offset:{64*aa}")
    if STAMP:
        stamp_m(a, 6); a.wait_all(); stamp(a, 7); stamp_store(a, 8, 5)
    a.label("K5_END")
    a("s_endpgm")
    return a.text(), dict(vgpr=228, sgpr=60, accum=228), f"grid=(256,1,1) block=(256,1,1) lds={NSLOT*SLOT}"

def k6():
    a = Asm()
    a("s_load_dwordx2 s[6:7], s[0:1], 136")
    a("s_load_dwordx2 s[4:5], s[0:1], 120")
    a("s_cmp_ge_u32 s2, 576")
    a("s_cbranch_scc1 K6_END")
    stamp(a, 0)
    a("s_lshl_b32 s3, s2, 8"); a("v_add_u32 v1, s3, v0")
    a("v_lshlrev_b32 v2, 5, v1")
    a("v_lshlrev_b32 v3, 4, v1")
    a("s_mov_b32 s12, 0x38e38e4")
    a("v_mul_hi_u32 v4, s12, v1"); a("v_mul_u32_u24 v4, 72, v4"); a("v_sub_u32 v4, v1, v4")
    a("v_lshlrev_b32 v4, 5, v4")
    a.wait_all()
    srd(a, 8, 6, WS_REC)
    srd(a, 12, 4, 2048*1152)
    for s in range(4):
        a(f"s_mov_b32 s16, {OFF_PART + s*2048*2304}")
        a(f"buffer_load_dwordx4 v[{8+8*s}:{11+8*s}], v2, s[8:11], s16 offen")
        a(f"buffer_load_dwordx4 v[{12+8*s}:{15+8*s}], v2, s[8:11], s16 offen offset:16")
    a(f"s_mov_b32 s16, {OFF_X1R}")
    a("buffer_load_dwordx4 v[40:43], v3, s[8:11], s16 offen")
    a(f"s_mov_b32 s16, {OFF_MODF + 4608}")
    a("buffer_load_dwordx4 v[44:47], v4, s[8:11], s16 offen")
    a("buffer_load_dwordx4 v[48:51], v4, s[8:11], s16 offen offset:16")
    a.wait_all()
    stamp_m(a, 1)
    for e in range(8):
        a(f"v_add_f32 v{8+e}, v{8+e}, v{16+e}")
        a(f"v_add_f32 v{24+e}, v{24+e}, v{32+e}")
    for e in range(8):
        a(f"v_add_f32 v{8+e}, v{8+e}, v{24+e}")
    for e in range(0, 8, 2):
        rnd2(a, 8+e, 9+e, 5)
        a(f"v_mul_f32 v{8+e}, v{8+e}, v{44+e}"); a(f"v_mul_f32 v{9+e}, v{9+e}, v{45+e}")
        rnd2(a, 8+e, 9+e, 5)
        unpack(a, 5, 6, 40+e//2)
        a(f"v_add_f32 v{8+e}, v{8+e}, v5"); a(f"v_add_f32 v{9+e}, v{9+e}, v6")
        a(f"v_cvt_pk_bf16_f32 v{52+e//2}, v{8+e}, v{9+e}")
    a("buffer_store_dwordx4 v[52:55], v3, s[12:15], 0 offen")
    if STAMP:
        a.wait_all(); stamp_m(a, 2); stamp_store(a, 3, 6)
    a.label("K6_END")
    a("s_endpgm")
    return a.text(), dict(vgpr=56, sgpr=40, accum=56), "grid=(576,1,1) block=(256,1,1) lds=0"

HEADER = open("adaLN_cond__ssm_conv_s4__glu_gated_bilinear__prompt.s.ref").read().split("; Override launch")[0]

def build(kernels, path):
    out = HEADER
    bodies = []
    for name, fn in kernels:
        text, res, launch = fn()
        out += f"; @launch kernel={name} {launch}\n"
        bodies.append((name, text, res))
    out += '.amdgcn_target "amdgcn-amd-amdhsa--gfx950"\n.text\n'
    seen = set()
    for name, text, res in bodies:
        if name in seen: continue
        seen.add(name)
        out += kernel_header(name) + text
    out += '.section .rodata,"a"\n'
    seen = set()
    for name, text, res in bodies:
        if name in seen: continue
        seen.add(name)
        out += kernel_desc(name, res["vgpr"], 102 if STAMP else res["sgpr"], res["accum"])
    open(path, "w").write(out)

if __name__ == "__main__":
    if len(sys.argv) > 2 and sys.argv[2] == "stamp": STAMP = True
    if len(sys.argv) > 3: EXP = sys.argv[3]
    if EXP == "g32": G16 = False
    path = sys.argv[1] if len(sys.argv) > 1 else "adaLN_cond__ssm_conv_s4__glu_gated_bilinear__prompt.s"
    if EXP in ("sep", "g32", "norot", "notr", "stages"):
        build([("prep_kernel", k1), ("conv_kernel", k2), ("ln2_kernel", k3), ("gemm1_kernel", k4b if G16 else k4), ("gemm2_kernel", k5), ("fin_kernel", k6)], path)
    else:
        if EXP == "old3": build([("prep_kernel", k1), ("conv_kernel", k2), ("gg_kernel", kgg)], path)
        elif EXP != "gg2": build([("front_kernel", kf), ("gg_kernel", kgg)], path)
        else: build([("front_kernel", kf), ("gg_kernel", kgg2)], path)
```
